```python
import torch

def _softmax(x, axis=-1):
    return torch.softmax(x, dim=axis)
def _gelu(x):
    return torch.nn.functional.gelu(x, approximate="tanh")
def _silu(x):
    return torch.nn.functional.silu(x)
def _sigmoid(x):
    return torch.sigmoid(x)
def _layernorm(x, axis=-1, eps=1e-5):
    m = x.mean(dim=axis, keepdim=True)
    v = x.var(dim=axis, keepdim=True, unbiased=False)
    return (x - m) / torch.sqrt(v + eps)
def _scatter_add(tgt, idx, src, axis=0):
    return tgt.clone().index_add_(axis, idx, src)
def _segment_sum(src, seg, n):
    out = torch.zeros((n,) + src.shape[1:], dtype=src.dtype)
    return out.index_add_(0, seg, src)
def _pad(x, pw):
    flat = tuple(v for pair in reversed(pw) for v in pair)
    return torch.nn.functional.pad(x, flat)

kernel_name = 'recurrent_scan__compressed_kv_cla__swiglu_ffn__decode'

def setup_inputs():

    _w = (lambda a: (lambda t: t.to(torch.bfloat16) if t.is_floating_point() else t)(torch.as_tensor(a)))
    def _A_setup():
        B, H, Sq, Sk, D, M = 4, 32, 1, 4096, 128, 512
        Dc = 4 * D
        return {
            "x": _w((lambda *s: torch.randn(*s, dtype=torch.bfloat16) * 0.05)(B, Sq, M)),
            "c_kv": _w((lambda *s: torch.randn(*s, dtype=torch.bfloat16) * 0.8)(B, Sk, Dc)),
            "w_q": _w((lambda *s: torch.randn(*s, dtype=torch.bfloat16) * 1.6)(M, H, D) * (M ** -0.5)),
            "w_uk": _w((lambda *s: torch.randn(*s, dtype=torch.bfloat16) * 1.6)(Dc, H, D) * (Dc ** -0.5)),
            "w_uv": _w((lambda *s: torch.randn(*s, dtype=torch.bfloat16) * 0.8)(Dc, H, D) * (Dc ** -0.5)),
            "w_o": _w((lambda *s: torch.randn(*s, dtype=torch.bfloat16) * 0.8)(H, D, M) * ((H * D) ** -0.5)),
        }
    _A_in = _A_setup()

    def _B_setup():
        B, S, D, F = 4, 1, 512, 1792
        return {
            "x": _w((lambda *s: torch.randn(*s, dtype=torch.bfloat16) * 0.05)(B, S, D)),
            "w_gate": _w((lambda *s: torch.randn(*s, dtype=torch.bfloat16) * 0.2)(D, F)),
            "w_up": _w((lambda *s: torch.randn(*s, dtype=torch.bfloat16) * 0.2)(D, F)),
            "w_down": _w((lambda *s: torch.randn(*s, dtype=torch.bfloat16) * 0.2)(F, D)),
        }
    _B_in = _B_setup()

    return {
        "A_x": _A_in["x"],
        "A_c_kv": _A_in["c_kv"],
        "A_w_q": _A_in["w_q"],
        "A_w_uk": _A_in["w_uk"],
        "A_w_uv": _A_in["w_uv"],
        "A_w_o": _A_in["w_o"],
        "B_x": _B_in["x"],
        "B_w_gate": _B_in["w_gate"],
        "B_w_up": _B_in["w_up"],
        "B_w_down": _B_in["w_down"],
    }

def reference(A_x, A_c_kv, A_w_q, A_w_uk, A_w_uv, A_w_o, B_x, B_w_gate, B_w_up, B_w_down):
    def _A_ref(x, c_kv, w_q, w_uk, w_uv, w_o):
        B, Sq, M = x.shape[0], x.shape[1], x.shape[2]
        Sk = c_kv.shape[1]
        H, D = w_q.shape[1], w_q.shape[2]
        q = torch.einsum("bqm,mhd->bhqd", x, w_q)
        k = torch.einsum("bkc,chd->bhkd", c_kv, w_uk)
        v = torch.einsum("bkc,chd->bhkd", c_kv, w_uv)
        scores = torch.einsum("bhqd,bhkd->bhqk", q, k) * (D ** -0.5)
        off = Sk - Sq
        qi = torch.arange(Sq)[:, None]
        kj = torch.arange(Sk)[None, :]
        cmask = kj <= (qi + off)
        scores = torch.where(cmask[None, None], scores, -1e9)
        p = _softmax(scores, axis=-1)
        ctx = torch.einsum("bhqk,bhkd->bhqd", p, v)
        return torch.einsum("bhqd,hdm->bqm", ctx, w_o)

    def _B_ref(x, w_gate, w_up, w_down):
        g = _silu(x @ w_gate)
        u = x @ w_up
        return (g * u) @ w_down

    x = A_x
    xn = _layernorm(x, axis=-1)
    s = _A_ref(xn, A_c_kv, A_w_q, A_w_uk, A_w_uv, A_w_o)
    g = _silu(_B_ref(xn, B_w_gate, B_w_up, B_w_down))
    return x + s * g
```

```python
import sys

NAME = "recurrent_scan__compressed_kv_cla__swiglu_ffn__decode"

QABS = 0x000000
GU = 0x040000
STATS = 0x0C0000
PART = 0x100000
SPART = 0x600000
YPART = 0x700000
WS_USED = 0x800000

SRD3 = 0x00020000


def v(n):
    return "v%d" % n


def vr(n, c):
    return "v[%d:%d]" % (n, n + c - 1)


def s(n):
    return "s%d" % n


def sr(n, c):
    return "s[%d:%d]" % (n, n + c - 1)


class Asm:
    def __init__(self):
        self.L = []

    def __call__(self, t):
        self.L.append("    " + t)

    def label(self, t):
        self.L.append(t + ":")

    def c(self, t):
        self.L.append("    ; " + t)

    def raw(self, t):
        self.L.append(t)

    def nop(self, n):
        while n > 0:
            k = min(n, 16)
            self("s_nop %d" % (k - 1))
            n -= k


P_X, P_CKV, P_WQ, P_WUK, P_WUV, P_WO, P_BX, P_WG, P_WU, P_WD, P_OUT, P_DBG, P_WS = [16 + 2 * i for i in range(13)]
S_SELLO, S_SELHI = 14, 15
S_WV = 3


def kernel_begin(a, name):
    a.raw(".globl %s" % name)
    a.raw(".p2align 8")
    a.raw(".type %s,@function" % name)
    a.label(name)


def kernel_desc(a, name, nvgpr, nsgpr=102):
    nv = (nvgpr + 3) // 4 * 4
    a.raw(".amdhsa_kernel %s" % name)
    a.raw("  .amdhsa_next_free_vgpr %d" % nv)
    a.raw("  .amdhsa_next_free_sgpr %d" % nsgpr)
    a.raw("  .amdhsa_accum_offset %d" % nv)
    a.raw("  .amdhsa_group_segment_fixed_size 0")
    a.raw("  .amdhsa_kernarg_size 104")
    a.raw("  .amdhsa_user_sgpr_count 2")
    a.raw("  .amdhsa_user_sgpr_kernarg_segment_ptr 1")
    a.raw("  .amdhsa_system_sgpr_workgroup_id_x 1")
    a.raw(".end_amdhsa_kernel")


def prologue(a, nwg, endlabel):
    a("s_cmp_ge_u32 s2, %d" % nwg)
    a("s_cbranch_scc1 %s" % endlabel)
    a("s_load_dwordx16 s[16:31], s[0:1], 0")
    a("s_load_dwordx8 s[32:39], s[0:1], 64")
    a("s_load_dwordx2 s[40:41], s[0:1], 96")
    a("v_lshrrev_b32 v3, 6, v0")
    a("v_and_b32 v1, 63, v0")
    a("v_readfirstlane_b32 s3, v3")
    a("v_and_b32 v2, 15, v1")
    a("v_lshrrev_b32 v3, 4, v1")
    a("s_mov_b32 s%d, 0x05040100" % S_SELLO)
    a("s_mov_b32 s%d, 0x07060302" % S_SELHI)
    a("s_waitcnt lgkmcnt(0)")


def srd(a, d, p, size, off=None, off_sgpr=None):
    if off_sgpr is not None:
        a("s_add_u32 s%d, s%d, s%d" % (d, p, off_sgpr))
        a("s_addc_u32 s%d, s%d, 0" % (d + 1, p + 1))
        a("s_and_b32 s%d, s%d, 0xffff" % (d + 1, d + 1))
    elif off:
        a("s_add_u32 s%d, s%d, 0x%x" % (d, p, off))
        a("s_addc_u32 s%d, s%d, 0" % (d + 1, p + 1))
        a("s_and_b32 s%d, s%d, 0xffff" % (d + 1, d + 1))
    else:
        a("s_mov_b32 s%d, s%d" % (d, p))
        a("s_and_b32 s%d, s%d, 0xffff" % (d + 1, p + 1))
    a("s_mov_b32 s%d, 0x%x" % (d + 2, size))
    a("s_mov_b32 s%d, 0x%x" % (d + 3, SRD3))


def red_g(a, op, x, t):
    a("v_mov_b32 %s, %s" % (v(t), v(x)))
    a.nop(2)
    a("v_permlane16_swap_b32 %s, %s" % (v(x), v(t)))
    a.nop(1)
    a("%s %s, %s, %s" % (op, v(x), v(x), v(t)))
    a("v_mov_b32 %s, %s" % (v(t), v(x)))
    a.nop(2)
    a("v_permlane32_swap_b32 %s, %s" % (v(x), v(t)))
    a.nop(1)
    a("%s %s, %s, %s" % (op, v(x), v(x), v(t)))


def red_16(a, op, x, t):
    a.nop(2)
    a("%s_dpp %s, %s, %s quad_perm:[1,0,3,2] row_mask:0xf bank_mask:0xf" % (op, v(t), v(x), v(x)))
    a.nop(2)
    a("%s_dpp %s, %s, %s quad_perm:[2,3,0,1] row_mask:0xf bank_mask:0xf" % (op, v(x), v(t), v(t)))
    a.nop(2)
    a("%s_dpp %s, %s, %s row_half_mirror row_mask:0xf bank_mask:0xf" % (op, v(t), v(x), v(x)))
    a.nop(2)
    a("%s_dpp %s, %s, %s row_mirror row_mask:0xf bank_mask:0xf" % (op, v(x), v(t), v(t)))


def red_64(a, op, x, t):
    red_16(a, op, x, t)
    red_g(a, op, x, t)


def layernorm(a, vx, t, vaddr):
    f = t
    d = t + 8
    S, T, M, R, VB, MB, SQ, RC = [t + 16 + i for i in range(8)]
    for i in range(4):
        a("v_lshlrev_b32 %s, 16, %s" % (v(f + 2 * i), v(vx + i)))
        a("v_and_b32 %s, 0xffff0000, %s" % (v(f + 2 * i + 1), v(vx + i)))
    a("v_add_f32 %s, %s, %s" % (v(S), v(f), v(f + 1)))
    for i in range(2, 8):
        a("v_add_f32 %s, %s, %s" % (v(S), v(S), v(f + i)))
    red_64(a, "v_add_f32", S, T)
    a("v_mul_f32 %s, 0x3b000000, %s" % (v(M), v(S)))
    for i in range(8):
        a("v_sub_f32 %s, %s, %s" % (v(d + i), v(f + i), v(M)))
    a("v_mul_f32 %s, %s, %s" % (v(S), v(d), v(d)))
    for i in range(1, 8):
        a("v_fma_f32 %s, %s, %s, %s" % (v(S), v(d + i), v(d + i), v(S)))
    red_64(a, "v_add_f32", S, T)
    a("v_mul_f32 %s, 0x3b000000, %s" % (v(S), v(S)))
    a("v_cvt_pk_bf16_f32 %s, %s, %s" % (v(R), v(S), v(M)))
    a("v_lshlrev_b32 %s, 16, %s" % (v(VB), v(R)))
    a("v_and_b32 %s, 0xffff0000, %s" % (v(MB), v(R)))
    a("v_add_f32 %s, 0x3727c5ac, %s" % (v(VB), v(VB)))
    a("v_cvt_pk_bf16_f32 %s, %s, %s" % (v(R), v(VB), v(VB)))
    a("v_lshlrev_b32 %s, 16, %s" % (v(VB), v(R)))
    a("v_sqrt_f32 %s, %s" % (v(SQ), v(VB)))
    a.nop(1)
    a("v_cvt_pk_bf16_f32 %s, %s, %s" % (v(R), v(SQ), v(SQ)))
    a("v_lshlrev_b32 %s, 16, %s" % (v(SQ), v(R)))
    a("v_rcp_f32 %s, %s" % (v(RC), v(SQ)))
    for i in range(8):
        a("v_sub_f32 %s, %s, %s" % (v(d + i), v(f + i), v(MB)))
    for i in range(4):
        a("v_cvt_pk_bf16_f32 %s, %s, %s" % (v(f + i), v(d + 2 * i), v(d + 2 * i + 1)))
    for i in range(4):
        a("v_lshlrev_b32 %s, 16, %s" % (v(d + 2 * i), v(f + i)))
        a("v_and_b32 %s, 0xffff0000, %s" % (v(d + 2 * i + 1), v(f + i)))
    for i in range(8):
        a("v_mul_f32 %s, %s, %s" % (v(f + i), v(d + i), v(RC)))
    for i in range(8):
        a("v_fma_f32 %s, -%s, %s, %s" % (v(d + i), v(f + i), v(SQ), v(d + i)))
    for i in range(8):
        a("v_fma_f32 %s, %s, %s, %s" % (v(f + i), v(d + i), v(RC), v(f + i)))
    for i in range(4):
        a("v_cvt_pk_bf16_f32 %s, %s, %s" % (v(d + i), v(f + 2 * i), v(f + 2 * i + 1)))
    a("ds_write_b128 %s, %s" % (v(vaddr), vr(d, 4)))


def unit8(a, L, F, A, acc, first):
    def perms(t):
        c, e = t >> 1, t & 1
        for p in range(4):
            a("v_perm_b32 %s, %s, %s, s%d" % (v(F + 4 * t + p), v(L + 4 * (2 * p + 1) + c), v(L + 4 * (2 * p) + c),
                                              S_SELHI if e else S_SELLO))

    def mf(t):
        a("v_mfma_f32_16x16x32_bf16 %s, %s, %s, %s" % (vr(acc + 4 * t, 4), vr(A, 4), vr(F + 4 * t, 4),
                                                       "0" if first else vr(acc + 4 * t, 4)))
    perms(0)
    for t in range(1, 8):
        perms(t)
        mf(t - 1)
    a.nop(2)
    mf(7)


def unit4(a, L, F, A, acc, first):
    def perms(t):
        c, e = t >> 1, t & 1
        for p in range(4):
            a("v_perm_b32 %s, %s, %s, s%d" % (v(F + 4 * t + p), v(L + 2 * (2 * p + 1) + c), v(L + 2 * (2 * p) + c),
                                              S_SELHI if e else S_SELLO))

    def mf(t):
        a("v_mfma_f32_16x16x32_bf16 %s, %s, %s, %s" % (vr(acc + 4 * t, 4), vr(A, 4), vr(F + 4 * t, 4),
                                                       "0" if first else vr(acc + 4 * t, 4)))
    perms(0)
    for t in range(1, 4):
        perms(t)
        mf(t - 1)
    a.nop(2)
    mf(3)


def exec_lo16(a):
    a("s_mov_b64 exec, 0xffff")


def exec_all(a):
    a("s_mov_b64 exec, -1")


LOG2E = 1.4426950408889634


def f32hex(x):
    import struct
    return "0x%08x" % struct.unpack("<I", struct.pack("<f", x))[0]


def silu_inplace(a, x, t):
    a("v_mul_f32 %s, %s, %s" % (v(t), f32hex(-LOG2E), v(x)))
    a("v_exp_f32 %s, %s" % (v(t), v(t)))
    a.nop(1)
    a("v_add_f32 %s, 1.0, %s" % (v(t), v(t)))
    a("v_rcp_f32 %s, %s" % (v(t), v(t)))
    a.nop(1)
    a("v_mul_f32 %s, %s, %s" % (v(x), v(x), v(t)))


def gen_k1(a):
    name = "k1_kernel"
    kernel_begin(a, name)
    XN, RED, QL = 0, 4352, 12544
    prologue(a, 368, "k1_end")
    SX, SW, SU, SO = 44, 48, 52, 56
    srd(a, SX, P_X, 4096)
    srd(a, SO, P_WS, WS_USED)
    a("s_lshl_b32 s4, s3, 10")
    a("v_lshlrev_b32 v4, 4, v1")
    a("v_add_u32 v5, s4, v4")
    a("buffer_load_dwordx4 v[8:11], v5, s[%d:%d], 0 offen" % (SX, SX + 3))
    a("s_mul_i32 s4, s3, 1088")
    a("v_add_u32 v6, s4, v4")
    a("s_cmp_ge_u32 s2, 256")
    a("s_cbranch_scc1 k1_ffn")
    a("s_and_b32 s4, s2, 7")
    a("s_lshr_b32 s5, s2, 3")
    a("s_lshr_b32 s6, s5, 3")
    a("s_lshl_b32 s4, s4, 2")
    a("s_add_u32 s6, s6, s4")
    a("s_and_b32 s7, s5, 7")
    srd(a, SW, P_WQ, 4194304)
    srd(a, SU, P_WUK, 4194304)
    a("s_lshl_b32 s8, s3, 20")
    a("s_lshl_b32 s9, s6, 8")
    a("s_add_u32 s8, s8, s9")
    a("v_lshlrev_b32 v7, 16, v3")
    a("v_lshlrev_b32 v12, 4, v2")
    a("v_add3_u32 v7, v7, v12, s8")
    LQ = 16
    for u in range(4):
        for i in range(8):
            a("s_mov_b32 s10, 0x%x" % ((32 * u + i) * 8192))
            a("buffer_load_dwordx4 %s, v7, s[%d:%d], s10 offen" % (vr(LQ + 32 * u + 4 * i, 4), SW, SW + 3))
    LU = 144
    a("s_lshl_b32 s8, s7, 6")
    a("s_lshl_b32 s10, s3, 4")
    a("s_add_u32 s8, s8, s10")
    a("v_add_u32 v12, s8, v2")
    a("v_lshlrev_b32 v12, 13, v12")
    a("v_lshlrev_b32 v13, 4, v3")
    a("v_add3_u32 v12, v12, v13, s9")
    for st in range(4):
        a("buffer_load_dwordx4 %s, v12, s[%d:%d], 0 offen offset:%d" % (vr(LU + 4 * st, 4), SU, SU + 3, 64 * st))
    a("s_waitcnt vmcnt(36)")
    layernorm(a, 8, 208, 6)
    a("s_waitcnt lgkmcnt(0)")
    a("s_barrier")
    AF = 160
    a("v_and_b32 v13, 3, v1")
    a("v_mul_u32_u24 v13, 1088, v13")
    a("v_lshlrev_b32 v14, 4, v3")
    a("s_lshl_b32 s10, s3, 8")
    a("v_add3_u32 v13, v13, v14, s10")
    for u in range(4):
        a("ds_read_b128 %s, v13 offset:%d" % (vr(AF + 4 * u, 4), XN + 64 * u))
    ACC = 176
    FX = 208
    a("s_waitcnt lgkmcnt(0)")
    for u in range(4):
        a("s_waitcnt vmcnt(%d)" % ((3 - u) * 8 + 4))
        unit8(a, LQ + 32 * u, FX if u == 0 else LQ + 32 * (u - 1), AF + 4 * u, ACC, u == 0)
    a.nop(8)
    a("s_lshl_b32 s10, s3, 11")
    a("v_lshlrev_b32 v13, 4, v2")
    a("v_add_u32 v13, s10, v13")
    exec_lo16(a)
    for t in range(8):
        a("ds_write_b128 v13, %s offset:%d" % (vr(ACC + 4 * t, 4), RED + 256 * t))
    exec_all(a)
    a("s_waitcnt lgkmcnt(0)")
    a("s_barrier")
    a("s_cmp_ge_u32 s3, 2")
    a("s_cbranch_scc1 k1_sumdone")
    a("v_lshlrev_b32 v13, 4, v0")
    for w in range(4):
        a("ds_read_b128 %s, v13 offset:%d" % (vr(16 + 4 * w, 4), RED + 2048 * w))
    a("v_lshrrev_b32 v14, 4, v0")
    a("v_lshlrev_b32 v15, 4, v2")
    a("v_lshl_add_u32 v14, v14, 1, v15")
    a("s_waitcnt lgkmcnt(0)")
    for b in range(4):
        a("v_add_f32 %s, %s, %s" % (v(16 + b), v(16 + b), v(20 + b)))
        a("v_add_f32 %s, %s, %s" % (v(24 + b), v(24 + b), v(28 + b)))
    for b in range(4):
        a("v_add_f32 %s, %s, %s" % (v(16 + b), v(16 + b), v(24 + b)))
    a("v_cvt_pk_bf16_f32 v20, v16, v17")
    a("v_cvt_pk_bf16_f32 v21, v18, v19")
    a("ds_write_b16 v14, v20 offset:%d" % (QL))
    a("ds_write_b16_d16_hi v14, v20 offset:%d" % (QL + 320))
    a("ds_write_b16 v14, v21 offset:%d" % (QL + 640))
    a("ds_write_b16_d16_hi v14, v21 offset:%d" % (QL + 960))
    a("s_waitcnt lgkmcnt(0)")
    a.label("k1_sumdone")
    a("s_barrier")
    a("v_and_b32 v13, 3, v1")
    a("v_mul_u32_u24 v13, 320, v13")
    a("v_lshl_add_u32 v13, v3, 4, v13")
    for st in range(4):
        a("ds_read_b128 %s, v13 offset:%d" % (vr(16 + 4 * st, 4), QL + 64 * st))
    a("s_waitcnt vmcnt(0) lgkmcnt(0)")
    for st in range(4):
        a("v_mfma_f32_16x16x32_bf16 v[32:35], %s, %s, %s" % (vr(LU + 4 * st, 4), vr(16 + 4 * st, 4),
                                                            "0" if st == 0 else "v[32:35]"))
    a("v_lshlrev_b32 v13, 15, v2")
    a("v_lshlrev_b32 v14, 3, v3")
    a("s_lshl_b32 s10, s6, 10")
    a("s_lshl_b32 s11, s8, 1")
    a("s_add_u32 s10, s10, s11")
    a("v_add3_u32 v13, v13, v14, s10")
    a("v_cmp_gt_u32 vcc, 4, v2")
    a.nop(4)
    sc = f32hex(LOG2E * (128 ** -0.5))
    for r in range(4):
        a("v_mul_f32 %s, %s, %s" % (v(32 + r), sc, v(32 + r)))
    a("v_cvt_pk_bf16_f32 v36, v32, v33")
    a("v_cvt_pk_bf16_f32 v37, v34, v35")
    a("s_and_saveexec_b64 s[12:13], vcc")
    a("buffer_store_dwordx2 v[36:37], v13, s[%d:%d], 0 offen offset:%d" % (SO, SO + 3, QABS))
    a("s_endpgm")
    a.label("k1_ffn")
    a("s_sub_u32 s4, s2, 256")
    a("s_and_b32 s5, s4, 3")
    a("s_lshr_b32 s6, s4, 2")
    a("s_lshr_b32 s7, s3, 1")
    a("s_and_b32 s8, s3, 1")
    a("s_cmp_eq_u32 s7, 0")
    a("s_cselect_b32 s10, s%d, s%d" % (P_WG, P_WU))
    a("s_cselect_b32 s11, s%d, s%d" % (P_WG + 1, P_WU + 1))
    srd(a, SW, 10, 512 * 3584)
    a("s_lshl_b32 s9, s5, 1")
    a("s_add_u32 s9, s9, s8")
    a("s_mul_i32 s10, s9, %d" % (64 * 3584))
    a("s_lshl_b32 s11, s6, 7")
    a("s_add_u32 s10, s10, s11")
    a("v_mul_u32_u24 v7, %d, v3" % (8 * 3584))
    a("v_lshlrev_b32 v12, 3, v2")
    a("v_add3_u32 v7, v7, v12, s10")
    LF = 16
    for u in range(2):
        for i in range(8):
            a("s_mov_b32 s10, 0x%x" % ((32 * u + i) * 3584))
            a("buffer_load_dwordx2 %s, v7, s[%d:%d], s10 offen" % (vr(LF + 16 * u + 2 * i, 2), SW, SW + 3))
    a("s_waitcnt vmcnt(16)")
    layernorm(a, 8, 208, 6)
    a("s_waitcnt lgkmcnt(0)")
    a("s_barrier")
    a("v_and_b32 v13, 3, v1")
    a("v_mul_u32_u24 v13, 1088, v13")
    a("v_lshlrev_b32 v14, 4, v3")
    a("s_lshl_b32 s10, s9, 7")
    a("v_add3_u32 v13, v13, v14, s10")
    for u in range(2):
        a("ds_read_b128 %s, v13 offset:%d" % (vr(AF + 4 * u, 4), XN + 64 * u))
    a("s_waitcnt lgkmcnt(0)")
    for u in range(2):
        a("s_waitcnt vmcnt(%d)" % ((1 - u) * 8))
        unit4(a, LF + 16 * u, FX + 16 * u, AF + 4 * u, ACC, u == 0)
    a("s_lshl_b32 s10, s9, 1")
    a("s_add_u32 s10, s10, s7")
    a("s_mul_i32 s10, s10, %d" % (1792 * 16))
    a("s_lshl_b32 s11, s6, 10")
    a("s_add_u32 s10, s10, s11")
    a("s_add_u32 s10, s10, 0x%x" % GU)
    a("v_lshlrev_b32 v13, 6, v2")
    a("v_add_u32 v13, s10, v13")
    a.nop(8)
    exec_lo16(a)
    for t in range(4):
        a("buffer_store_dwordx4 %s, v13, s[%d:%d], 0 offen offset:%d" % (vr(ACC + 4 * t, 4), SO, SO + 3, 16 * t))
    a.label("k1_end")
    a("s_endpgm")
    return name, 240


def gen_k2(a):
    name = "k2_kernel"
    kernel_begin(a, name)
    RS = 1056
    PL = 0
    MX = PL + 4096
    LS = MX + 256
    CKV = 4608
    prologue(a, 256, "k2_end")
    SC, SO = 44, 48
    a("s_and_b32 s4, s2, 7")
    a("s_lshr_b32 s5, s2, 3")
    a("s_and_b32 s6, s5, 1")
    a("s_lshr_b32 s5, s5, 1")
    a("s_lshl_b32 s5, s5, 3")
    a("s_add_u32 s5, s5, s4")
    a("s_lshr_b32 s7, s5, 5")
    a("s_and_b32 s8, s5, 31")
    a("s_lshl_b32 s9, s5, 17")
    srd(a, SC, P_CKV, 131072, off_sgpr=9)
    srd(a, SO, P_WS, WS_USED)
    QF = 16
    a("s_lshl_b32 s9, s7, 5")
    a("s_lshl_b32 s10, s6, 4")
    a("s_add_u32 s9, s9, s10")
    a("s_lshl_b32 s10, s9, 10")
    a("v_lshlrev_b32 v4, 10, v2")
    a("v_lshlrev_b32 v5, 4, v3")
    a("v_add3_u32 v4, v4, v5, s10")
    for st in range(16):
        a("buffer_load_dwordx4 %s, v4, s[%d:%d], 0 offen offset:%d" % (vr(QF + 4 * st, 4), SO, SO + 3, QABS + 64 * st))
    a("v_lshlrev_b32 v5, 4, v1")
    a("s_mul_i32 s10, s3, %d" % (32 * RS))
    a("s_lshl_b32 s11, s3, 15")
    for i in range(32):
        a("s_add_u32 m0, s10, %d" % (CKV + i * RS))
        a("s_add_u32 s12, s11, %d" % (i * 1024))
        a("buffer_load_dwordx4 v5, s[%d:%d], s12 offen lds" % (SC, SC + 3))
    a("v_mul_u32_u24 v6, %d, v2" % RS)
    a("v_lshlrev_b32 v7, 4, v3")
    a("v_add3_u32 v6, v6, v7, s10")
    AF = 80
    SCO = 144
    for T in range(2):
        a("s_waitcnt vmcnt(%d)" % (16 if T == 0 else 0))
        for st in range(16):
            a("ds_read_b128 %s, v6 offset:%d" % (vr(AF + 4 * st, 4), CKV + T * 16 * RS + st * 64))
        for st in range(16):
            a("s_waitcnt lgkmcnt(%d)" % (15 - st))
            a("v_mfma_f32_16x16x32_bf16 %s, %s, %s, %s" % (vr(SCO + 4 * T, 4), vr(AF + 4 * st, 4), vr(QF + 4 * st, 4),
                                                          "0" if st == 0 else vr(SCO + 4 * T, 4)))
    a.nop(8)
    a("v_max3_f32 v8, v144, v145, v146")
    a("v_max3_f32 v8, v8, v147, v148")
    a("v_max3_f32 v8, v8, v149, v150")
    a("v_max_f32 v8, v8, v151")
    red_g(a, "v_max_f32", 8, 9)
    a("s_lshl_b32 s12, s3, 6")
    a("v_lshlrev_b32 v10, 2, v2")
    a("v_add_u32 v11, s12, v10")
    exec_lo16(a)
    a("ds_write_b32 v11, v8 offset:%d" % MX)
    exec_all(a)
    a("s_waitcnt lgkmcnt(0)")
    a("s_barrier")
    for w in range(4):
        a("ds_read_b32 %s, v10 offset:%d" % (v(12 + w), MX + 64 * w))
    a("s_waitcnt lgkmcnt(0)")
    a("v_max3_f32 v8, v12, v13, v14")
    a("v_max_f32 v8, v8, v15")
    for r in range(8):
        a("v_sub_f32 %s, %s, v8" % (v(SCO + r), v(SCO + r)))
    for r in range(8):
        a("v_exp_f32 %s, %s" % (v(SCO + r), v(SCO + r)))
    a.nop(1)
    for r in range(4):
        a("v_cvt_pk_bf16_f32 %s, %s, %s" % (v(152 + r), v(SCO + 2 * r), v(SCO + 2 * r + 1)))
    a("v_add_f32 v9, v144, v145")
    for r in range(2, 8):
        a("v_add_f32 v9, v9, %s" % v(SCO + r))
    a("s_lshl_b32 s12, s3, 10")
    a("v_lshlrev_b32 v12, 4, v1")
    a("v_add_u32 v13, s12, v12")
    a("ds_write_b128 v13, v[152:155] offset:%d" % PL)
    red_g(a, "v_add_f32", 9, 14)
    exec_lo16(a)
    a("ds_write_b32 v11, v9 offset:%d" % LS)
    exec_all(a)
    a("s_waitcnt lgkmcnt(0)")
    a("s_barrier")
    PF = 156
    for st in range(4):
        a("ds_read_b128 %s, v12 offset:%d" % (vr(PF + 4 * st, 4), PL + 1024 * st))
    a("v_lshrrev_b32 v13, 2, v2")
    a("v_lshl_add_u32 v13, v3, 2, v13")
    a("v_mul_u32_u24 v13, %d, v13" % RS)
    a("v_and_b32 v14, 3, v2")
    a("v_lshlrev_b32 v14, 3, v14")
    a("s_lshl_b32 s12, s3, 8")
    a("v_add3_u32 v13, v13, v14, s12")
    a("v_add_u32 v14, %d, v13" % (64 * RS))
    ACC = 176
    TB = [16, 48]
    groups = [(st, ch) for st in range(4) for ch in range(2)]

    def issue(k):
        st, ch = groups[k]
        buf = 16 + 16 * (k % 4)
        base = 13 if st < 2 else 14
        for q in range(4):
            ct = 4 * ch + q
            off = CKV + (st & 1) * 32 * RS + ct * 32
            a("ds_read_b64_tr_b16 %s, %s offset:%d" % (vr(buf + 4 * q, 2), v(base), off))
            a("ds_read_b64_tr_b16 %s, %s offset:%d" % (vr(buf + 4 * q + 2, 2), v(base), off + 16 * RS))

    def compute(k):
        st, ch = groups[k]
        buf = 16 + 16 * (k % 4)
        for q in range(4):
            ct = 4 * ch + q
            a("v_mfma_f32_16x16x32_bf16 %s, %s, %s, %s" % (vr(ACC + 4 * ct, 4), vr(buf + 4 * q, 4), vr(PF + 4 * st, 4),
                                                          "0" if st == 0 else vr(ACC + 4 * ct, 4)))
    issue(0)
    for k in range(8):
        if k + 1 < 8:
            issue(k + 1)
            a("s_waitcnt lgkmcnt(8)")
        else:
            a("s_waitcnt lgkmcnt(0)")
        compute(k)
    a("s_lshl_b32 s12, s9, 15")
    a("s_lshl_b32 s13, s8, 10")
    a("s_add_u32 s12, s12, s13")
    a("s_lshl_b32 s13, s3, 8")
    a("s_add_u32 s12, s12, s13")
    a("s_add_u32 s12, s12, 0x%x" % PART)
    a("v_lshlrev_b32 v13, 15, v2")
    a("v_lshlrev_b32 v14, 3, v3")
    a("v_add3_u32 v13, v13, v14, s12")
    a.nop(4)
    for ct in range(8):
        a("v_cvt_pk_bf16_f32 %s, %s, %s" % (v(16 + 2 * ct), v(ACC + 4 * ct), v(ACC + 4 * ct + 1)))
        a("v_cvt_pk_bf16_f32 %s, %s, %s" % (v(16 + 2 * ct + 1), v(ACC + 4 * ct + 2), v(ACC + 4 * ct + 3)))
    for ct in range(8):
        a("buffer_store_dwordx2 %s, v13, s[%d:%d], 0 offen offset:%d" % (vr(16 + 2 * ct, 2), SO, SO + 3, 32 * ct))
    a("s_cmp_lg_u32 s3, 0")
    a("s_cbranch_scc1 k2_end")
    for w in range(4):
        a("ds_read_b32 %s, v10 offset:%d" % (v(40 + w), LS + 64 * w))
    a("s_lshl_b32 s12, s9, 8")
    a("s_lshl_b32 s13, s8, 3")
    a("s_add_u32 s12, s12, s13")
    a("s_add_u32 s12, s12, 0x%x" % STATS)
    a("v_lshlrev_b32 v13, 8, v2")
    a("v_add_u32 v13, s12, v13")
    a("s_waitcnt lgkmcnt(0)")
    a("v_add_f32 v40, v40, v41")
    a("v_add_f32 v42, v42, v43")
    a("v_add_f32 v9, v40, v42")
    exec_lo16(a)
    a("buffer_store_dwordx2 v[8:9], v13, s[%d:%d], 0 offen" % (SO, SO + 3))
    a.label("k2_end")
    a("s_endpgm")
    return name, 208, 128 * RS + 4096 + 512


def gen_k3(a):
    name = "k3_kernel"
    kernel_begin(a, name)
    LAT = 0
    RED = 1280
    CTX = RED + 16384
    HA = CTX + 1280
    prologue(a, 312, "k3_end")
    SO, SV, SW = 44, 48, 52
    srd(a, SO, P_WS, WS_USED)
    a("s_cmp_ge_u32 s2, 256")
    a("s_cbranch_scc1 k3_ffn")
    a("s_and_b32 s4, s2, 7")
    a("s_lshr_b32 s5, s2, 3")
    a("s_lshr_b32 s6, s5, 3")
    a("s_lshl_b32 s4, s4, 2")
    a("s_add_u32 s6, s6, s4")
    a("s_lshr_b32 s7, s5, 1")
    a("s_and_b32 s7, s7, 3")
    a("s_and_b32 s8, s5, 1")
    srd(a, SV, P_WUV, 4194304)
    srd(a, SW, P_WO, 4194304)
    a("s_mov_b32 s13, 4096")
    ST = 16
    a("s_lshl_b32 s9, s3, 5")
    a("s_add_u32 s9, s9, s6")
    a("s_lshl_b32 s10, s9, 8")
    a("s_add_u32 s10, s10, 0x%x" % STATS)
    a("v_lshlrev_b32 v4, 6, v3")
    a("v_add_u32 v4, s10, v4")
    for i in range(4):
        a("buffer_load_dwordx4 %s, v4, s[%d:%d], 0 offen offset:%d" % (vr(ST + 4 * i, 4), SO, SO + 3, 16 * i))
    LP = 32
    a("s_lshl_b32 s10, s9, 15")
    a("s_lshl_b32 s11, s7, 8")
    a("s_add_u32 s10, s10, s11")
    a("s_add_u32 s10, s10, 0x%x" % PART)
    a("v_lshlrev_b32 v4, 13, v3")
    a("v_lshlrev_b32 v5, 4, v2")
    a("v_add3_u32 v4, v4, v5, s10")
    for i in range(8):
        a("buffer_load_dwordx4 %s, v4, s[%d:%d], %s offen offset:%d" % (vr(LP + 4 * i, 4), SO, SO + 3,
                                                                       "0" if i < 4 else "s13", (i & 3) * 1024))
    LV = 64
    a("s_lshl_b32 s10, s7, 20")
    a("s_lshl_b32 s11, s3, 18")
    a("s_add_u32 s10, s10, s11")
    a("s_lshl_b32 s11, s6, 8")
    a("s_add_u32 s10, s10, s11")
    a("v_lshlrev_b32 v4, 16, v3")
    a("v_add3_u32 v4, v4, v5, s10")
    for i in range(8):
        a("s_mov_b32 s12, 0x%x" % (i * 8192))
        a("buffer_load_dwordx4 %s, v4, s[%d:%d], s12 offen" % (vr(LV + 4 * i, 4), SV, SV + 3))
    LO = 96
    a("s_lshl_b32 s10, s6, 17")
    a("s_lshl_b32 s11, s3, 15")
    a("s_add_u32 s10, s10, s11")
    a("s_lshl_b32 s11, s8, 9")
    a("s_add_u32 s10, s10, s11")
    a("v_lshlrev_b32 v4, 13, v3")
    a("v_add3_u32 v4, v4, v5, s10")
    for cb in range(2):
        for i in range(8):
            a("buffer_load_dwordx4 %s, v4, s[%d:%d], %s offen offset:%d" % (
                vr(LO + 32 * cb + 4 * i, 4), SW, SW + 3, "0" if i < 4 else "s13", (i & 3) * 1024 + cb * 256))
    a("s_waitcnt vmcnt(32)")
    a("v_max3_f32 v6, v16, v18, v20")
    a("v_max3_f32 v6, v6, v22, v24")
    a("v_max3_f32 v6, v6, v26, v28")
    a("v_max_f32 v6, v6, v30")
    red_g(a, "v_max_f32", 6, 7)
    for i in range(8):
        a("v_sub_f32 %s, %s, v6" % (v(ST + 2 * i), v(ST + 2 * i)))
    for i in range(8):
        a("v_exp_f32 %s, %s" % (v(ST + 2 * i), v(ST + 2 * i)))
    a.nop(1)
    a("v_mul_f32 v7, v16, v17")
    for i in range(1, 8):
        a("v_fma_f32 v7, %s, %s, v7" % (v(ST + 2 * i), v(ST + 2 * i + 1)))
    red_g(a, "v_add_f32", 7, 8)
    a("v_rcp_f32 v7, v7")
    a.nop(1)
    for i in range(8):
        a("v_mul_f32 %s, %s, v7" % (v(ST + 2 * i), v(ST + 2 * i)))
    AW = 8
    for p in range(4):
        a("v_cvt_pk_bf16_f32 %s, %s, %s" % (v(AW + p), v(ST + 4 * p), v(ST + 4 * p + 2)))
    ACC = 192
    FX = 160
    a("s_waitcnt vmcnt(24)")
    unit8(a, LP, FX, AW, ACC, True)
    a.nop(8)
    for p in range(4):
        a("v_cvt_pk_bf16_f32 %s, %s, %s" % (v(16 + p), v(ACC + 8 * p), v(ACC + 8 * p + 4)))
    a("s_mul_i32 s10, s3, 320")
    a("v_add_u32 v4, s10, v5")
    exec_lo16(a)
    a("ds_write_b128 v4, v[16:19] offset:%d" % LAT)
    exec_all(a)
    a("s_waitcnt lgkmcnt(0)")
    a("s_barrier")
    a("v_and_b32 v6, 3, v1")
    a("v_mul_u32_u24 v6, 320, v6")
    a("v_lshl_add_u32 v6, v3, 4, v6")
    a("s_lshl_b32 s10, s3, 6")
    a("v_add_u32 v6, s10, v6")
    a("ds_read_b128 v[8:11], v6 offset:%d" % LAT)
    a("s_waitcnt vmcnt(16) lgkmcnt(0)")
    unit8(a, LV, FX, 8, ACC, True)
    a.nop(8)
    a("s_lshl_b32 s10, s3, 12")
    a("v_add_u32 v4, s10, v5")
    exec_lo16(a)
    for t in range(8):
        a("ds_write_b128 v4, %s offset:%d" % (vr(ACC + 4 * t, 4), RED + 256 * t))
    exec_all(a)
    a("s_waitcnt lgkmcnt(0)")
    a("s_barrier")
    a("s_cmp_ge_u32 s3, 2")
    a("s_cbranch_scc1 k3_sumdone")
    a("v_lshlrev_b32 v7, 4, v0")
    for w in range(4):
        a("ds_read_b128 %s, v7 offset:%d" % (vr(16 + 4 * w, 4), RED + 4096 * w))
    a("v_lshrrev_b32 v12, 4, v0")
    a("v_lshlrev_b32 v13, 4, v2")
    a("v_lshl_add_u32 v12, v12, 1, v13")
    a("s_waitcnt lgkmcnt(0)")
    for b in range(4):
        a("v_add_f32 %s, %s, %s" % (v(16 + b), v(16 + b), v(20 + b)))
        a("v_add_f32 %s, %s, %s" % (v(24 + b), v(24 + b), v(28 + b)))
    for b in range(4):
        a("v_add_f32 %s, %s, %s" % (v(16 + b), v(16 + b), v(24 + b)))
    a("v_cvt_pk_bf16_f32 v20, v16, v17")
    a("v_cvt_pk_bf16_f32 v21, v18, v19")
    a("ds_write_b16 v12, v20 offset:%d" % (CTX))
    a("ds_write_b16_d16_hi v12, v20 offset:%d" % (CTX + 320))
    a("ds_write_b16 v12, v21 offset:%d" % (CTX + 640))
    a("ds_write_b16_d16_hi v12, v21 offset:%d" % (CTX + 960))
    a("s_waitcnt lgkmcnt(0)")
    a.label("k3_sumdone")
    a("s_barrier")
    a("ds_read_b128 v[8:11], v6 offset:%d" % CTX)
    a("s_waitcnt vmcnt(8) lgkmcnt(0)")
    unit8(a, LO, FX, 8, ACC, True)
    a("s_waitcnt vmcnt(0)")
    unit8(a, LO + 32, LO, 8, ACC + 32, True)
    a.nop(8)
    exec_lo16(a)
    for cb in range(2):
        for t in range(8):
            a("ds_write_b128 v4, %s offset:%d" % (vr(ACC + 32 * cb + 4 * t, 4), RED + 2048 * cb + 256 * t))
    exec_all(a)
    a("s_waitcnt lgkmcnt(0)")
    a("s_barrier")
    a("v_lshlrev_b32 v7, 4, v0")
    for w in range(4):
        a("ds_read_b128 %s, v7 offset:%d" % (vr(16 + 4 * w, 4), RED + 4096 * w))
    a("s_lshl_b32 s10, s6, 2")
    a("s_add_u32 s10, s10, s7")
    a("s_lshl_b32 s10, s10, 13")
    a("s_lshl_b32 s11, s8, 12")
    a("s_add_u32 s10, s10, s11")
    a("s_add_u32 s10, s10, 0x%x" % SPART)
    a("v_add_u32 v12, s10, v7")
    a("s_waitcnt lgkmcnt(0)")
    for b in range(4):
        a("v_add_f32 %s, %s, %s" % (v(16 + b), v(16 + b), v(20 + b)))
        a("v_add_f32 %s, %s, %s" % (v(24 + b), v(24 + b), v(28 + b)))
    for b in range(4):
        a("v_add_f32 %s, %s, %s" % (v(16 + b), v(16 + b), v(24 + b)))
    a("buffer_store_dwordx4 v[16:19], v12, s[%d:%d], 0 offen" % (SO, SO + 3))
    a("s_endpgm")
    a.label("k3_ffn")
    a("s_sub_u32 s4, s2, 256")
    srd(a, SW, P_WD, 1792 * 1024)
    a("s_mov_b32 s13, 4096")
    GL = 16
    a("v_and_b32 v4, 31, v1")
    a("v_lshrrev_b32 v5, 5, v1")
    a("v_mul_u32_u24 v5, %d, v5" % (8 * 1792))
    a("s_lshl_b32 s10, s4, 5")
    a("v_add3_u32 v5, v5, v4, s10")
    a("v_lshlrev_b32 v5, 4, v5")
    a("v_add_u32 v5, 0x%x, v5" % GU)
    for kk in range(4):
        for mat in range(2):
            a("s_mov_b32 s12, 0x%x" % ((kk * 2 + mat) * 1792 * 16))
            a("buffer_load_dwordx4 %s, v5, s[%d:%d], s12 offen" % (vr(GL + 8 * kk + 4 * mat, 4), SO, SO + 3))
    LD = 64
    a("s_lshl_b32 s10, s4, 15")
    a("s_lshl_b32 s11, s3, 8")
    a("s_add_u32 s10, s10, s11")
    a("v_lshlrev_b32 v6, 13, v3")
    a("v_lshlrev_b32 v7, 4, v2")
    a("v_add3_u32 v6, v6, v7, s10")
    for i in range(8):
        a("buffer_load_dwordx4 %s, v6, s[%d:%d], %s offen offset:%d" % (vr(LD + 4 * i, 4), SW, SW + 3,
                                                                       "0" if i < 4 else "s13", (i & 3) * 1024))
    a("s_waitcnt vmcnt(8)")
    for q in range(8):
        a("v_add_f32 %s, %s, %s" % (v(GL + q), v(GL + q), v(GL + 8 + q)))
        a("v_add_f32 %s, %s, %s" % (v(GL + 16 + q), v(GL + 16 + q), v(GL + 24 + q)))
    for q in range(8):
        a("v_add_f32 %s, %s, %s" % (v(GL + q), v(GL + q), v(GL + 16 + q)))
    for q in range(8):
        a("v_mov_b32 %s, %s" % (v(GL + 8 + q), v(GL + q)))
    a.nop(2)
    for q in range(8):
        a("v_permlane32_swap_b32 %s, %s" % (v(GL + q), v(GL + 8 + q)))
    a.nop(1)
    for q in range(8):
        a("v_add_f32 %s, %s, %s" % (v(GL + q), v(GL + q), v(GL + 8 + q)))
    for p in range(4):
        a("v_cvt_pk_bf16_f32 %s, %s, %s" % (v(24 + p), v(GL + 2 * p), v(GL + 2 * p + 1)))
    for p in range(4):
        a("v_lshlrev_b32 %s, 16, %s" % (v(GL + 2 * p), v(24 + p)))
        a("v_and_b32 %s, 0xffff0000, %s" % (v(GL + 2 * p + 1), v(24 + p)))
    for b in range(4):
        silu_inplace(a, GL + b, 28 + b)
    a("v_cvt_pk_bf16_f32 v24, v16, v17")
    a("v_cvt_pk_bf16_f32 v25, v18, v19")
    a("v_lshlrev_b32 v16, 16, v24")
    a("v_and_b32 v17, 0xffff0000, v24")
    a("v_lshlrev_b32 v18, 16, v25")
    a("v_and_b32 v19, 0xffff0000, v25")
    for b in range(4):
        a("v_mul_f32 %s, %s, %s" % (v(16 + b), v(16 + b), v(20 + b)))
    a("v_cvt_pk_bf16_f32 v24, v16, v17")
    a("v_cvt_pk_bf16_f32 v25, v18, v19")
    a("s_mul_i32 s10, s3, 320")
    a("v_lshlrev_b32 v8, 1, v4")
    a("v_add_u32 v8, s10, v8")
    a("ds_write_b16 v8, v24 offset:%d" % (HA))
    a("ds_write_b16_d16_hi v8, v24 offset:%d" % (HA + 80))
    a("ds_write_b16 v8, v25 offset:%d" % (HA + 160))
    a("ds_write_b16_d16_hi v8, v25 offset:%d" % (HA + 240))
    a("v_and_b32 v9, 3, v1")
    a("v_mul_u32_u24 v9, 80, v9")
    a("v_lshl_add_u32 v9, v3, 4, v9")
    a("v_add_u32 v9, s10, v9")
    a("s_waitcnt lgkmcnt(0)")
    a("ds_read_b128 v[8:11], v9 offset:%d" % HA)
    a("s_waitcnt vmcnt(0) lgkmcnt(0)")
    unit8(a, LD, 96, 8, 128, True)
    a("s_lshl_b32 s10, s4, 13")
    a("s_lshl_b32 s11, s3, 11")
    a("s_add_u32 s10, s10, s11")
    a("s_add_u32 s10, s10, 0x%x" % YPART)
    a("v_add_u32 v4, s10, v7")
    a.nop(8)
    exec_lo16(a)
    for t in range(8):
        a("buffer_store_dwordx4 %s, v4, s[%d:%d], 0 offen offset:%d" % (vr(128 + 4 * t, 4), SO, SO + 3, 256 * t))
    a.label("k3_end")
    a("s_endpgm")
    return name, 256, HA + 1280


def gen_k4(a):
    name = "k4_kernel"
    kernel_begin(a, name)
    prologue(a, 64, "k4_end")
    SS, SY, SX, SOUT = 44, 48, 52, 56
    srd(a, SS, P_WS, 128 * 8192, off=SPART)
    srd(a, SY, P_WS, 56 * 8192, off=YPART)
    srd(a, SX, P_X, 4096)
    srd(a, SOUT, P_OUT, 4096)
    a("s_mov_b32 s13, 8192")
    a("s_mov_b32 s12, 16384")
    a("s_mov_b32 s11, 24576")
    a("v_and_b32 v4, 7, v0")
    a("v_lshrrev_b32 v5, 3, v0")
    a("s_lshl_b32 s10, s2, 7")
    a("v_lshlrev_b32 v6, 4, v4")
    a("v_add_u32 v6, s10, v6")
    a("v_lshlrev_b32 v7, 15, v5")
    a("v_add_u32 v7, v7, v6")
    a("buffer_load_dwordx4 v[16:19], v7, s[%d:%d], 0 offen" % (SS, SS + 3))
    a("buffer_load_dwordx4 v[20:23], v7, s[%d:%d], s13 offen" % (SS, SS + 3))
    a("buffer_load_dwordx4 v[24:27], v7, s[%d:%d], s12 offen" % (SS, SS + 3))
    a("buffer_load_dwordx4 v[28:31], v7, s[%d:%d], s11 offen" % (SS, SS + 3))
    a("v_lshlrev_b32 v7, 14, v5")
    a("v_add_u32 v7, v7, v6")
    a("buffer_load_dwordx4 v[32:35], v7, s[%d:%d], 0 offen" % (SY, SY + 3))
    a("buffer_load_dwordx4 v[36:39], v7, s[%d:%d], s13 offen" % (SY, SY + 3))
    a("v_lshrrev_b32 v8, 2, v0")
    a("s_lshl_b32 s10, s2, 3")
    a("v_add_u32 v8, s10, v8")
    a("v_and_b32 v9, 15, v8")
    a("v_lshrrev_b32 v10, 4, v8")
    a("v_and_b32 v10, 7, v10")
    a("v_lshrrev_b32 v11, 7, v8")
    a("v_lshlrev_b32 v11, 7, v11")
    a("v_lshl_add_u32 v11, v9, 3, v11")
    a("v_add_u32 v11, v11, v10")
    a("v_and_b32 v12, 3, v0")
    a("v_lshl_add_u32 v11, v12, 9, v11")
    a("v_lshlrev_b32 v11, 1, v11")
    a("buffer_load_ushort v13, v11, s[%d:%d], 0 offen" % (SX, SX + 3))
    a("s_waitcnt vmcnt(1)")
    for q in range(4):
        a("v_add_f32 %s, %s, %s" % (v(16 + q), v(16 + q), v(20 + q)))
        a("v_add_f32 %s, %s, %s" % (v(24 + q), v(24 + q), v(28 + q)))
        a("v_add_f32 %s, %s, %s" % (v(20 + q), v(32 + q), v(36 + q)))
    for q in range(4):
        a("v_add_f32 %s, %s, %s" % (v(16 + q), v(16 + q), v(24 + q)))
    a.nop(2)
    for q in range(8):
        a("v_add_f32_dpp %s, %s, %s row_ror:8 row_mask:0xf bank_mask:0xf" % (v(24 + q), v(16 + q), v(16 + q)))
    for q in range(8):
        a("v_mov_b32 %s, %s" % (v(16 + q), v(24 + q)))
    a.nop(2)
    for q in range(8):
        a("v_permlane16_swap_b32 %s, %s" % (v(16 + q), v(24 + q)))
    a.nop(1)
    for q in range(8):
        a("v_add_f32 %s, %s, %s" % (v(16 + q), v(16 + q), v(24 + q)))
    for q in range(8):
        a("v_mov_b32 %s, %s" % (v(24 + q), v(16 + q)))
    a.nop(2)
    for q in range(8):
        a("v_permlane32_swap_b32 %s, %s" % (v(16 + q), v(24 + q)))
    a.nop(1)
    for q in range(8):
        a("v_add_f32 %s, %s, %s" % (v(16 + q), v(16 + q), v(24 + q)))
    a("s_lshl_b32 s10, s3, 8")
    a("v_lshlrev_b32 v14, 5, v4")
    a("v_add_u32 v14, s10, v14")
    a("s_mov_b64 exec, 0xff")
    a("ds_write_b128 v14, v[16:19]")
    a("ds_write_b128 v14, v[20:23] offset:16")
    exec_all(a)
    a("s_waitcnt lgkmcnt(0)")
    a("s_barrier")
    a("s_cmp_lg_u32 s3, 0")
    a("s_cbranch_scc1 k4_end")
    a("s_mov_b32 exec_lo, -1")
    a("s_mov_b32 exec_hi, 0")
    a("v_lshrrev_b32 v14, 2, v0")
    a("v_lshlrev_b32 v14, 5, v14")
    a("v_lshl_add_u32 v14, v12, 2, v14")
    for w in range(4):
        a("ds_read_b32 %s, v14 offset:%d" % (v(16 + w), 256 * w))
        a("ds_read_b32 %s, v14 offset:%d" % (v(20 + w), 256 * w + 16))
    a("s_waitcnt vmcnt(0) lgkmcnt(0)")
    a("v_add_f32 v16, v16, v17")
    a("v_add_f32 v18, v18, v19")
    a("v_add_f32 v20, v20, v21")
    a("v_add_f32 v22, v22, v23")
    a("v_add_f32 v16, v16, v18")
    a("v_add_f32 v20, v20, v22")
    a("v_cvt_pk_bf16_f32 v24, v16, v20")
    a("v_lshlrev_b32 v16, 16, v24")
    a("v_and_b32 v20, 0xffff0000, v24")
    silu_inplace(a, 20, 25)
    a("v_cvt_pk_bf16_f32 v24, v20, v20")
    a("v_lshlrev_b32 v20, 16, v24")
    a("v_mul_f32 v16, v16, v20")
    a("v_cvt_pk_bf16_f32 v24, v16, v16")
    a("v_lshlrev_b32 v16, 16, v24")
    a("v_lshlrev_b32 v13, 16, v13")
    a("v_add_f32 v16, v16, v13")
    a("v_cvt_pk_bf16_f32 v24, v16, v16")
    a("buffer_store_short v24, v11, s[%d:%d], 0 offen" % (SOUT, SOUT + 3))
    a.label("k4_end")
    a("s_endpgm")
    return name, 40, 1024


def main():
    hdr = []
    a = Asm()
    a.raw('.amdgcn_target "amdgcn-amd-amdhsa--gfx950"')
    a.raw(".text")
    n1, v1 = gen_k1(a)
    n2, v2, l2 = gen_k2(a)
    n3, v3, l3 = gen_k3(a)
    n4, v4, l4 = gen_k4(a)
    a.raw('.section .rodata,"a"')
    for n, nv in ((n1, v1), (n2, v2), (n3, v3), (n4, v4)):
        a.raw(".p2align 6")
        kernel_desc(a, n, nv)
    hdr.append("; @launch kernel=%s grid=(368,1,1) block=(256,1,1) lds=14336" % n1)
    hdr.append("; @launch kernel=%s grid=(256,1,1) block=(256,1,1) lds=%d" % (n2, l2))
    hdr.append("; @launch kernel=%s grid=(312,1,1) block=(256,1,1) lds=%d" % (n3, l3))
    hdr.append("; @launch kernel=%s grid=(64,1,1) block=(256,1,1) lds=%d" % (n4, l4))
    out = "\n".join(hdr + a.L) + "\n"
    path = sys.argv[1] if len(sys.argv) > 1 else "cdna_kernels/%s.s" % NAME
    open(path, "w").write(out)


if __name__ == "__main__":
    main()
```

```python
import sys, os
sys.path.insert(0, "code")
from gen import (v, vr, s, sr, Asm, kernel_begin, kernel_desc, prologue, srd, red_g, red_16, red_64, layernorm,
                 unit8, unit4, exec_lo16, exec_all, LOG2E, f32hex, silu_inplace,
                 P_X, P_CKV, P_WQ, P_WUK, P_WUV, P_WO, P_WG, P_WU, P_WD, P_OUT, P_DBG, P_WS, S_SELLO, S_SELHI, NAME)

DEBUG = int(os.environ.get("STAMPS", "0"))
XDELAY = int(os.environ.get("XDELAY", "0"))

QABS = 0x000000
GU = 0x040000
STATS = 0x0C0000
PART = 0x100000
SPART = 0x900000
YPART = 0xB00000
CNT = 0xC00000
STAMP = 0xD00000
WS_USED = 0xD80000
NSH = int(os.environ.get("NSH", "8"))
NREP = int(os.environ.get("NREP", "16"))
assert NSH * NREP == 128
SLOT_A, SLOT_C, SLOT_D, SLOT_G = 0, 4, 8, 12
NZERO = 8
PSLEEP = int(os.environ.get("PSLEEP", "1"))

RS = 1056
EV = 0
XN = 256
RED = XN + 4352
QL = RED + 8192
CKV = QL + 4 * 1280
SP = CKV + 64 * RS
LAT = SP + 32768
CT = LAT + 640
FIN = CT + 4096
HA = FIN + 1024
LDS_SIZE = HA + 320
E_XN, E_Q, E_QA, E_A, E_KV, E_S, E_P, E_C, E_L, E_X, E_SP, E_D, E_F, E_QL = range(14)
NTSET = set(os.environ.get('NTSET', 'ckv').split(','))
NT = 'ckv' in NTSET


def nt(name):
    return ' nt' if name in NTSET else ''


K3LATE = os.environ.get('K3LATE', '1') == '1'

SX, SW, SU, SO, SD, SC = 44, 48, 52, 56, 60, 64
VZ, VONE = 4, 5
SPIN_LDS = 200000
SPIN_G = 40000

_uid = [0]


def uid(p):
    _uid[0] += 1
    return "%s_%d" % (p, _uid[0])


class Stamps:
    def __init__(self, a):
        self.a = a
        self.n = 0

    def __call__(self):
        if DEBUG:
            self.a("s_memrealtime s[%d:%d]" % (70 + 2 * self.n, 71 + 2 * self.n))
            self.n += 1

    def flush(self, vt):
        if not DEBUG:
            return
        a = self.a
        a("s_waitcnt lgkmcnt(0)")
        a("s_lshl_b32 s4, s2, 3")
        a("s_add_u32 s4, s4, s3")
        a("s_lshl_b32 s4, s4, 7")
        a("s_add_u32 s4, s4, 0x%x" % STAMP)
        a("v_mov_b32 %s, s4" % v(vt))
        a("s_mov_b64 exec, 1")
        for i in range(self.n):
            a("v_mov_b32 %s, s%d" % (v(vt + 1), 70 + 2 * i))
            a("v_mov_b32 %s, s%d" % (v(vt + 2), 71 + 2 * i))
            a("buffer_store_dwordx2 %s, %s, s[%d:%d], 0 offen offset:%d" % (vr(vt + 1, 2), v(vt), SO, SO + 3, 8 * i))
            a("s_nop 1")
        a("s_mov_b64 exec, -1")


def ev_arrive(a, e):
    a("s_waitcnt lgkmcnt(0)")
    a("ds_add_u32 %s, %s offset:%d" % (v(VZ), v(VONE), EV + 4 * e))


def ev_wait(a, e, n, vt):
    L = uid("evw")
    a("s_mov_b32 s5, 0")
    a.label(L)
    a("ds_read_b32 %s, %s offset:%d" % (v(vt), v(VZ), EV + 4 * e))
    a("s_add_u32 s5, s5, 1")
    a("s_waitcnt lgkmcnt(0)")
    a("v_readfirstlane_b32 s4, %s" % v(vt))
    a("s_cmp_ge_u32 s4, %d" % (64 * n))
    a("s_cbranch_scc1 %s_d" % L)
    a("s_cmp_lt_u32 s5, %d" % SPIN_LDS)
    a("s_cbranch_scc1 %s" % L)
    a.label(L + "_d")


def ev_last(a, e, n, vt, notlast):
    a("s_waitcnt lgkmcnt(0)")
    a("ds_add_rtn_u32 %s, %s, %s offset:%d" % (v(vt), v(VZ), v(VONE), EV + 4 * e))
    a("s_waitcnt lgkmcnt(0)")
    a("v_readfirstlane_b32 s4, %s" % v(vt))
    a("s_cmp_lg_u32 s4, %d" % (64 * (n - 1)))
    a("s_cbranch_scc1 %s" % notlast)


def gsignal(a, slot_sgpr, vt, boff):
    a("s_lshl_b32 s4, s%d, 11" % slot_sgpr)
    a("s_add_u32 s4, s4, 0x%x" % (CNT + boff))
    a("v_mov_b32 %s, s4" % v(vt))
    a("s_mov_b64 exec, 1")
    a("buffer_atomic_add %s, %s, s[%d:%d], 0 offen sc1" % (v(VONE), v(vt), SO, SO + 3))
    a("s_mov_b64 exec, -1")


def gpoll(a, expect, vaddr, vt, sleep=2):
    L = uid("gp")
    a("s_mov_b32 s5, 0")
    a.label(L)
    a("buffer_load_dword %s, %s, s[%d:%d], 0 offen sc1" % (v(vt), v(vaddr), SO, SO + 3))
    a("s_add_u32 s5, s5, 1")
    a("s_waitcnt vmcnt(0)")
    a("v_cmp_gt_u32 vcc, %d, %s" % (expect, v(vt)))
    a("s_cmp_eq_u64 vcc, 0")
    a("s_cbranch_scc1 %s_d" % L)
    a("s_sleep %d" % sleep)
    a("s_cmp_lt_u32 s5, %d" % SPIN_G)
    a("s_cbranch_scc1 %s" % L)
    a.label(L + "_d")


def cnt_addr16(a, slot0, vaddr):
    a("v_lshlrev_b32 %s, 11, v2" % v(vaddr))
    a("v_add_u32 %s, 0x%x, %s" % (v(vaddr), CNT + slot0 * 2048, v(vaddr)))


def gsignal_rep(a, slot0, vt):
    a("s_and_b32 s4, s2, %d" % (NSH - 1))
    a("s_lshl_b32 s4, s4, 11")
    a("s_add_u32 s4, s4, 0x%x" % (CNT + slot0))
    a("v_mul_u32_u24 %s, %d, v1" % (v(vt), NSH * 2048))
    a("v_add_u32 %s, s4, %s" % (v(vt), v(vt)))
    a("s_mov_b64 exec, 0x%x" % ((1 << NREP) - 1))
    a("buffer_atomic_add %s, %s, s[%d:%d], 0 offen sc1" % (v(VONE), v(vt), SO, SO + 3))
    a("s_mov_b64 exec, -1")


def gpoll_rep(a, slot0, expect, vaddr, vt):
    a("s_lshr_b32 s4, s2, %d" % (NSH.bit_length() - 1))
    a("s_and_b32 s4, s4, %d" % (NREP - 1))
    a("s_mul_i32 s4, s4, %d" % NSH)
    a("s_lshl_b32 s4, s4, 11")
    a("s_add_u32 s4, s4, 0x%x" % (CNT + slot0))
    a("v_and_b32 %s, %d, v1" % (v(vaddr), NSH - 1))
    a("v_lshlrev_b32 %s, 11, %s" % (v(vaddr), v(vaddr)))
    a("v_add_u32 %s, s4, %s" % (v(vaddr), v(vaddr)))
    gpoll(a, expect, vaddr, vt, PSLEEP)


def go_issue(a, vt):
    a("buffer_load_dword %s, %s, s[%d:%d], 0 offen sc1" % (v(vt), v(VZ), SD, SD + 3))


def go_check(a, vt):
    L = uid("go")
    a("s_mov_b32 s5, 0")
    a.label(L)
    a("v_readfirstlane_b32 s4, %s" % v(vt))
    a("s_cmp_ge_u32 s4, %d" % NZERO)
    a("s_cbranch_scc1 %s_d" % L)
    a("s_add_u32 s5, s5, 1")
    a("s_cmp_lt_u32 s5, %d" % SPIN_G)
    a("s_cbranch_scc0 %s_d" % L)
    a("s_sleep 2")
    go_issue(a, vt)
    a("s_waitcnt vmcnt(0)")
    a("s_branch %s" % L)
    a.label(L + "_d")


def gen_cwave(a):
    st = Stamps(a)
    st()
    srd(a, SX, P_X, 4096)
    a("s_lshl_b32 s4, s3, 10")
    a("v_lshlrev_b32 v6, 4, v1")
    a("v_add_u32 v7, s4, v6")
    a("buffer_load_dwordx4 v[8:11], v7, s[%d:%d], 0 offen" % (SX, SX + 3))
    a("s_mul_i32 s4, s3, 1088")
    a("v_add_u32 v6, s4, v6")
    a("v_add_u32 v6, %d, v6" % XN)
    srd(a, SW, P_WQ, 4194304)
    srd(a, SU, P_WUK, 4194304)
    a("s_lshl_b32 s8, s3, 20")
    a("s_lshl_b32 s9, s6, 8")
    a("s_add_u32 s8, s8, s9")
    a("v_lshlrev_b32 v7, 16, v3")
    a("v_lshlrev_b32 v12, 4, v2")
    a("v_add3_u32 v7, v7, v12, s8")
    LQ = 16
    for u in range(4):
        for i in range(8):
            a("s_mov_b32 s10, 0x%x" % ((32 * u + i) * 8192))
            a("buffer_load_dwordx4 %s, v7, s[%d:%d], s10 offen%s" % (vr(LQ + 32 * u + 4 * i, 4), SW, SW + 3, nt('wq')))
    LU = 144
    a("s_lshl_b32 s8, s7, 6")
    a("s_lshl_b32 s10, s3, 4")
    a("s_add_u32 s8, s8, s10")
    a("v_add_u32 v12, s8, v2")
    a("v_lshlrev_b32 v12, 13, v12")
    a("v_lshlrev_b32 v13, 4, v3")
    a("v_add3_u32 v12, v12, v13, s9")
    for k in range(4):
        a("buffer_load_dwordx4 %s, v12, s[%d:%d], 0 offen offset:%d%s" % (vr(LU + 4 * k, 4), SU, SU + 3, 64 * k, nt('wuk')))
    a("s_waitcnt vmcnt(36)")
    st()
    layernorm(a, 8, 208, 6)
    ev_arrive(a, E_XN)
    ev_wait(a, E_XN, 4, 12)
    st()
    AF = 160
    a("v_and_b32 v13, 3, v1")
    a("v_mul_u32_u24 v13, 1088, v13")
    a("v_lshlrev_b32 v14, 4, v3")
    a("s_lshl_b32 s10, s3, 8")
    a("v_add3_u32 v13, v13, v14, s10")
    for u in range(4):
        a("ds_read_b128 %s, v13 offset:%d" % (vr(AF + 4 * u, 4), XN + 64 * u))
    ACC = 176
    FX = 208
    a("s_waitcnt lgkmcnt(0)")
    for u in range(4):
        a("s_waitcnt vmcnt(%d)" % ((3 - u) * 8 + 4))
        unit8(a, LQ + 32 * u, FX if u == 0 else LQ + 32 * (u - 1), AF + 4 * u, ACC, u == 0)
    a.nop(8)
    a("s_lshl_b32 s10, s3, 11")
    a("v_lshlrev_b32 v13, 4, v2")
    a("v_add_u32 v13, s10, v13")
    exec_lo16(a)
    for t in range(8):
        a("ds_write_b128 v13, %s offset:%d" % (vr(ACC + 4 * t, 4), RED + 256 * t))
    exec_all(a)
    ev_arrive(a, E_Q)
    ev_wait(a, E_Q, 4, 12)
    st()
    a("v_lshlrev_b32 v13, 4, v1")
    for k in range(2):
        for w in range(4):
            a("ds_read_b128 %s, v13 offset:%d" % (vr(16 + 16 * k + 4 * w, 4), RED + 2048 * w + 1024 * k))
    a("s_mul_i32 s10, s3, 1280")
    a("v_lshlrev_b32 v15, 4, v2")
    a("v_lshl_add_u32 v14, v3, 1, v15")
    a("v_add_u32 v14, s10, v14")
    a("s_waitcnt lgkmcnt(0)")
    for k in range(2):
        B = 16 + 16 * k
        for b in range(4):
            a("v_add_f32 %s, %s, %s" % (v(B + b), v(B + b), v(B + 4 + b)))
            a("v_add_f32 %s, %s, %s" % (v(B + 8 + b), v(B + 8 + b), v(B + 12 + b)))
        for b in range(4):
            a("v_add_f32 %s, %s, %s" % (v(B + b), v(B + b), v(B + 8 + b)))
        a("v_cvt_pk_bf16_f32 %s, %s, %s" % (v(B + 4), v(B), v(B + 1)))
        a("v_cvt_pk_bf16_f32 %s, %s, %s" % (v(B + 5), v(B + 2), v(B + 3)))
        a("ds_write_b16 v14, %s offset:%d" % (v(B + 4), QL + 8 * k))
        a("ds_write_b16_d16_hi v14, %s offset:%d" % (v(B + 4), QL + 320 + 8 * k))
        a("ds_write_b16 v14, %s offset:%d" % (v(B + 5), QL + 640 + 8 * k))
        a("ds_write_b16_d16_hi v14, %s offset:%d" % (v(B + 5), QL + 960 + 8 * k))
    a("v_and_b32 v13, 3, v1")
    a("v_mul_u32_u24 v13, 320, v13")
    a("v_lshl_add_u32 v13, v3, 4, v13")
    a("v_add_u32 v13, s10, v13")
    a("s_waitcnt lgkmcnt(0)")
    for k in range(4):
        a("ds_read_b128 %s, v13 offset:%d" % (vr(48 + 4 * k, 4), QL + 64 * k))
    a("s_waitcnt vmcnt(0) lgkmcnt(0)")
    for k in range(4):
        a("v_mfma_f32_16x16x32_bf16 v[32:35], %s, %s, %s" % (vr(LU + 4 * k, 4), vr(48 + 4 * k, 4),
                                                            "0" if k == 0 else "v[32:35]"))
    a("v_lshlrev_b32 v13, 15, v2")
    a("v_lshlrev_b32 v14, 3, v3")
    a("s_lshl_b32 s10, s6, 10")
    a("s_lshl_b32 s11, s8, 1")
    a("s_add_u32 s10, s10, s11")
    a("v_add3_u32 v13, v13, v14, s10")
    a("v_cmp_gt_u32 vcc, 4, v2")
    a.nop(4)
    sc = f32hex(LOG2E * (128 ** -0.5))
    for r in range(4):
        a("v_mul_f32 %s, %s, %s" % (v(32 + r), sc, v(32 + r)))
    a("v_cvt_pk_bf16_f32 v36, v32, v33")
    a("v_cvt_pk_bf16_f32 v37, v34, v35")
    a("s_and_saveexec_b64 s[12:13], vcc")
    a("buffer_store_dwordx2 v[36:37], v13, s[%d:%d], 0 offen offset:%d sc1" % (SO, SO + 3, QABS))
    a("s_mov_b64 exec, -1")
    go_issue(a, 38)
    a("s_waitcnt vmcnt(0)")
    go_check(a, 38)
    st()
    ev_last(a, E_QA, 4, 12, "c_qa_nl")
    gsignal_rep(a, SLOT_A, 12)
    a.label("c_qa_nl")
    a("s_cmp_lg_u32 s3, 0")
    a("s_cbranch_scc1 c_waitA")
    gpoll_rep(a, SLOT_A, 256 // NSH, 12, 13)
    ev_arrive(a, E_A)
    a("s_branch c_gotA")
    a.label("c_waitA")
    ev_wait(a, E_A, 1, 12)
    a.label("c_gotA")
    st()
    QF = 16
    a("s_lshr_b32 s8, s2, 6")
    a("s_lshl_b32 s10, s8, 15")
    a("s_lshl_b32 s11, s3, 8")
    a("s_add_u32 s10, s10, s11")
    a("v_lshlrev_b32 v12, 10, v2")
    a("v_lshlrev_b32 v13, 4, v3")
    a("v_add3_u32 v12, v12, v13, s10")
    a("s_mov_b32 s11, 16384")
    for ht in range(2):
        for k in range(4):
            a("buffer_load_dwordx4 %s, v12, s[%d:%d], %s offen offset:%d sc1" % (
                vr(QF + 16 * ht + 4 * k, 4), SO, SO + 3, "0" if ht == 0 else "s11", QABS + 64 * k))
    ev_arrive(a, E_QL)
    ev_wait(a, E_KV, 4, 14)
    st()
    AFQ = 48
    a("v_mul_u32_u24 v14, %d, v2" % RS)
    a("s_lshl_b32 s10, s3, 8")
    a("v_add3_u32 v14, v14, v13, s10")
    a("v_add_u32 v14, %d, v14" % CKV)
    for T in range(4):
        for k in range(4):
            a("ds_read_b128 %s, v14 offset:%d" % (vr(AFQ + 16 * T + 4 * k, 4), T * 16 * RS + k * 64))
    SA = 112
    a("s_waitcnt vmcnt(0)")
    for T in range(4):
        a("s_waitcnt lgkmcnt(%d)" % (12 - 4 * T))
        for k in range(4):
            for ht in range(2):
                a("v_mfma_f32_16x16x32_bf16 %s, %s, %s, %s" % (
                    vr(SA + 16 * ht + 4 * T, 4), vr(AFQ + 16 * T + 4 * k, 4), vr(QF + 16 * ht + 4 * k, 4),
                    "0" if k == 0 else vr(SA + 16 * ht + 4 * T, 4)))
    a.nop(8)
    a("s_lshl_b32 s10, s3, 13")
    a("v_lshlrev_b32 v12, 4, v1")
    a("v_add_u32 v12, %d, v12" % SP)
    a("v_add_u32 v13, s10, v12")
    for ht in range(2):
        for T in range(4):
            a("ds_write_b128 v13, %s offset:%d" % (vr(SA + 16 * ht + 4 * T, 4), (ht * 4 + T) * 1024))
    ev_arrive(a, E_S)
    ev_wait(a, E_S, 4, 14)
    st()
    a("s_lshr_b32 s9, s3, 1")
    a("s_and_b32 s10, s3, 1")
    a("s_lshl_b32 s11, s9, 12")
    a("v_add_u32 v13, s11, v12")
    SR = 16
    for src in range(4):
        for T in range(4):
            a("ds_read_b128 %s, v13 offset:%d" % (vr(SR + 16 * src + 4 * T, 4), src * 8192 + T * 1024))
    a("v_lshrrev_b32 v14, 2, v2")
    a("v_lshl_add_u32 v14, v3, 2, v14")
    a("v_mul_u32_u24 v14, %d, v14" % RS)
    a("v_and_b32 v15, 3, v2")
    a("v_lshlrev_b32 v15, 3, v15")
    a("s_lshl_b32 s11, s10, 9")
    a("v_add3_u32 v14, v14, v15, s11")
    a("v_add_u32 v14, %d, v14" % CKV)
    a("s_waitcnt lgkmcnt(8)")
    for q in range(16):
        a("v_add_f32 %s, %s, %s" % (v(SR + q), v(SR + q), v(SR + 16 + q)))
    a("s_waitcnt lgkmcnt(0)")
    for q in range(16):
        a("v_add_f32 %s, %s, %s" % (v(SR + 32 + q), v(SR + 32 + q), v(SR + 48 + q)))
    for q in range(16):
        a("v_add_f32 %s, %s, %s" % (v(SR + q), v(SR + q), v(SR + 32 + q)))
    TRB = 96
    groups = [(ks, cq) for cq in range(4) for ks in range(2)]

    def issue(k):
        ks, cq = groups[k]
        buf = TRB + 16 * (k % 4)
        for q in range(4):
            ct = 4 * cq + q
            off = ks * 32 * RS + ct * 32
            a("ds_read_b64_tr_b16 %s, v14 offset:%d" % (vr(buf + 4 * q, 2), off))
            a("ds_read_b64_tr_b16 %s, v14 offset:%d" % (vr(buf + 4 * q + 2, 2), off + 16 * RS))
    issue(0)
    a("v_max3_f32 v8, %s, %s, %s" % (v(SR), v(SR + 1), v(SR + 2)))
    for q in range(3, 15, 2):
        a("v_max3_f32 v8, v8, %s, %s" % (v(SR + q), v(SR + q + 1)))
    a("v_max_f32 v8, v8, %s" % v(SR + 15))
    red_g(a, "v_max_f32", 8, 9)
    for q in range(16):
        a("v_sub_f32 %s, %s, v8" % (v(SR + q), v(SR + q)))
    for q in range(16):
        a("v_exp_f32 %s, %s" % (v(SR + q), v(SR + q)))
    a.nop(1)
    PF = 32
    for q in range(8):
        a("v_cvt_pk_bf16_f32 %s, %s, %s" % (v(PF + q), v(SR + 2 * q), v(SR + 2 * q + 1)))
    a("v_add_f32 v9, %s, %s" % (v(SR), v(SR + 1)))
    for q in range(2, 16):
        a("v_add_f32 v9, v9, %s" % v(SR + q))
    red_g(a, "v_add_f32", 9, 10)
    ACP = 160

    def compute(k):
        ks, cq = groups[k]
        buf = TRB + 16 * (k % 4)
        for q in range(4):
            ct = 4 * cq + q
            a("v_mfma_f32_16x16x32_bf16 %s, %s, %s, %s" % (vr(ACP + 4 * ct, 4), vr(buf + 4 * q, 4), vr(PF + 4 * ks, 4),
                                                          "0" if ks == 0 else vr(ACP + 4 * ct, 4)))
    for k in range(8):
        if k + 1 < 8:
            issue(k + 1)
            a("s_waitcnt lgkmcnt(8)")
        else:
            a("s_waitcnt lgkmcnt(0)")
        compute(k)
    a("s_and_b32 s11, s2, 63")
    a("s_lshl_b32 s12, s8, 5")
    a("s_lshl_b32 s13, s9, 4")
    a("s_add_u32 s12, s12, s13")
    a("s_cmp_lg_u32 s10, 0")
    a("s_cbranch_scc1 c_nostats")
    a("s_lshl_b32 s13, s12, 9")
    a("s_lshl_b32 s4, s11, 3")
    a("s_add_u32 s13, s13, s4")
    a("s_add_u32 s13, s13, 0x%x" % STATS)
    a("v_lshlrev_b32 v12, 9, v2")
    a("v_add_u32 v12, s13, v12")
    exec_lo16(a)
    a("buffer_store_dwordx2 v[8:9], v12, s[%d:%d], 0 offen sc1" % (SO, SO + 3))
    exec_all(a)
    a.label("c_nostats")
    a("s_lshl_b32 s13, s12, 13")
    a("s_lshl_b32 s4, s11, 7")
    a("s_add_u32 s13, s13, s4")
    a("s_lshl_b32 s4, s10, 22")
    a("s_add_u32 s13, s13, s4")
    a("s_add_u32 s13, s13, 0x%x" % PART)
    a("v_lshlrev_b32 v12, 13, v2")
    a("v_lshlrev_b32 v13, 4, v3")
    a("v_add3_u32 v12, v12, v13, s13")
    a.nop(2)
    for p in range(8):
        for hf in range(2):
            ct = 2 * p + hf
            a("v_cvt_pk_bf16_f32 %s, %s, %s" % (v(16 + 4 * p + 2 * hf), v(ACP + 4 * ct), v(ACP + 4 * ct + 1)))
            a("v_cvt_pk_bf16_f32 %s, %s, %s" % (v(16 + 4 * p + 2 * hf + 1), v(ACP + 4 * ct + 2), v(ACP + 4 * ct + 3)))
    for p in range(8):
        a("s_mov_b32 s4, 0x%x" % ((p >> 1) * 0x100000))
        a("buffer_store_dwordx4 %s, v12, s[%d:%d], s4 offen offset:%d sc1" % (vr(16 + 4 * p, 4), SO, SO + 3, (p & 1) * 64))
    a("s_waitcnt vmcnt(0)")
    st()
    ev_last(a, E_P, 4, 12, "c_p_nl")
    gsignal_rep(a, SLOT_C, 12)
    a.label("c_p_nl")
    a("s_cmp_lg_u32 s3, 3")
    a("s_cbranch_scc1 c_end")
    a("s_cmp_ge_u32 s2, 224")
    a("s_cbranch_scc1 c_end")
    a("s_lshr_b32 s8, s2, 2")
    a("s_and_b32 s9, s2, 3")
    srd(a, SW, P_WD, 1792 * 1024)
    LD = 64
    a("s_lshr_b32 s10, s8, 1")
    a("s_lshl_b32 s10, s10, 16")
    a("s_and_b32 s11, s8, 1")
    a("s_lshl_b32 s11, s11, 11")
    a("s_add_u32 s10, s10, s11")
    a("s_lshl_b32 s11, s9, 8")
    a("s_add_u32 s10, s10, s11")
    a("v_and_b32 v6, 1, v3")
    a("v_lshlrev_b32 v6, 15, v6")
    a("v_lshrrev_b32 v7, 1, v3")
    a("v_lshl_add_u32 v6, v7, 10, v6")
    a("v_lshlrev_b32 v7, 4, v2")
    a("v_add3_u32 v6, v6, v7, s10")
    for i in range(8):
        a("s_mov_b32 s13, %d" % (4096 * i))
        a("buffer_load_dwordx4 %s, v6, s[%d:%d], s13 offen%s" % (vr(LD + 4 * i, 4), SW, SW + 3, nt('wd')))
    a("s_lshr_b32 s10, s8, 1")
    a("s_lshl_b32 s10, s10, 11")
    a("s_add_u32 s10, s10, 0x%x" % (CNT + SLOT_G))
    a("v_mov_b32 v12, s10")
    gpoll(a, 16, 12, 13)
    GL = 16
    a("v_and_b32 v8, 31, v1")
    a("v_lshrrev_b32 v9, 5, v1")
    a("v_mul_u32_u24 v9, %d, v9" % (8 * 1792))
    a("s_lshl_b32 s10, s8, 5")
    a("v_add3_u32 v9, v9, v8, s10")
    a("v_lshlrev_b32 v9, 4, v9")
    a("v_add_u32 v9, 0x%x, v9" % GU)
    for kk in range(4):
        for mat in range(2):
            a("s_mov_b32 s12, 0x%x" % ((kk * 2 + mat) * 1792 * 16))
            a("buffer_load_dwordx4 %s, v9, s[%d:%d], s12 offen sc1" % (vr(GL + 8 * kk + 4 * mat, 4), SO, SO + 3))
    a("s_waitcnt vmcnt(0)")
    for q in range(8):
        a("v_add_f32 %s, %s, %s" % (v(GL + q), v(GL + q), v(GL + 8 + q)))
        a("v_add_f32 %s, %s, %s" % (v(GL + 16 + q), v(GL + 16 + q), v(GL + 24 + q)))
    for q in range(8):
        a("v_add_f32 %s, %s, %s" % (v(GL + q), v(GL + q), v(GL + 16 + q)))
    for q in range(8):
        a("v_mov_b32 %s, %s" % (v(GL + 8 + q), v(GL + q)))
    a.nop(2)
    for q in range(8):
        a("v_permlane32_swap_b32 %s, %s" % (v(GL + q), v(GL + 8 + q)))
    a.nop(1)
    for q in range(8):
        a("v_add_f32 %s, %s, %s" % (v(GL + q), v(GL + q), v(GL + 8 + q)))
    for p in range(4):
        a("v_cvt_pk_bf16_f32 %s, %s, %s" % (v(24 + p), v(GL + 2 * p), v(GL + 2 * p + 1)))
    for p in range(4):
        a("v_lshlrev_b32 %s, 16, %s" % (v(GL + 2 * p), v(24 + p)))
        a("v_and_b32 %s, 0xffff0000, %s" % (v(GL + 2 * p + 1), v(24 + p)))
    for b in range(4):
        silu_inplace(a, GL + b, 28 + b)
    a("v_cvt_pk_bf16_f32 v24, v16, v17")
    a("v_cvt_pk_bf16_f32 v25, v18, v19")
    a("v_lshlrev_b32 v16, 16, v24")
    a("v_and_b32 v17, 0xffff0000, v24")
    a("v_lshlrev_b32 v18, 16, v25")
    a("v_and_b32 v19, 0xffff0000, v25")
    for b in range(4):
        a("v_mul_f32 %s, %s, %s" % (v(16 + b), v(16 + b), v(20 + b)))
    a("v_cvt_pk_bf16_f32 v24, v16, v17")
    a("v_cvt_pk_bf16_f32 v25, v18, v19")
    a("v_lshlrev_b32 v8, 1, v8")
    a("v_add_u32 v8, %d, v8" % HA)
    a("ds_write_b16 v8, v24")
    a("ds_write_b16_d16_hi v8, v24 offset:80")
    a("ds_write_b16 v8, v25 offset:160")
    a("ds_write_b16_d16_hi v8, v25 offset:240")
    a("v_and_b32 v9, 3, v1")
    a("v_mul_u32_u24 v9, 80, v9")
    a("v_lshl_add_u32 v9, v3, 4, v9")
    a("v_add_u32 v9, %d, v9" % HA)
    a("s_waitcnt lgkmcnt(0)")
    a("ds_read_b128 v[8:11], v9")
    a("s_waitcnt lgkmcnt(0)")
    unit8(a, LD, 96, 8, 128, True)
    a("s_lshl_b32 s10, s8, 13")
    a("s_lshl_b32 s11, s9, 11")
    a("s_add_u32 s10, s10, s11")
    a("s_add_u32 s10, s10, 0x%x" % YPART)
    a("v_add_u32 v6, s10, v7")
    a.nop(8)
    exec_lo16(a)
    for t in range(8):
        a("buffer_store_dwordx4 %s, v6, s[%d:%d], 0 offen offset:%d sc1" % (vr(128 + 4 * t, 4), SO, SO + 3, 256 * t))
    exec_all(a)
    a("s_waitcnt vmcnt(0)")
    gsignal_rep(a, SLOT_D, 12)
    st()
    a.label("c_end")
    st.n = max(st.n, 9)
    st.flush(13)
    a("s_endpgm")


def gen_xwave(a):
    st = Stamps(a)
    st()
    a("s_sub_u32 s9, s3, 4")
    a("s_cmp_ge_u32 s2, %d" % NZERO)
    a("s_cbranch_scc1 x_nozero")
    a("s_cmp_lg_u32 s9, 3")
    a("s_cbranch_scc1 x_nozero")
    a("s_lshl_b32 s4, s2, 15")
    a("s_add_u32 s4, s4, 0x%x" % CNT)
    a("v_lshlrev_b32 v6, 11, v2")
    a("v_add_u32 v6, s4, v6")
    for i in range(4):
        a("v_mov_b32 v%d, 0" % (8 + i))
    a("s_mov_b64 exec, 0xffff")
    a("buffer_store_dwordx4 v[8:11], v6, s[%d:%d], 0 offen sc1" % (SO, SO + 3))
    a("s_waitcnt vmcnt(0)")
    if DEBUG:
        a("s_memrealtime s[90:91]")
    a("s_mov_b64 exec, 1")
    a("buffer_atomic_add %s, %s, s[%d:%d], 0 offen sc1" % (v(VONE), v(VZ), SD, SD + 3))
    a("s_mov_b64 exec, -1")
    if DEBUG:
        a("s_waitcnt vmcnt(0)")
        a("s_memrealtime s[92:93]")
    a.label("x_nozero")
    if XDELAY:
        a("s_sleep %d" % XDELAY)
    a("s_lshl_b32 s10, s2, 16")
    srd(a, SC, P_CKV, 65536, off_sgpr=10)
    srd(a, SW, P_WUV, 4194304)
    srd(a, SU, P_WO, 4194304)
    a("v_lshlrev_b32 v6, 4, v1")

    def dma(row0_sgpr, n):
        a("s_mul_i32 s10, s%d, %d" % (row0_sgpr, RS))
        a("s_add_u32 s10, s10, %d" % CKV)
        a("s_lshl_b32 s11, s%d, 10" % row0_sgpr)
        for i in range(n):
            a("s_add_u32 m0, s10, %d" % (i * RS))
            a("s_add_u32 s12, s11, %d" % (i * 1024))
            a("buffer_load_dwordx4 v6, s[%d:%d], s12 offen%s lds" % (SC, SC + 3, " nt" if NT else ""))

    WUV = 240
    WO = 48

    def k3_loads():
        a("s_lshr_b32 s10, s9, 1")
        a("s_and_b32 s11, s9, 1")
        a("s_lshl_b32 s12, s7, 19")
        a("s_lshl_b32 s10, s10, 18")
        a("s_add_u32 s12, s12, s10")
        a("s_lshl_b32 s10, s6, 8")
        a("s_add_u32 s12, s12, s10")
        a("s_lshl_b32 s11, s11, 7")
        a("s_add_u32 s12, s12, s11")
        a("v_lshlrev_b32 v7, 15, v3")
        a("v_lshlrev_b32 v8, 3, v2")
        a("v_add3_u32 v7, v7, v8, s12")
        for i in range(8):
            a("s_mov_b32 s10, 0x%x" % ((16 * (i >> 2) + (i & 3)) * 8192))
            a("buffer_load_dwordx2 %s, v7, s[%d:%d], s10 offen%s" % (vr(WUV + 2 * i, 2), SW, SW + 3, nt('wuv')))
        a("s_lshl_b32 s12, s6, 17")
        a("s_lshl_b32 s10, s9, 8")
        a("s_add_u32 s12, s12, s10")
        a("v_lshlrev_b32 v7, 13, v3")
        a("v_lshlrev_b32 v8, 4, v2")
        a("v_add3_u32 v7, v7, v8, s12")
        for u in range(4):
            for i in range(8):
                a("s_mov_b32 s10, 0x%x" % (u * 32768 + (i >> 2) * 4096))
                a("buffer_load_dwordx4 %s, v7, s[%d:%d], s10 offen offset:%d%s" % (
                    vr(WO + 32 * u + 4 * i, 4), SU, SU + 3, (i & 3) * 1024, nt('wo')))

    a("s_cmp_ge_u32 s9, 2")
    a("s_cbranch_scc1 x_hi")
    a("s_lshl_b32 s8, s9, 3")
    dma(8, 8)
    a("s_cmp_eq_u32 s9, 0")
    a("s_cselect_b32 s10, s%d, s%d" % (P_WG, P_WU))
    a("s_cselect_b32 s11, s%d, s%d" % (P_WG + 1, P_WU + 1))
    srd(a, SX, 10, 512 * 3584)
    a("s_and_b32 s13, s2, 7")
    a("s_lshr_b32 s8, s2, 3")
    a("s_mul_i32 s10, s13, %d" % (64 * 3584))
    a("s_lshl_b32 s11, s8, 7")
    a("s_add_u32 s10, s10, s11")
    a("v_mul_u32_u24 v7, %d, v3" % (8 * 3584))
    a("v_lshlrev_b32 v8, 3, v2")
    a("v_add3_u32 v7, v7, v8, s10")
    LF = 16
    for u in range(2):
        for i in range(8):
            a("s_mov_b32 s10, 0x%x" % ((32 * u + i) * 3584))
            a("buffer_load_dwordx2 %s, v7, s[%d:%d], s10 offen%s" % (vr(LF + 16 * u + 2 * i, 2), SX, SX + 3, nt('ffn')))
    if not K3LATE:
        k3_loads()
    a("s_waitcnt vmcnt(%d)" % (16 if K3LATE else 56))
    ev_arrive(a, E_KV)
    st()
    ev_wait(a, E_XN, 4, 10)
    a("v_and_b32 v10, 3, v1")
    a("v_mul_u32_u24 v10, 1088, v10")
    a("v_lshlrev_b32 v11, 4, v3")
    a("s_lshl_b32 s10, s13, 7")
    a("v_add3_u32 v10, v10, v11, s10")
    for u in range(2):
        a("ds_read_b128 %s, v10 offset:%d" % (vr(176 + 4 * u, 4), XN + 64 * u))
    a("s_waitcnt lgkmcnt(0)")
    for u in range(2):
        a("s_waitcnt vmcnt(%d)" % ((0 if K3LATE else 40) + (1 - u) * 8))
        unit4(a, LF + 16 * u, 184 + 16 * u, 176 + 4 * u, 216, u == 0)
    a("s_cmp_ge_u32 s2, 224")
    a("s_cbranch_scc1 x_join")
    a("s_lshl_b32 s10, s13, 1")
    a("s_add_u32 s10, s10, s9")
    a("s_mul_i32 s10, s10, %d" % (1792 * 16))
    a("s_lshl_b32 s11, s8, 10")
    a("s_add_u32 s10, s10, s11")
    a("s_add_u32 s10, s10, 0x%x" % GU)
    a("v_lshlrev_b32 v10, 4, v2")
    a("v_add_u32 v10, s10, v10")
    a.nop(8)
    exec_lo16(a)
    for t in range(4):
        a("buffer_store_dwordx4 %s, v10, s[%d:%d], 0 offen offset:%d sc1" % (vr(216 + 4 * t, 4), SO, SO + 3, 256 * t))
    exec_all(a)
    go_issue(a, 11)
    a("s_waitcnt vmcnt(0)")
    go_check(a, 11)
    gsignal(a, 8, 10, SLOT_G)
    a("s_branch x_join")
    a.label("x_hi")
    a("s_sub_u32 s8, s9, 2")
    a("s_mul_i32 s8, s8, 24")
    a("s_add_u32 s8, s8, 16")
    dma(8, 24)
    if not K3LATE:
        k3_loads()
    a("s_waitcnt vmcnt(%d)" % (0 if K3LATE else 40))
    ev_arrive(a, E_KV)
    st()
    a.label("x_join")
    st()
    if K3LATE:
        ev_wait(a, E_QL, 4, 10)
        k3_loads()
    ev_wait(a, E_P, 4, 10)
    a("s_cmp_lg_u32 s9, 0")
    a("s_cbranch_scc1 x_waitC")
    gpoll_rep(a, SLOT_C, 256 // NSH, 10, 11)
    ev_arrive(a, E_C)
    a("s_branch x_gotC")
    a.label("x_waitC")
    ev_wait(a, E_C, 1, 10)
    a.label("x_gotC")
    st()
    STR = 176
    a("s_lshl_b32 s10, s9, 5")
    a("s_add_u32 s10, s10, s6")
    a("s_lshl_b32 s11, s10, 9")
    a("s_add_u32 s11, s11, 0x%x" % STATS)
    a("v_and_b32 v10, 1, v2")
    a("v_lshlrev_b32 v10, 8, v10")
    a("v_lshl_add_u32 v10, v3, 6, v10")
    a("v_add_u32 v10, s11, v10")
    for i in range(4):
        a("buffer_load_dwordx4 %s, v10, s[%d:%d], 0 offen offset:%d sc1" % (vr(STR + 4 * i, 4), SO, SO + 3, 16 * i))
    LP = 16
    a("s_lshl_b32 s11, s10, 13")
    a("s_lshl_b32 s12, s7, 20")
    a("s_add_u32 s11, s11, s12")
    a("s_add_u32 s11, s11, 0x%x" % PART)
    a("v_lshrrev_b32 v10, 3, v2")
    a("v_lshlrev_b32 v10, 12, v10")
    a("v_lshl_add_u32 v10, v3, 10, v10")
    a("v_and_b32 v11, 7, v2")
    a("v_lshlrev_b32 v11, 4, v11")
    a("v_add3_u32 v10, v10, v11, s11")
    for i in range(8):
        a("buffer_load_dwordx4 %s, v10, s[%d:%d], 0 offen offset:%d sc1" % (vr(LP + 4 * i, 4), SO, SO + 3, 128 * i))
    a("s_waitcnt vmcnt(8)")
    a("v_max3_f32 v6, %s, %s, %s" % (v(STR), v(STR + 2), v(STR + 4)))
    a("v_max3_f32 v6, v6, %s, %s" % (v(STR + 6), v(STR + 8)))
    a("v_max3_f32 v6, v6, %s, %s" % (v(STR + 10), v(STR + 12)))
    a("v_max_f32 v6, v6, %s" % v(STR + 14))
    red_g(a, "v_max_f32", 6, 7)
    a.nop(2)
    a("v_max_f32_dpp v6, v6, v6 quad_perm:[1,0,3,2] row_mask:0xf bank_mask:0xf")
    for i in range(8):
        a("v_sub_f32 %s, %s, v6" % (v(STR + 2 * i), v(STR + 2 * i)))
    for i in range(8):
        a("v_exp_f32 %s, %s" % (v(STR + 2 * i), v(STR + 2 * i)))
    a.nop(1)
    a("v_mul_f32 v7, %s, %s" % (v(STR), v(STR + 1)))
    for i in range(1, 8):
        a("v_fma_f32 v7, %s, %s, v7" % (v(STR + 2 * i), v(STR + 2 * i + 1)))
    red_g(a, "v_add_f32", 7, 8)
    a.nop(2)
    a("v_add_f32_dpp v7, v7, v7 quad_perm:[1,0,3,2] row_mask:0xf bank_mask:0xf")
    a("v_rcp_f32 v7, v7")
    a.nop(1)
    for i in range(8):
        a("v_mul_f32 %s, %s, v7" % (v(STR + 2 * i), v(STR + 2 * i)))
    AW = 12
    for p in range(4):
        a("v_cvt_pk_bf16_f32 %s, %s, %s" % (v(AW + p), v(STR + 4 * p), v(STR + 4 * p + 2)))
    FX = 176
    ACC = 208
    a("s_waitcnt vmcnt(0)")
    unit8(a, LP, FX, AW, ACC, True)
    a.nop(8)
    for t in range(8):
        a("v_add_f32_dpp %s, %s, %s row_ror:8 row_mask:0xf bank_mask:0xf" % (v(16 + t), v(ACC + 4 * t + 1), v(ACC + 4 * t)))
    for p in range(4):
        a("v_cvt_pk_bf16_f32 %s, %s, %s" % (v(24 + p), v(16 + 2 * p), v(16 + 2 * p + 1)))
    a("s_mul_i32 s10, s9, 160")
    a("v_lshlrev_b32 v10, 4, v2")
    a("v_add_u32 v10, s10, v10")
    a("v_add_u32 v10, %d, v10" % LAT)
    a("s_mov_b64 exec, 0xff")
    a("ds_write_b128 v10, v[24:27]")
    exec_all(a)
    ev_arrive(a, E_L)
    ev_wait(a, E_L, 4, 10)
    a("s_lshr_b32 s10, s9, 1")
    a("s_and_b32 s11, s9, 1")
    a("v_and_b32 v10, 3, v1")
    a("v_mul_u32_u24 v11, 160, v10")
    a("v_lshl_add_u32 v11, v3, 4, v11")
    a("s_lshl_b32 s12, s10, 6")
    a("v_add_u32 v11, s12, v11")
    a("v_add_u32 v11, %d, v11" % LAT)
    a("ds_read_b128 v[12:15], v11")
    a("s_waitcnt lgkmcnt(0)")
    unit4(a, WUV, FX, 12, ACC, True)
    a("s_lshl_b32 s12, s10, 11")
    a("s_lshl_b32 s13, s11, 8")
    a("s_add_u32 s12, s12, s13")
    a("v_lshlrev_b32 v11, 4, v2")
    a("v_add_u32 v11, s12, v11")
    a("v_add_u32 v11, %d, v11" % CT)
    a.nop(8)
    exec_lo16(a)
    for t in range(4):
        for b in range(4):
            a("ds_write_b32 v11, %s offset:%d" % (v(ACC + 4 * t + b), b * 512 + 4 * t))
    exec_all(a)
    ev_arrive(a, E_X)
    ev_wait(a, E_X, 4, 11)
    a("v_lshlrev_b32 v11, 9, v10")
    a("v_lshl_add_u32 v11, v3, 5, v11")
    a("v_add_u32 v11, %d, v11" % CT)
    for u in range(4):
        for kh in range(2):
            for hf in range(2):
                a("ds_read_b128 %s, v11 offset:%d" % (vr(176 + 16 * (u & 1) + 8 * kh + 4 * hf, 4) if False else
                                                     vr(176 + 16 * u - 0 + 8 * kh + 4 * hf, 4), kh * 2048 + u * 128 + hf * 16))
    a("s_waitcnt lgkmcnt(0)")
    for u in range(4):
        B = 176 + 16 * u
        for q in range(8):
            a("v_add_f32 %s, %s, %s" % (v(B + q), v(B + q), v(B + 8 + q)))
    for u in range(4):
        B = 176 + 16 * u
        for q in range(4):
            a("v_cvt_pk_bf16_f32 %s, %s, %s" % (v(240 + 4 * u + q), v(B + 2 * q), v(B + 2 * q + 1)))
    ACC5 = 208
    for u in range(4):
        unit8(a, WO + 32 * u, 16 if u == 0 else WO + 32 * (u - 1), 240 + 4 * u, ACC5 if False else 176, u == 0)
    a("s_lshl_b32 s10, s2, 13")
    a("s_lshl_b32 s11, s9, 11")
    a("s_add_u32 s10, s10, s11")
    a("s_add_u32 s10, s10, 0x%x" % SPART)
    a("v_lshlrev_b32 v10, 4, v2")
    a("v_add_u32 v10, s10, v10")
    a.nop(8)
    exec_lo16(a)
    for t in range(8):
        a("buffer_store_dwordx4 %s, v10, s[%d:%d], 0 offen offset:%d sc1" % (vr(176 + 4 * t, 4), SO, SO + 3, 256 * t))
    exec_all(a)
    a("s_waitcnt vmcnt(0)")
    st()
    ev_last(a, E_SP, 4, 10, "x_sp_nl")
    gsignal_rep(a, SLOT_D, 10)
    a.label("x_sp_nl")
    a("s_cmp_ge_u32 s2, 128")
    a("s_cbranch_scc1 x_end")
    srd(a, SW, P_WS, 256 * 8192, off=SPART)
    srd(a, SU, P_WS, 56 * 8192, off=YPART)
    srd(a, SX, P_X, 4096)
    srd(a, SC, P_OUT, 4096)
    a("s_lshl_b32 s10, s9, 6")
    a("v_add_u32 v6, s10, v1")
    a("v_and_b32 v7, 3, v6")
    a("v_lshrrev_b32 v8, 2, v6")
    a("s_lshl_b32 s10, s2, 6")
    a("v_lshlrev_b32 v9, 4, v7")
    a("v_add_u32 v9, s10, v9")
    a("v_lshlrev_b32 v10, 15, v8")
    a("v_add_u32 v10, v10, v9")
    a("v_lshlrev_b32 v11, 13, v8")
    a("v_add_u32 v11, v11, v9")
    a("v_lshrrev_b32 v12, 2, v1")
    a("s_lshl_b32 s10, s2, 2")
    a("v_add_u32 v12, s10, v12")
    a("v_and_b32 v13, 15, v12")
    a("v_lshrrev_b32 v14, 4, v12")
    a("v_and_b32 v14, 7, v14")
    a("v_lshrrev_b32 v15, 7, v12")
    a("v_lshlrev_b32 v15, 7, v15")
    a("v_lshl_add_u32 v15, v13, 3, v15")
    a("v_add_u32 v15, v15, v14")
    a("v_and_b32 v12, 3, v1")
    a("v_lshl_add_u32 v15, v12, 9, v15")
    a("v_lshlrev_b32 v15, 1, v15")
    a("v_and_b32 v15, 0xfff, v15")
    a("buffer_load_ushort v13, v15, s[%d:%d], 0 offen" % (SX, SX + 3))
    a("s_cmp_lg_u32 s9, 0")
    a("s_cbranch_scc1 x_waitD")
    gpoll_rep(a, SLOT_D, 480 // NSH, 16, 17)
    ev_arrive(a, E_D)
    a("s_branch x_gotD")
    a.label("x_waitD")
    ev_wait(a, E_D, 1, 16)
    a.label("x_gotD")
    st()
    a("s_mov_b32 s13, 8192")
    a("s_mov_b32 s12, 16384")
    a("s_mov_b32 s11, 24576")
    a("buffer_load_dwordx4 v[16:19], v10, s[%d:%d], 0 offen sc1" % (SW, SW + 3))
    a("buffer_load_dwordx4 v[20:23], v10, s[%d:%d], s13 offen sc1" % (SW, SW + 3))
    a("buffer_load_dwordx4 v[24:27], v10, s[%d:%d], s12 offen sc1" % (SW, SW + 3))
    a("buffer_load_dwordx4 v[28:31], v10, s[%d:%d], s11 offen sc1" % (SW, SW + 3))
    a("buffer_load_dwordx4 v[32:35], v11, s[%d:%d], 0 offen sc1" % (SU, SU + 3))
    a("s_waitcnt vmcnt(0)")
    for q in range(4):
        a("v_add_f32 %s, %s, %s" % (v(16 + q), v(16 + q), v(20 + q)))
        a("v_add_f32 %s, %s, %s" % (v(24 + q), v(24 + q), v(28 + q)))
        a("v_mov_b32 %s, %s" % (v(20 + q), v(32 + q)))
    for q in range(4):
        a("v_add_f32 %s, %s, %s" % (v(16 + q), v(16 + q), v(24 + q)))
    a.nop(2)
    for q in range(8):
        a("v_add_f32_dpp %s, %s, %s row_ror:8 row_mask:0xf bank_mask:0xf" % (v(24 + q), v(16 + q), v(16 + q)))
    a.nop(2)
    for q in range(8):
        a("v_add_f32_dpp %s, %s, %s row_ror:4 row_mask:0xf bank_mask:0xf" % (v(16 + q), v(24 + q), v(24 + q)))
    for q in range(8):
        a("v_mov_b32 %s, %s" % (v(24 + q), v(16 + q)))
    a.nop(2)
    for q in range(8):
        a("v_permlane16_swap_b32 %s, %s" % (v(16 + q), v(24 + q)))
    a.nop(1)
    for q in range(8):
        a("v_add_f32 %s, %s, %s" % (v(16 + q), v(16 + q), v(24 + q)))
    for q in range(8):
        a("v_mov_b32 %s, %s" % (v(24 + q), v(16 + q)))
    a.nop(2)
    for q in range(8):
        a("v_permlane32_swap_b32 %s, %s" % (v(16 + q), v(24 + q)))
    a.nop(1)
    for q in range(8):
        a("v_add_f32 %s, %s, %s" % (v(16 + q), v(16 + q), v(24 + q)))
    a("s_lshl_b32 s10, s9, 7")
    a("v_lshlrev_b32 v14, 5, v7")
    a("v_add_u32 v14, s10, v14")
    a("v_add_u32 v14, %d, v14" % FIN)
    a("s_mov_b64 exec, 0xf")
    a("ds_write_b128 v14, v[16:19]")
    a("ds_write_b128 v14, v[20:23] offset:16")
    exec_all(a)
    ev_arrive(a, E_F)
    a("s_cmp_lg_u32 s9, 0")
    a("s_cbranch_scc1 x_end")
    ev_wait(a, E_F, 4, 14)
    exec_lo16(a)
    a("v_lshrrev_b32 v14, 2, v1")
    a("v_lshlrev_b32 v14, 5, v14")
    a("v_lshl_add_u32 v14, v12, 2, v14")
    a("v_add_u32 v14, %d, v14" % FIN)
    for w in range(4):
        a("ds_read_b32 %s, v14 offset:%d" % (v(16 + w), 128 * w))
        a("ds_read_b32 %s, v14 offset:%d" % (v(20 + w), 128 * w + 16))
    a("s_waitcnt vmcnt(0) lgkmcnt(0)")
    a("v_add_f32 v16, v16, v17")
    a("v_add_f32 v18, v18, v19")
    a("v_add_f32 v20, v20, v21")
    a("v_add_f32 v22, v22, v23")
    a("v_add_f32 v16, v16, v18")
    a("v_add_f32 v20, v20, v22")
    a("v_cvt_pk_bf16_f32 v24, v16, v20")
    a("v_lshlrev_b32 v16, 16, v24")
    a("v_and_b32 v20, 0xffff0000, v24")
    silu_inplace(a, 20, 25)
    a("v_cvt_pk_bf16_f32 v24, v20, v20")
    a("v_lshlrev_b32 v20, 16, v24")
    a("v_mul_f32 v16, v16, v20")
    a("v_cvt_pk_bf16_f32 v24, v16, v16")
    a("v_lshlrev_b32 v16, 16, v24")
    a("v_lshlrev_b32 v13, 16, v13")
    a("v_add_f32 v16, v16, v13")
    a("v_cvt_pk_bf16_f32 v24, v16, v16")
    a("buffer_store_short v24, v15, s[%d:%d], 0 offen" % (SC, SC + 3))
    exec_all(a)
    st()
    a.label("x_end")
    st.n = max(st.n, 12)
    st.flush(13)
    a("s_endpgm")


def gen_main(a):
    name = "fused_kernel"
    kernel_begin(a, name)
    prologue(a, 256, "f_end")
    a("v_mov_b32 v%d, 0" % VZ)
    a("v_mov_b32 v%d, 1" % VONE)
    a("v_lshlrev_b32 v6, 2, v1")
    a("ds_write_b32 v6, v%d offset:%d" % (VZ, EV))
    srd(a, SO, P_WS, WS_USED)
    srd(a, SD, P_DBG, 256)
    a("s_and_b32 s6, s2, 7")
    a("s_lshl_b32 s6, s6, 2")
    a("s_lshr_b32 s7, s2, 6")
    a("s_add_u32 s6, s6, s7")
    a("s_lshr_b32 s7, s2, 3")
    a("s_and_b32 s7, s7, 7")
    if DEBUG:
        for i in range(16):
            a("s_mov_b64 s[%d:%d], 0" % (70 + 2 * i, 71 + 2 * i))
    a("s_waitcnt lgkmcnt(0)")
    a("s_barrier")
    a("s_cmp_ge_u32 s3, 4")
    a("s_cbranch_scc1 f_x")
    gen_cwave(a)
    a.label("f_x")
    gen_xwave(a)
    a.label("f_end")
    a("s_endpgm")
    return name


def main():
    a = Asm()
    a.raw('.amdgcn_target "amdgcn-amd-amdhsa--gfx950"')
    a.raw(".text")
    n = gen_main(a)
    a.raw('.section .rodata,"a"')
    a.raw(".p2align 6")
    kernel_desc(a, n, 256)
    hdr = ["; generated by gen2.py -- single persistent fused kernel",
           "; @launch kernel=%s grid=(256,1,1) block=(512,1,1) lds=%d" % (n, LDS_SIZE)]
    out = "\n".join(hdr + a.L) + "\n"
    path = sys.argv[1] if len(sys.argv) > 1 else "cdna_kernels/%s.s" % NAME
    open(path, "w").write(out)


if __name__ == "__main__":
    main()
```

```python
import sys, os
sys.path.insert(0, "code")
from gen import (v, vr, s, sr, Asm, kernel_begin, kernel_desc, prologue, srd, red_g, red_16, red_64, layernorm,
                 unit8, unit4, exec_lo16, exec_all, LOG2E, f32hex, silu_inplace,
                 P_X, P_CKV, P_WQ, P_WUK, P_WUV, P_WO, P_WG, P_WU, P_WD, P_OUT, P_DBG, P_WS, S_SELLO, S_SELHI, NAME)

DEBUG = int(os.environ.get("STAMPS", "0"))
XDELAY = int(os.environ.get("XDELAY", "0"))

QABS = 0x000000
GU = 0x040000
STATS = 0x0C0000
PART = 0x100000
SPART = 0x900000
YPART = 0xB00000
CNT = 0xC00000
STAMP = 0xD00000
WS_USED = 0xD80000
NSH = int(os.environ.get("NSH", "8"))
NREP = int(os.environ.get("NREP", "16"))
assert NSH * NREP == 128
SLOT_A, SLOT_C, SLOT_D, SLOT_G = 0, 4, 8, 12
NZERO = 8
CTL = CNT + 0x40000
MAGIC0, MAGIC1 = 0x5ca1ab1e, 0x9e3779b9
S_PAR, S_FAST, S_REC = 68, 69, 96
EPOCH = os.environ.get('EPOCH', '1') == '1'
PSLEEP = int(os.environ.get("PSLEEP", "1"))

RS = 1056
EV = 0
XN = 256
RED = XN + 4352
QL = RED + 8192
CKV = QL + 4 * 1280
SP = CKV + 64 * RS
LAT = SP + 32768
CT = LAT + 640
FIN = CT + 4096
HA = FIN + 1024
LDS_SIZE = HA + 320
E_XN, E_Q, E_QA, E_A, E_KV, E_S, E_P, E_C, E_L, E_X, E_SP, E_D, E_F, E_QL = range(14)
NTSET = set(os.environ.get('NTSET', 'ckv').split(','))
NT = 'ckv' in NTSET


def nt(name):
    return ' nt' if name in NTSET else ''


K3LATE = os.environ.get('K3LATE', '1') == '1'

SX, SW, SU, SO, SD, SC = 44, 48, 52, 56, 60, 64
VZ, VONE = 4, 5
SPIN_LDS = 200000
SPIN_G = 40000

_uid = [0]


def uid(p):
    _uid[0] += 1
    return "%s_%d" % (p, _uid[0])


class Stamps:
    def __init__(self, a):
        self.a = a
        self.n = 0

    def __call__(self):
        if DEBUG:
            self.a("s_memrealtime s[%d:%d]" % (70 + 2 * self.n, 71 + 2 * self.n))
            self.n += 1

    def flush(self, vt):
        if not DEBUG:
            return
        a = self.a
        a("s_waitcnt lgkmcnt(0)")
        a("s_lshl_b32 s4, s2, 3")
        a("s_add_u32 s4, s4, s3")
        a("s_lshl_b32 s4, s4, 7")
        a("s_add_u32 s4, s4, 0x%x" % STAMP)
        a("v_mov_b32 %s, s4" % v(vt))
        a("s_mov_b64 exec, 1")
        for i in range(self.n):
            a("v_mov_b32 %s, s%d" % (v(vt + 1), 70 + 2 * i))
            a("v_mov_b32 %s, s%d" % (v(vt + 2), 71 + 2 * i))
            a("buffer_store_dwordx2 %s, %s, s[%d:%d], 0 offen offset:%d" % (vr(vt + 1, 2), v(vt), SO, SO + 3, 8 * i))
            a("s_nop 1")
        a("s_mov_b64 exec, -1")


def ev_arrive(a, e):
    a("s_waitcnt lgkmcnt(0)")
    a("ds_add_u32 %s, %s offset:%d" % (v(VZ), v(VONE), EV + 4 * e))


def ev_wait(a, e, n, vt):
    L = uid("evw")
    a("s_mov_b32 s5, 0")
    a.label(L)
    a("ds_read_b32 %s, %s offset:%d" % (v(vt), v(VZ), EV + 4 * e))
    a("s_add_u32 s5, s5, 1")
    a("s_waitcnt lgkmcnt(0)")
    a("v_readfirstlane_b32 s4, %s" % v(vt))
    a("s_cmp_ge_u32 s4, %d" % (64 * n))
    a("s_cbranch_scc1 %s_d" % L)
    a("s_cmp_lt_u32 s5, %d" % SPIN_LDS)
    a("s_cbranch_scc1 %s" % L)
    a.label(L + "_d")


def ev_last(a, e, n, vt, notlast):
    a("s_waitcnt lgkmcnt(0)")
    a("ds_add_rtn_u32 %s, %s, %s offset:%d" % (v(vt), v(VZ), v(VONE), EV + 4 * e))
    a("s_waitcnt lgkmcnt(0)")
    a("v_readfirstlane_b32 s4, %s" % v(vt))
    a("s_cmp_lg_u32 s4, %d" % (64 * (n - 1)))
    a("s_cbranch_scc1 %s" % notlast)


def resolve(a):
    a("s_waitcnt lgkmcnt(0)")
    if not EPOCH:
        a("s_mov_b32 s%d, 0" % S_FAST)
        a("s_mov_b32 s%d, 0" % S_PAR)
        return
    a("s_cmp_eq_u32 s%d, 0x%x" % (S_REC, MAGIC0))
    a("s_cselect_b32 s%d, 1, 0" % S_FAST)
    a("s_cmp_eq_u32 s%d, 0x%x" % (S_REC + 1, MAGIC1))
    a("s_cselect_b32 s%d, s%d, 0" % (S_FAST, S_FAST))
    a("s_not_b32 s4, s%d" % (S_REC + 2))
    a("s_cmp_eq_u32 s4, s%d" % (S_REC + 3))
    a("s_cselect_b32 s%d, s%d, 0" % (S_FAST, S_FAST))
    a("s_cmp_lg_u32 s%d, 0" % S_FAST)
    a("s_cselect_b32 s%d, s%d, 0" % (S_REC + 2, S_REC + 2))
    a("s_and_b32 s%d, s%d, 1" % (S_PAR, S_REC + 2))
    a("s_lshl_b32 s%d, s%d, 4" % (S_PAR, S_PAR))
    a("s_add_u32 s%d, s%d, 1" % (S_REC + 2, S_REC + 2))


def gsignal(a, slot_sgpr, vt, boff):
    a("s_lshl_b32 s4, s%d, 11" % slot_sgpr)
    a("s_add_u32 s4, s4, 0x%x" % (CNT + boff))
    a("s_add_u32 s4, s4, s%d" % S_PAR)
    a("v_mov_b32 %s, s4" % v(vt))
    a("s_mov_b64 exec, 1")
    a("buffer_atomic_add %s, %s, s[%d:%d], 0 offen sc1" % (v(VONE), v(vt), SO, SO + 3))
    a("s_mov_b64 exec, -1")


def gpoll(a, expect, vaddr, vt, sleep=2):
    L = uid("gp")
    a("s_mov_b32 s5, 0")
    a.label(L)
    a("buffer_load_dword %s, %s, s[%d:%d], 0 offen sc1" % (v(vt), v(vaddr), SO, SO + 3))
    a("s_add_u32 s5, s5, 1")
    a("s_waitcnt vmcnt(0)")
    a("v_cmp_gt_u32 vcc, %d, %s" % (expect, v(vt)))
    a("s_cmp_eq_u64 vcc, 0")
    a("s_cbranch_scc1 %s_d" % L)
    a("s_sleep %d" % sleep)
    a("s_cmp_lt_u32 s5, %d" % SPIN_G)
    a("s_cbranch_scc1 %s" % L)
    a.label(L + "_d")


def cnt_addr16(a, slot0, vaddr):
    a("v_lshlrev_b32 %s, 11, v2" % v(vaddr))
    a("v_add_u32 %s, 0x%x, %s" % (v(vaddr), CNT + slot0 * 2048, v(vaddr)))


def gsignal_rep(a, slot0, vt):
    a("s_and_b32 s4, s2, %d" % (NSH - 1))
    a("s_lshl_b32 s4, s4, 11")
    a("s_add_u32 s4, s4, 0x%x" % (CNT + slot0))
    a("s_add_u32 s4, s4, s%d" % S_PAR)
    a("v_mul_u32_u24 %s, %d, v1" % (v(vt), NSH * 2048))
    a("v_add_u32 %s, s4, %s" % (v(vt), v(vt)))
    a("s_mov_b64 exec, 0x%x" % ((1 << NREP) - 1))
    a("buffer_atomic_add %s, %s, s[%d:%d], 0 offen sc1" % (v(VONE), v(vt), SO, SO + 3))
    a("s_mov_b64 exec, -1")


def gpoll_rep(a, slot0, expect, vaddr, vt):
    a("s_lshr_b32 s4, s2, %d" % (NSH.bit_length() - 1))
    a("s_and_b32 s4, s4, %d" % (NREP - 1))
    a("s_mul_i32 s4, s4, %d" % NSH)
    a("s_lshl_b32 s4, s4, 11")
    a("s_add_u32 s4, s4, 0x%x" % (CNT + slot0))
    a("s_add_u32 s4, s4, s%d" % S_PAR)
    a("v_and_b32 %s, %d, v1" % (v(vaddr), NSH - 1))
    a("v_lshlrev_b32 %s, 11, %s" % (v(vaddr), v(vaddr)))
    a("v_add_u32 %s, s4, %s" % (v(vaddr), v(vaddr)))
    gpoll(a, expect, vaddr, vt, PSLEEP)


def go_issue_slow(a, vt):
    L = uid("gis")
    a("s_cmp_lg_u32 s%d, 0" % S_FAST)
    a("s_cbranch_scc1 %s" % L)
    go_issue(a, vt)
    a.label(L)


def go_check_slow(a, vt):
    L = uid("gcs")
    a("s_cmp_lg_u32 s%d, 0" % S_FAST)
    a("s_cbranch_scc1 %s" % L)
    go_check(a, vt)
    a.label(L)


def go_issue(a, vt):
    a("buffer_load_dword %s, %s, s[%d:%d], 0 offen sc1" % (v(vt), v(VZ), SD, SD + 3))


def go_check(a, vt):
    L = uid("go")
    a("s_mov_b32 s5, 0")
    a.label(L)
    a("v_readfirstlane_b32 s4, %s" % v(vt))
    a("s_cmp_ge_u32 s4, %d" % NZERO)
    a("s_cbranch_scc1 %s_d" % L)
    a("s_add_u32 s5, s5, 1")
    a("s_cmp_lt_u32 s5, %d" % SPIN_G)
    a("s_cbranch_scc0 %s_d" % L)
    a("s_sleep 2")
    go_issue(a, vt)
    a("s_waitcnt vmcnt(0)")
    a("s_branch %s" % L)
    a.label(L + "_d")


def gen_cwave(a):
    st = Stamps(a)
    st()
    srd(a, SX, P_X, 4096)
    a("s_lshl_b32 s4, s3, 10")
    a("v_lshlrev_b32 v6, 4, v1")
    a("v_add_u32 v7, s4, v6")
    a("buffer_load_dwordx4 v[8:11], v7, s[%d:%d], 0 offen" % (SX, SX + 3))
    a("s_mul_i32 s4, s3, 1088")
    a("v_add_u32 v6, s4, v6")
    a("v_add_u32 v6, %d, v6" % XN)
    srd(a, SW, P_WQ, 4194304)
    srd(a, SU, P_WUK, 4194304)
    a("s_lshl_b32 s8, s3, 20")
    a("s_lshl_b32 s9, s6, 8")
    a("s_add_u32 s8, s8, s9")
    a("v_lshlrev_b32 v7, 16, v3")
    a("v_lshlrev_b32 v12, 4, v2")
    a("v_add3_u32 v7, v7, v12, s8")
    LQ = 16
    for u in range(4):
        for i in range(8):
            a("s_mov_b32 s10, 0x%x" % ((32 * u + i) * 8192))
            a("buffer_load_dwordx4 %s, v7, s[%d:%d], s10 offen%s" % (vr(LQ + 32 * u + 4 * i, 4), SW, SW + 3, nt('wq')))
    LU = 144
    a("s_lshl_b32 s8, s7, 6")
    a("s_lshl_b32 s10, s3, 4")
    a("s_add_u32 s8, s8, s10")
    a("v_add_u32 v12, s8, v2")
    a("v_lshlrev_b32 v12, 13, v12")
    a("v_lshlrev_b32 v13, 4, v3")
    a("v_add3_u32 v12, v12, v13, s9")
    for k in range(4):
        a("buffer_load_dwordx4 %s, v12, s[%d:%d], 0 offen offset:%d%s" % (vr(LU + 4 * k, 4), SU, SU + 3, 64 * k, nt('wuk')))
    a("s_waitcnt vmcnt(36)")
    st()
    layernorm(a, 8, 208, 6)
    ev_arrive(a, E_XN)
    resolve(a)
    ev_wait(a, E_XN, 4, 12)
    st()
    AF = 160
    a("v_and_b32 v13, 3, v1")
    a("v_mul_u32_u24 v13, 1088, v13")
    a("v_lshlrev_b32 v14, 4, v3")
    a("s_lshl_b32 s10, s3, 8")
    a("v_add3_u32 v13, v13, v14, s10")
    for u in range(4):
        a("ds_read_b128 %s, v13 offset:%d" % (vr(AF + 4 * u, 4), XN + 64 * u))
    ACC = 176
    FX = 208
    a("s_waitcnt lgkmcnt(0)")
    for u in range(4):
        a("s_waitcnt vmcnt(%d)" % ((3 - u) * 8 + 4))
        unit8(a, LQ + 32 * u, FX if u == 0 else LQ + 32 * (u - 1), AF + 4 * u, ACC, u == 0)
    a.nop(8)
    a("s_lshl_b32 s10, s3, 11")
    a("v_lshlrev_b32 v13, 4, v2")
    a("v_add_u32 v13, s10, v13")
    exec_lo16(a)
    for t in range(8):
        a("ds_write_b128 v13, %s offset:%d" % (vr(ACC + 4 * t, 4), RED + 256 * t))
    exec_all(a)
    ev_arrive(a, E_Q)
    ev_wait(a, E_Q, 4, 12)
    st()
    a("v_lshlrev_b32 v13, 4, v1")
    for k in range(2):
        for w in range(4):
            a("ds_read_b128 %s, v13 offset:%d" % (vr(16 + 16 * k + 4 * w, 4), RED + 2048 * w + 1024 * k))
    a("s_mul_i32 s10, s3, 1280")
    a("v_lshlrev_b32 v15, 4, v2")
    a("v_lshl_add_u32 v14, v3, 1, v15")
    a("v_add_u32 v14, s10, v14")
    a("s_waitcnt lgkmcnt(0)")
    for k in range(2):
        B = 16 + 16 * k
        for b in range(4):
            a("v_add_f32 %s, %s, %s" % (v(B + b), v(B + b), v(B + 4 + b)))
            a("v_add_f32 %s, %s, %s" % (v(B + 8 + b), v(B + 8 + b), v(B + 12 + b)))
        for b in range(4):
            a("v_add_f32 %s, %s, %s" % (v(B + b), v(B + b), v(B + 8 + b)))
        a("v_cvt_pk_bf16_f32 %s, %s, %s" % (v(B + 4), v(B), v(B + 1)))
        a("v_cvt_pk_bf16_f32 %s, %s, %s" % (v(B + 5), v(B + 2), v(B + 3)))
        a("ds_write_b16 v14, %s offset:%d" % (v(B + 4), QL + 8 * k))
        a("ds_write_b16_d16_hi v14, %s offset:%d" % (v(B + 4), QL + 320 + 8 * k))
        a("ds_write_b16 v14, %s offset:%d" % (v(B + 5), QL + 640 + 8 * k))
        a("ds_write_b16_d16_hi v14, %s offset:%d" % (v(B + 5), QL + 960 + 8 * k))
    a("v_and_b32 v13, 3, v1")
    a("v_mul_u32_u24 v13, 320, v13")
    a("v_lshl_add_u32 v13, v3, 4, v13")
    a("v_add_u32 v13, s10, v13")
    a("s_waitcnt lgkmcnt(0)")
    for k in range(4):
        a("ds_read_b128 %s, v13 offset:%d" % (vr(48 + 4 * k, 4), QL + 64 * k))
    a("s_waitcnt vmcnt(0) lgkmcnt(0)")
    for k in range(4):
        a("v_mfma_f32_16x16x32_bf16 v[32:35], %s, %s, %s" % (vr(LU + 4 * k, 4), vr(48 + 4 * k, 4),
                                                            "0" if k == 0 else "v[32:35]"))
    a("v_lshlrev_b32 v13, 15, v2")
    a("v_lshlrev_b32 v14, 3, v3")
    a("s_lshl_b32 s10, s6, 10")
    a("s_lshl_b32 s11, s8, 1")
    a("s_add_u32 s10, s10, s11")
    a("v_add3_u32 v13, v13, v14, s10")
    a("v_cmp_gt_u32 vcc, 4, v2")
    a.nop(4)
    sc = f32hex(LOG2E * (128 ** -0.5))
    for r in range(4):
        a("v_mul_f32 %s, %s, %s" % (v(32 + r), sc, v(32 + r)))
    a("v_cvt_pk_bf16_f32 v36, v32, v33")
    a("v_cvt_pk_bf16_f32 v37, v34, v35")
    a("s_and_saveexec_b64 s[12:13], vcc")
    a("buffer_store_dwordx2 v[36:37], v13, s[%d:%d], 0 offen offset:%d sc1" % (SO, SO + 3, QABS))
    a("s_mov_b64 exec, -1")
    go_issue_slow(a, 38)
    a("s_waitcnt vmcnt(0)")
    go_check_slow(a, 38)
    st()
    ev_last(a, E_QA, 4, 12, "c_qa_nl")
    gsignal_rep(a, SLOT_A, 12)
    a.label("c_qa_nl")
    a("s_cmp_lg_u32 s3, 0")
    a("s_cbranch_scc1 c_waitA")
    gpoll_rep(a, SLOT_A, 256 // NSH, 12, 13)
    ev_arrive(a, E_A)
    a("s_branch c_gotA")
    a.label("c_waitA")
    ev_wait(a, E_A, 1, 12)
    a.label("c_gotA")
    st()
    QF = 16
    a("s_lshr_b32 s8, s2, 6")
    a("s_lshl_b32 s10, s8, 15")
    a("s_lshl_b32 s11, s3, 8")
    a("s_add_u32 s10, s10, s11")
    a("v_lshlrev_b32 v12, 10, v2")
    a("v_lshlrev_b32 v13, 4, v3")
    a("v_add3_u32 v12, v12, v13, s10")
    a("s_mov_b32 s11, 16384")
    for ht in range(2):
        for k in range(4):
            a("buffer_load_dwordx4 %s, v12, s[%d:%d], %s offen offset:%d sc1" % (
                vr(QF + 16 * ht + 4 * k, 4), SO, SO + 3, "0" if ht == 0 else "s11", QABS + 64 * k))
    ev_arrive(a, E_QL)
    ev_wait(a, E_KV, 4, 14)
    st()
    AFQ = 48
    a("v_mul_u32_u24 v14, %d, v2" % RS)
    a("s_lshl_b32 s10, s3, 8")
    a("v_add3_u32 v14, v14, v13, s10")
    a("v_add_u32 v14, %d, v14" % CKV)
    for T in range(4):
        for k in range(4):
            a("ds_read_b128 %s, v14 offset:%d" % (vr(AFQ + 16 * T + 4 * k, 4), T * 16 * RS + k * 64))
    SA = 112
    a("s_waitcnt vmcnt(0)")
    for T in range(4):
        a("s_waitcnt lgkmcnt(%d)" % (12 - 4 * T))
        for k in range(4):
            for ht in range(2):
                a("v_mfma_f32_16x16x32_bf16 %s, %s, %s, %s" % (
                    vr(SA + 16 * ht + 4 * T, 4), vr(AFQ + 16 * T + 4 * k, 4), vr(QF + 16 * ht + 4 * k, 4),
                    "0" if k == 0 else vr(SA + 16 * ht + 4 * T, 4)))
    a.nop(8)
    a("s_lshl_b32 s10, s3, 13")
    a("v_lshlrev_b32 v12, 4, v1")
    a("v_add_u32 v12, %d, v12" % SP)
    a("v_add_u32 v13, s10, v12")
    for ht in range(2):
        for T in range(4):
            a("ds_write_b128 v13, %s offset:%d" % (vr(SA + 16 * ht + 4 * T, 4), (ht * 4 + T) * 1024))
    ev_arrive(a, E_S)
    ev_wait(a, E_S, 4, 14)
    st()
    a("s_lshr_b32 s9, s3, 1")
    a("s_and_b32 s10, s3, 1")
    a("s_lshl_b32 s11, s9, 12")
    a("v_add_u32 v13, s11, v12")
    SR = 16
    for src in range(4):
        for T in range(4):
            a("ds_read_b128 %s, v13 offset:%d" % (vr(SR + 16 * src + 4 * T, 4), src * 8192 + T * 1024))
    a("v_lshrrev_b32 v14, 2, v2")
    a("v_lshl_add_u32 v14, v3, 2, v14")
    a("v_mul_u32_u24 v14, %d, v14" % RS)
    a("v_and_b32 v15, 3, v2")
    a("v_lshlrev_b32 v15, 3, v15")
    a("s_lshl_b32 s11, s10, 9")
    a("v_add3_u32 v14, v14, v15, s11")
    a("v_add_u32 v14, %d, v14" % CKV)
    a("s_waitcnt lgkmcnt(8)")
    for q in range(16):
        a("v_add_f32 %s, %s, %s" % (v(SR + q), v(SR + q), v(SR + 16 + q)))
    a("s_waitcnt lgkmcnt(0)")
    for q in range(16):
        a("v_add_f32 %s, %s, %s" % (v(SR + 32 + q), v(SR + 32 + q), v(SR + 48 + q)))
    for q in range(16):
        a("v_add_f32 %s, %s, %s" % (v(SR + q), v(SR + q), v(SR + 32 + q)))
    TRB = 96
    groups = [(ks, cq) for cq in range(4) for ks in range(2)]

    def issue(k):
        ks, cq = groups[k]
        buf = TRB + 16 * (k % 4)
        for q in range(4):
            ct = 4 * cq + q
            off = ks * 32 * RS + ct * 32
            a("ds_read_b64_tr_b16 %s, v14 offset:%d" % (vr(buf + 4 * q, 2), off))
            a("ds_read_b64_tr_b16 %s, v14 offset:%d" % (vr(buf + 4 * q + 2, 2), off + 16 * RS))
    issue(0)
    a("v_max3_f32 v8, %s, %s, %s" % (v(SR), v(SR + 1), v(SR + 2)))
    for q in range(3, 15, 2):
        a("v_max3_f32 v8, v8, %s, %s" % (v(SR + q), v(SR + q + 1)))
    a("v_max_f32 v8, v8, %s" % v(SR + 15))
    red_g(a, "v_max_f32", 8, 9)
    for q in range(16):
        a("v_sub_f32 %s, %s, v8" % (v(SR + q), v(SR + q)))
    for q in range(16):
        a("v_exp_f32 %s, %s" % (v(SR + q), v(SR + q)))
    a.nop(1)
    PF = 32
    for q in range(8):
        a("v_cvt_pk_bf16_f32 %s, %s, %s" % (v(PF + q), v(SR + 2 * q), v(SR + 2 * q + 1)))
    a("v_add_f32 v9, %s, %s" % (v(SR), v(SR + 1)))
    for q in range(2, 16):
        a("v_add_f32 v9, v9, %s" % v(SR + q))
    red_g(a, "v_add_f32", 9, 10)
    ACP = 160

    def compute(k):
        ks, cq = groups[k]
        buf = TRB + 16 * (k % 4)
        for q in range(4):
            ct = 4 * cq + q
            a("v_mfma_f32_16x16x32_bf16 %s, %s, %s, %s" % (vr(ACP + 4 * ct, 4), vr(buf + 4 * q, 4), vr(PF + 4 * ks, 4),
                                                          "0" if ks == 0 else vr(ACP + 4 * ct, 4)))
    for k in range(8):
        if k + 1 < 8:
            issue(k + 1)
            a("s_waitcnt lgkmcnt(8)")
        else:
            a("s_waitcnt lgkmcnt(0)")
        compute(k)
    a("s_and_b32 s11, s2, 63")
    a("s_lshl_b32 s12, s8, 5")
    a("s_lshl_b32 s13, s9, 4")
    a("s_add_u32 s12, s12, s13")
    a("s_cmp_lg_u32 s10, 0")
    a("s_cbranch_scc1 c_nostats")
    a("s_lshl_b32 s13, s12, 9")
    a("s_lshl_b32 s4, s11, 3")
    a("s_add_u32 s13, s13, s4")
    a("s_add_u32 s13, s13, 0x%x" % STATS)
    a("v_lshlrev_b32 v12, 9, v2")
    a("v_add_u32 v12, s13, v12")
    exec_lo16(a)
    a("buffer_store_dwordx2 v[8:9], v12, s[%d:%d], 0 offen sc1" % (SO, SO + 3))
    exec_all(a)
    a.label("c_nostats")
    a("s_lshl_b32 s13, s12, 13")
    a("s_lshl_b32 s4, s11, 7")
    a("s_add_u32 s13, s13, s4")
    a("s_lshl_b32 s4, s10, 22")
    a("s_add_u32 s13, s13, s4")
    a("s_add_u32 s13, s13, 0x%x" % PART)
    a("v_lshlrev_b32 v12, 13, v2")
    a("v_lshlrev_b32 v13, 4, v3")
    a("v_add3_u32 v12, v12, v13, s13")
    a.nop(2)
    for p in range(8):
        for hf in range(2):
            ct = 2 * p + hf
            a("v_cvt_pk_bf16_f32 %s, %s, %s" % (v(16 + 4 * p + 2 * hf), v(ACP + 4 * ct), v(ACP + 4 * ct + 1)))
            a("v_cvt_pk_bf16_f32 %s, %s, %s" % (v(16 + 4 * p + 2 * hf + 1), v(ACP + 4 * ct + 2), v(ACP + 4 * ct + 3)))
    for p in range(8):
        a("s_mov_b32 s4, 0x%x" % ((p >> 1) * 0x100000))
        a("buffer_store_dwordx4 %s, v12, s[%d:%d], s4 offen offset:%d sc1" % (vr(16 + 4 * p, 4), SO, SO + 3, (p & 1) * 64))
    a("s_waitcnt vmcnt(0)")
    st()
    ev_last(a, E_P, 4, 12, "c_p_nl")
    gsignal_rep(a, SLOT_C, 12)
    a.label("c_p_nl")
    if EPOCH:
        a("s_cmp_lg_u32 s3, 0")
        a("s_cbranch_scc1 c_noclean")
        a("s_cmp_ge_u32 s2, 128")
        a("s_cbranch_scc1 c_noclean")
        a("s_lshl_b32 s4, s2, 11")
        a("s_add_u32 s4, s4, 0x%x" % (CNT + 16))
        a("s_sub_u32 s4, s4, s%d" % S_PAR)
        a("v_mov_b32 v12, s4")
        for i in range(4):
            a("v_mov_b32 v%d, 0" % (16 + i))
        a("s_mov_b64 exec, 1")
        a("buffer_store_dwordx4 v[16:19], v12, s[%d:%d], 0 offen sc1" % (SO, SO + 3))
        a("s_mov_b64 exec, -1")
        a.label("c_noclean")
    a("s_cmp_lg_u32 s3, 3")
    a("s_cbranch_scc1 c_end")
    a("s_cmp_ge_u32 s2, 224")
    a("s_cbranch_scc1 c_end")
    a("s_lshr_b32 s8, s2, 2")
    a("s_and_b32 s9, s2, 3")
    srd(a, SW, P_WD, 1792 * 1024)
    LD = 64
    a("s_lshr_b32 s10, s8, 1")
    a("s_lshl_b32 s10, s10, 16")
    a("s_and_b32 s11, s8, 1")
    a("s_lshl_b32 s11, s11, 11")
    a("s_add_u32 s10, s10, s11")
    a("s_lshl_b32 s11, s9, 8")
    a("s_add_u32 s10, s10, s11")
    a("v_and_b32 v6, 1, v3")
    a("v_lshlrev_b32 v6, 15, v6")
    a("v_lshrrev_b32 v7, 1, v3")
    a("v_lshl_add_u32 v6, v7, 10, v6")
    a("v_lshlrev_b32 v7, 4, v2")
    a("v_add3_u32 v6, v6, v7, s10")
    for i in range(8):
        a("s_mov_b32 s13, %d" % (4096 * i))
        a("buffer_load_dwordx4 %s, v6, s[%d:%d], s13 offen%s" % (vr(LD + 4 * i, 4), SW, SW + 3, nt('wd')))
    a("s_lshr_b32 s10, s8, 1")
    a("s_lshl_b32 s10, s10, 11")
    a("s_add_u32 s10, s10, 0x%x" % (CNT + SLOT_G))
    a("s_add_u32 s10, s10, s%d" % S_PAR)
    a("v_mov_b32 v12, s10")
    gpoll(a, 16, 12, 13)
    GL = 16
    a("v_and_b32 v8, 31, v1")
    a("v_lshrrev_b32 v9, 5, v1")
    a("v_mul_u32_u24 v9, %d, v9" % (8 * 1792))
    a("s_lshl_b32 s10, s8, 5")
    a("v_add3_u32 v9, v9, v8, s10")
    a("v_lshlrev_b32 v9, 4, v9")
    a("v_add_u32 v9, 0x%x, v9" % GU)
    for kk in range(4):
        for mat in range(2):
            a("s_mov_b32 s12, 0x%x" % ((kk * 2 + mat) * 1792 * 16))
            a("buffer_load_dwordx4 %s, v9, s[%d:%d], s12 offen sc1" % (vr(GL + 8 * kk + 4 * mat, 4), SO, SO + 3))
    a("s_waitcnt vmcnt(0)")
    for q in range(8):
        a("v_add_f32 %s, %s, %s" % (v(GL + q), v(GL + q), v(GL + 8 + q)))
        a("v_add_f32 %s, %s, %s" % (v(GL + 16 + q), v(GL + 16 + q), v(GL + 24 + q)))
    for q in range(8):
        a("v_add_f32 %s, %s, %s" % (v(GL + q), v(GL + q), v(GL + 16 + q)))
    for q in range(8):
        a("v_mov_b32 %s, %s" % (v(GL + 8 + q), v(GL + q)))
    a.nop(2)
    for q in range(8):
        a("v_permlane32_swap_b32 %s, %s" % (v(GL + q), v(GL + 8 + q)))
    a.nop(1)
    for q in range(8):
        a("v_add_f32 %s, %s, %s" % (v(GL + q), v(GL + q), v(GL + 8 + q)))
    for p in range(4):
        a("v_cvt_pk_bf16_f32 %s, %s, %s" % (v(24 + p), v(GL + 2 * p), v(GL + 2 * p + 1)))
    for p in range(4):
        a("v_lshlrev_b32 %s, 16, %s" % (v(GL + 2 * p), v(24 + p)))
        a("v_and_b32 %s, 0xffff0000, %s" % (v(GL + 2 * p + 1), v(24 + p)))
    for b in range(4):
        silu_inplace(a, GL + b, 28 + b)
    a("v_cvt_pk_bf16_f32 v24, v16, v17")
    a("v_cvt_pk_bf16_f32 v25, v18, v19")
    a("v_lshlrev_b32 v16, 16, v24")
    a("v_and_b32 v17, 0xffff0000, v24")
    a("v_lshlrev_b32 v18, 16, v25")
    a("v_and_b32 v19, 0xffff0000, v25")
    for b in range(4):
        a("v_mul_f32 %s, %s, %s" % (v(16 + b), v(16 + b), v(20 + b)))
    a("v_cvt_pk_bf16_f32 v24, v16, v17")
    a("v_cvt_pk_bf16_f32 v25, v18, v19")
    a("v_lshlrev_b32 v8, 1, v8")
    a("v_add_u32 v8, %d, v8" % HA)
    a("ds_write_b16 v8, v24")
    a("ds_write_b16_d16_hi v8, v24 offset:80")
    a("ds_write_b16 v8, v25 offset:160")
    a("ds_write_b16_d16_hi v8, v25 offset:240")
    a("v_and_b32 v9, 3, v1")
    a("v_mul_u32_u24 v9, 80, v9")
    a("v_lshl_add_u32 v9, v3, 4, v9")
    a("v_add_u32 v9, %d, v9" % HA)
    a("s_waitcnt lgkmcnt(0)")
    a("ds_read_b128 v[8:11], v9")
    a("s_waitcnt lgkmcnt(0)")
    unit8(a, LD, 96, 8, 128, True)
    a("s_lshl_b32 s10, s8, 13")
    a("s_lshl_b32 s11, s9, 11")
    a("s_add_u32 s10, s10, s11")
    a("s_add_u32 s10, s10, 0x%x" % YPART)
    a("v_add_u32 v6, s10, v7")
    a.nop(8)
    exec_lo16(a)
    for t in range(8):
        a("buffer_store_dwordx4 %s, v6, s[%d:%d], 0 offen offset:%d sc1" % (vr(128 + 4 * t, 4), SO, SO + 3, 256 * t))
    exec_all(a)
    a("s_waitcnt vmcnt(0)")
    gsignal_rep(a, SLOT_D, 12)
    st()
    a.label("c_end")
    st.n = max(st.n, 9)
    st.flush(13)
    a("s_endpgm")


def gen_xwave(a):
    st = Stamps(a)
    st()
    a("s_sub_u32 s9, s3, 4")
    a("s_cmp_ge_u32 s2, %d" % NZERO)
    a("s_cbranch_scc1 x_nozero")
    a("s_cmp_lg_u32 s9, 1")
    a("s_cbranch_scc1 x_nozero")
    resolve(a)
    a("s_cmp_lg_u32 s%d, 0" % S_FAST)
    a("s_cbranch_scc1 x_nozero2")
    a("s_lshl_b32 s4, s2, 15")
    a("s_add_u32 s4, s4, 0x%x" % CNT)
    a("v_lshlrev_b32 v6, 11, v2")
    a("v_add_u32 v6, s4, v6")
    for i in range(4):
        a("v_mov_b32 v%d, 0" % (8 + i))
    a("s_mov_b64 exec, 0xffff")
    a("buffer_store_dwordx4 v[8:11], v6, s[%d:%d], 0 offen sc1" % (SO, SO + 3))
    a("s_waitcnt vmcnt(0)")
    if DEBUG:
        a("s_memrealtime s[90:91]")
    a("s_mov_b64 exec, 1")
    a("buffer_atomic_add %s, %s, s[%d:%d], 0 offen sc1" % (v(VONE), v(VZ), SD, SD + 3))
    a("s_mov_b64 exec, -1")
    if DEBUG:
        a("s_waitcnt vmcnt(0)")
        a("s_memrealtime s[92:93]")
    a.label("x_nozero2")
    a("s_mov_b32 s13, 1")
    a("s_branch x_zdone")
    a.label("x_nozero")
    a("s_mov_b32 s13, 0")
    a.label("x_zdone")
    a("s_mov_b32 s95, s13")
    if XDELAY:
        a("s_sleep %d" % XDELAY)
    a("s_lshl_b32 s10, s2, 16")
    srd(a, SC, P_CKV, 65536, off_sgpr=10)
    srd(a, SW, P_WUV, 4194304)
    srd(a, SU, P_WO, 4194304)
    a("v_lshlrev_b32 v6, 4, v1")

    def dma(row0_sgpr, n):
        a("s_mul_i32 s10, s%d, %d" % (row0_sgpr, RS))
        a("s_add_u32 s10, s10, %d" % CKV)
        a("s_lshl_b32 s11, s%d, 10" % row0_sgpr)
        for i in range(n):
            a("s_add_u32 m0, s10, %d" % (i * RS))
            a("s_add_u32 s12, s11, %d" % (i * 1024))
            a("buffer_load_dwordx4 v6, s[%d:%d], s12 offen%s lds" % (SC, SC + 3, " nt" if NT else ""))

    WUV = 240
    WO = 48

    def k3_loads():
        a("s_lshr_b32 s10, s9, 1")
        a("s_and_b32 s11, s9, 1")
        a("s_lshl_b32 s12, s7, 19")
        a("s_lshl_b32 s10, s10, 18")
        a("s_add_u32 s12, s12, s10")
        a("s_lshl_b32 s10, s6, 8")
        a("s_add_u32 s12, s12, s10")
        a("s_lshl_b32 s11, s11, 7")
        a("s_add_u32 s12, s12, s11")
        a("v_lshlrev_b32 v7, 15, v3")
        a("v_lshlrev_b32 v8, 3, v2")
        a("v_add3_u32 v7, v7, v8, s12")
        for i in range(8):
            a("s_mov_b32 s10, 0x%x" % ((16 * (i >> 2) + (i & 3)) * 8192))
            a("buffer_load_dwordx2 %s, v7, s[%d:%d], s10 offen%s" % (vr(WUV + 2 * i, 2), SW, SW + 3, nt('wuv')))
        a("s_lshl_b32 s12, s6, 17")
        a("s_lshl_b32 s10, s9, 8")
        a("s_add_u32 s12, s12, s10")
        a("v_lshlrev_b32 v7, 13, v3")
        a("v_lshlrev_b32 v8, 4, v2")
        a("v_add3_u32 v7, v7, v8, s12")
        for u in range(4):
            for i in range(8):
                a("s_mov_b32 s10, 0x%x" % (u * 32768 + (i >> 2) * 4096))
                a("buffer_load_dwordx4 %s, v7, s[%d:%d], s10 offen offset:%d%s" % (
                    vr(WO + 32 * u + 4 * i, 4), SU, SU + 3, (i & 3) * 1024, nt('wo')))

    a("s_cmp_ge_u32 s9, 2")
    a("s_cbranch_scc1 x_hi")
    a("s_lshl_b32 s8, s9, 3")
    dma(8, 8)
    a("s_cmp_eq_u32 s9, 0")
    a("s_cselect_b32 s10, s%d, s%d" % (P_WG, P_WU))
    a("s_cselect_b32 s11, s%d, s%d" % (P_WG + 1, P_WU + 1))
    srd(a, SX, 10, 512 * 3584)
    a("s_and_b32 s13, s2, 7")
    a("s_lshr_b32 s8, s2, 3")
    a("s_mul_i32 s10, s13, %d" % (64 * 3584))
    a("s_lshl_b32 s11, s8, 7")
    a("s_add_u32 s10, s10, s11")
    a("v_mul_u32_u24 v7, %d, v3" % (8 * 3584))
    a("v_lshlrev_b32 v8, 3, v2")
    a("v_add3_u32 v7, v7, v8, s10")
    LF = 16
    for u in range(2):
        for i in range(8):
            a("s_mov_b32 s10, 0x%x" % ((32 * u + i) * 3584))
            a("buffer_load_dwordx2 %s, v7, s[%d:%d], s10 offen%s" % (vr(LF + 16 * u + 2 * i, 2), SX, SX + 3, nt('ffn')))
    if not K3LATE:
        k3_loads()
    a("s_waitcnt vmcnt(%d)" % (16 if K3LATE else 56))
    ev_arrive(a, E_KV)
    a("s_cmp_lg_u32 s95, 0")
    a("s_cbranch_scc1 x_res1")
    resolve(a)
    a.label("x_res1")
    st()
    ev_wait(a, E_XN, 4, 10)
    a("v_and_b32 v10, 3, v1")
    a("v_mul_u32_u24 v10, 1088, v10")
    a("v_lshlrev_b32 v11, 4, v3")
    a("s_lshl_b32 s10, s13, 7")
    a("v_add3_u32 v10, v10, v11, s10")
    for u in range(2):
        a("ds_read_b128 %s, v10 offset:%d" % (vr(176 + 4 * u, 4), XN + 64 * u))
    a("s_waitcnt lgkmcnt(0)")
    for u in range(2):
        a("s_waitcnt vmcnt(%d)" % ((0 if K3LATE else 40) + (1 - u) * 8))
        unit4(a, LF + 16 * u, 184 + 16 * u, 176 + 4 * u, 216, u == 0)
    a("s_cmp_ge_u32 s2, 224")
    a("s_cbranch_scc1 x_join")
    a("s_lshl_b32 s10, s13, 1")
    a("s_add_u32 s10, s10, s9")
    a("s_mul_i32 s10, s10, %d" % (1792 * 16))
    a("s_lshl_b32 s11, s8, 10")
    a("s_add_u32 s10, s10, s11")
    a("s_add_u32 s10, s10, 0x%x" % GU)
    a("v_lshlrev_b32 v10, 4, v2")
    a("v_add_u32 v10, s10, v10")
    a.nop(8)
    exec_lo16(a)
    for t in range(4):
        a("buffer_store_dwordx4 %s, v10, s[%d:%d], 0 offen offset:%d sc1" % (vr(216 + 4 * t, 4), SO, SO + 3, 256 * t))
    exec_all(a)
    go_issue_slow(a, 11)
    a("s_waitcnt vmcnt(0)")
    go_check_slow(a, 11)
    gsignal(a, 8, 10, SLOT_G)
    a("s_branch x_join")
    a.label("x_hi")
    a("s_sub_u32 s8, s9, 2")
    a("s_mul_i32 s8, s8, 24")
    a("s_add_u32 s8, s8, 16")
    dma(8, 24)
    if not K3LATE:
        k3_loads()
    a("s_waitcnt vmcnt(%d)" % (0 if K3LATE else 40))
    ev_arrive(a, E_KV)
    resolve(a)
    st()
    a.label("x_join")
    st()
    if K3LATE:
        ev_wait(a, E_QL, 4, 10)
        k3_loads()
    ev_wait(a, E_P, 4, 10)
    a("s_cmp_lg_u32 s9, 0")
    a("s_cbranch_scc1 x_waitC")
    gpoll_rep(a, SLOT_C, 256 // NSH, 10, 11)
    ev_arrive(a, E_C)
    a("s_branch x_gotC")
    a.label("x_waitC")
    ev_wait(a, E_C, 1, 10)
    a.label("x_gotC")
    st()
    STR = 176
    a("s_lshl_b32 s10, s9, 5")
    a("s_add_u32 s10, s10, s6")
    a("s_lshl_b32 s11, s10, 9")
    a("s_add_u32 s11, s11, 0x%x" % STATS)
    a("v_and_b32 v10, 1, v2")
    a("v_lshlrev_b32 v10, 8, v10")
    a("v_lshl_add_u32 v10, v3, 6, v10")
    a("v_add_u32 v10, s11, v10")
    for i in range(4):
        a("buffer_load_dwordx4 %s, v10, s[%d:%d], 0 offen offset:%d sc1" % (vr(STR + 4 * i, 4), SO, SO + 3, 16 * i))
    LP = 16
    a("s_lshl_b32 s11, s10, 13")
    a("s_lshl_b32 s12, s7, 20")
    a("s_add_u32 s11, s11, s12")
    a("s_add_u32 s11, s11, 0x%x" % PART)
    a("v_lshrrev_b32 v10, 3, v2")
    a("v_lshlrev_b32 v10, 12, v10")
    a("v_lshl_add_u32 v10, v3, 10, v10")
    a("v_and_b32 v11, 7, v2")
    a("v_lshlrev_b32 v11, 4, v11")
    a("v_add3_u32 v10, v10, v11, s11")
    for i in range(8):
        a("buffer_load_dwordx4 %s, v10, s[%d:%d], 0 offen offset:%d sc1" % (vr(LP + 4 * i, 4), SO, SO + 3, 128 * i))
    a("s_waitcnt vmcnt(8)")
    a("v_max3_f32 v6, %s, %s, %s" % (v(STR), v(STR + 2), v(STR + 4)))
    a("v_max3_f32 v6, v6, %s, %s" % (v(STR + 6), v(STR + 8)))
    a("v_max3_f32 v6, v6, %s, %s" % (v(STR + 10), v(STR + 12)))
    a("v_max_f32 v6, v6, %s" % v(STR + 14))
    red_g(a, "v_max_f32", 6, 7)
    a.nop(2)
    a("v_max_f32_dpp v6, v6, v6 quad_perm:[1,0,3,2] row_mask:0xf bank_mask:0xf")
    for i in range(8):
        a("v_sub_f32 %s, %s, v6" % (v(STR + 2 * i), v(STR + 2 * i)))
    for i in range(8):
        a("v_exp_f32 %s, %s" % (v(STR + 2 * i), v(STR + 2 * i)))
    a.nop(1)
    a("v_mul_f32 v7, %s, %s" % (v(STR), v(STR + 1)))
    for i in range(1, 8):
        a("v_fma_f32 v7, %s, %s, v7" % (v(STR + 2 * i), v(STR + 2 * i + 1)))
    red_g(a, "v_add_f32", 7, 8)
    a.nop(2)
    a("v_add_f32_dpp v7, v7, v7 quad_perm:[1,0,3,2] row_mask:0xf bank_mask:0xf")
    a("v_rcp_f32 v7, v7")
    a.nop(1)
    for i in range(8):
        a("v_mul_f32 %s, %s, v7" % (v(STR + 2 * i), v(STR + 2 * i)))
    AW = 12
    for p in range(4):
        a("v_cvt_pk_bf16_f32 %s, %s, %s" % (v(AW + p), v(STR + 4 * p), v(STR + 4 * p + 2)))
    FX = 176
    ACC = 208
    a("s_waitcnt vmcnt(0)")
    unit8(a, LP, FX, AW, ACC, True)
    a.nop(8)
    for t in range(8):
        a("v_add_f32_dpp %s, %s, %s row_ror:8 row_mask:0xf bank_mask:0xf" % (v(16 + t), v(ACC + 4 * t + 1), v(ACC + 4 * t)))
    for p in range(4):
        a("v_cvt_pk_bf16_f32 %s, %s, %s" % (v(24 + p), v(16 + 2 * p), v(16 + 2 * p + 1)))
    a("s_mul_i32 s10, s9, 160")
    a("v_lshlrev_b32 v10, 4, v2")
    a("v_add_u32 v10, s10, v10")
    a("v_add_u32 v10, %d, v10" % LAT)
    a("s_mov_b64 exec, 0xff")
    a("ds_write_b128 v10, v[24:27]")
    exec_all(a)
    ev_arrive(a, E_L)
    ev_wait(a, E_L, 4, 10)
    a("s_lshr_b32 s10, s9, 1")
    a("s_and_b32 s11, s9, 1")
    a("v_and_b32 v10, 3, v1")
    a("v_mul_u32_u24 v11, 160, v10")
    a("v_lshl_add_u32 v11, v3, 4, v11")
    a("s_lshl_b32 s12, s10, 6")
    a("v_add_u32 v11, s12, v11")
    a("v_add_u32 v11, %d, v11" % LAT)
    a("ds_read_b128 v[12:15], v11")
    a("s_waitcnt lgkmcnt(0)")
    unit4(a, WUV, FX, 12, ACC, True)
    a("s_lshl_b32 s12, s10, 11")
    a("s_lshl_b32 s13, s11, 8")
    a("s_add_u32 s12, s12, s13")
    a("v_lshlrev_b32 v11, 4, v2")
    a("v_add_u32 v11, s12, v11")
    a("v_add_u32 v11, %d, v11" % CT)
    a.nop(8)
    exec_lo16(a)
    for t in range(4):
        for b in range(4):
            a("ds_write_b32 v11, %s offset:%d" % (v(ACC + 4 * t + b), b * 512 + 4 * t))
    exec_all(a)
    ev_arrive(a, E_X)
    ev_wait(a, E_X, 4, 11)
    a("v_lshlrev_b32 v11, 9, v10")
    a("v_lshl_add_u32 v11, v3, 5, v11")
    a("v_add_u32 v11, %d, v11" % CT)
    for u in range(4):
        for kh in range(2):
            for hf in range(2):
                a("ds_read_b128 %s, v11 offset:%d" % (vr(176 + 16 * (u & 1) + 8 * kh + 4 * hf, 4) if False else
                                                     vr(176 + 16 * u - 0 + 8 * kh + 4 * hf, 4), kh * 2048 + u * 128 + hf * 16))
    a("s_waitcnt lgkmcnt(0)")
    for u in range(4):
        B = 176 + 16 * u
        for q in range(8):
            a("v_add_f32 %s, %s, %s" % (v(B + q), v(B + q), v(B + 8 + q)))
    for u in range(4):
        B = 176 + 16 * u
        for q in range(4):
            a("v_cvt_pk_bf16_f32 %s, %s, %s" % (v(240 + 4 * u + q), v(B + 2 * q), v(B + 2 * q + 1)))
    ACC5 = 208
    for u in range(4):
        unit8(a, WO + 32 * u, 16 if u == 0 else WO + 32 * (u - 1), 240 + 4 * u, ACC5 if False else 176, u == 0)
    a("s_lshl_b32 s10, s2, 13")
    a("s_lshl_b32 s11, s9, 11")
    a("s_add_u32 s10, s10, s11")
    a("s_add_u32 s10, s10, 0x%x" % SPART)
    a("v_lshlrev_b32 v10, 4, v2")
    a("v_add_u32 v10, s10, v10")
    a.nop(8)
    exec_lo16(a)
    for t in range(8):
        a("buffer_store_dwordx4 %s, v10, s[%d:%d], 0 offen offset:%d sc1" % (vr(176 + 4 * t, 4), SO, SO + 3, 256 * t))
    exec_all(a)
    a("s_waitcnt vmcnt(0)")
    st()
    ev_last(a, E_SP, 4, 10, "x_sp_nl")
    gsignal_rep(a, SLOT_D, 10)
    a.label("x_sp_nl")
    a("s_cmp_ge_u32 s2, 128")
    a("s_cbranch_scc1 x_end")
    srd(a, SW, P_WS, 256 * 8192, off=SPART)
    srd(a, SU, P_WS, 56 * 8192, off=YPART)
    srd(a, SX, P_X, 4096)
    srd(a, SC, P_OUT, 4096)
    a("s_lshl_b32 s10, s9, 6")
    a("v_add_u32 v6, s10, v1")
    a("v_and_b32 v7, 3, v6")
    a("v_lshrrev_b32 v8, 2, v6")
    a("s_lshl_b32 s10, s2, 6")
    a("v_lshlrev_b32 v9, 4, v7")
    a("v_add_u32 v9, s10, v9")
    a("v_lshlrev_b32 v10, 15, v8")
    a("v_add_u32 v10, v10, v9")
    a("v_lshlrev_b32 v11, 13, v8")
    a("v_add_u32 v11, v11, v9")
    a("v_lshrrev_b32 v12, 2, v1")
    a("s_lshl_b32 s10, s2, 2")
    a("v_add_u32 v12, s10, v12")
    a("v_and_b32 v13, 15, v12")
    a("v_lshrrev_b32 v14, 4, v12")
    a("v_and_b32 v14, 7, v14")
    a("v_lshrrev_b32 v15, 7, v12")
    a("v_lshlrev_b32 v15, 7, v15")
    a("v_lshl_add_u32 v15, v13, 3, v15")
    a("v_add_u32 v15, v15, v14")
    a("v_and_b32 v12, 3, v1")
    a("v_lshl_add_u32 v15, v12, 9, v15")
    a("v_lshlrev_b32 v15, 1, v15")
    a("v_and_b32 v15, 0xfff, v15")
    a("buffer_load_ushort v13, v15, s[%d:%d], 0 offen" % (SX, SX + 3))
    a("s_cmp_lg_u32 s9, 0")
    a("s_cbranch_scc1 x_waitD")
    gpoll_rep(a, SLOT_D, 480 // NSH, 16, 17)
    ev_arrive(a, E_D)
    if EPOCH:
        a("s_cmp_lg_u32 s2, 0")
        a("s_cbranch_scc1 x_gotD")
        a("v_mov_b32 v16, 0x%x" % MAGIC0)
        a("v_mov_b32 v17, 0x%x" % MAGIC1)
        a("v_mov_b32 v18, s%d" % (S_REC + 2))
        a("v_not_b32 v19, v18")
        a("v_mov_b32 v20, 0x%x" % CTL)
        a("s_mov_b64 exec, 1")
        a("buffer_store_dwordx4 v[16:19], v20, s[%d:%d], 0 offen sc1" % (SO, SO + 3))
        a("s_mov_b64 exec, -1")
    a("s_branch x_gotD")
    a.label("x_waitD")
    ev_wait(a, E_D, 1, 16)
    a.label("x_gotD")
    st()
    a("s_mov_b32 s13, 8192")
    a("s_mov_b32 s12, 16384")
    a("s_mov_b32 s11, 24576")
    a("buffer_load_dwordx4 v[16:19], v10, s[%d:%d], 0 offen sc1" % (SW, SW + 3))
    a("buffer_load_dwordx4 v[20:23], v10, s[%d:%d], s13 offen sc1" % (SW, SW + 3))
    a("buffer_load_dwordx4 v[24:27], v10, s[%d:%d], s12 offen sc1" % (SW, SW + 3))
    a("buffer_load_dwordx4 v[28:31], v10, s[%d:%d], s11 offen sc1" % (SW, SW + 3))
    a("buffer_load_dwordx4 v[32:35], v11, s[%d:%d], 0 offen sc1" % (SU, SU + 3))
    a("s_waitcnt vmcnt(0)")
    for q in range(4):
        a("v_add_f32 %s, %s, %s" % (v(16 + q), v(16 + q), v(20 + q)))
        a("v_add_f32 %s, %s, %s" % (v(24 + q), v(24 + q), v(28 + q)))
        a("v_mov_b32 %s, %s" % (v(20 + q), v(32 + q)))
    for q in range(4):
        a("v_add_f32 %s, %s, %s" % (v(16 + q), v(16 + q), v(24 + q)))
    a.nop(2)
    for q in range(8):
        a("v_add_f32_dpp %s, %s, %s row_ror:8 row_mask:0xf bank_mask:0xf" % (v(24 + q), v(16 + q), v(16 + q)))
    a.nop(2)
    for q in range(8):
        a("v_add_f32_dpp %s, %s, %s row_ror:4 row_mask:0xf bank_mask:0xf" % (v(16 + q), v(24 + q), v(24 + q)))
    for q in range(8):
        a("v_mov_b32 %s, %s" % (v(24 + q), v(16 + q)))
    a.nop(2)
    for q in range(8):
        a("v_permlane16_swap_b32 %s, %s" % (v(16 + q), v(24 + q)))
    a.nop(1)
    for q in range(8):
        a("v_add_f32 %s, %s, %s" % (v(16 + q), v(16 + q), v(24 + q)))
    for q in range(8):
        a("v_mov_b32 %s, %s" % (v(24 + q), v(16 + q)))
    a.nop(2)
    for q in range(8):
        a("v_permlane32_swap_b32 %s, %s" % (v(16 + q), v(24 + q)))
    a.nop(1)
    for q in range(8):
        a("v_add_f32 %s, %s, %s" % (v(16 + q), v(16 + q), v(24 + q)))
    a("s_lshl_b32 s10, s9, 7")
    a("v_lshlrev_b32 v14, 5, v7")
    a("v_add_u32 v14, s10, v14")
    a("v_add_u32 v14, %d, v14" % FIN)
    a("s_mov_b64 exec, 0xf")
    a("ds_write_b128 v14, v[16:19]")
    a("ds_write_b128 v14, v[20:23] offset:16")
    exec_all(a)
    ev_arrive(a, E_F)
    a("s_cmp_lg_u32 s9, 0")
    a("s_cbranch_scc1 x_end")
    ev_wait(a, E_F, 4, 14)
    exec_lo16(a)
    a("v_lshrrev_b32 v14, 2, v1")
    a("v_lshlrev_b32 v14, 5, v14")
    a("v_lshl_add_u32 v14, v12, 2, v14")
    a("v_add_u32 v14, %d, v14" % FIN)
    for w in range(4):
        a("ds_read_b32 %s, v14 offset:%d" % (v(16 + w), 128 * w))
        a("ds_read_b32 %s, v14 offset:%d" % (v(20 + w), 128 * w + 16))
    a("s_waitcnt vmcnt(0) lgkmcnt(0)")
    a("v_add_f32 v16, v16, v17")
    a("v_add_f32 v18, v18, v19")
    a("v_add_f32 v20, v20, v21")
    a("v_add_f32 v22, v22, v23")
    a("v_add_f32 v16, v16, v18")
    a("v_add_f32 v20, v20, v22")
    a("v_cvt_pk_bf16_f32 v24, v16, v20")
    a("v_lshlrev_b32 v16, 16, v24")
    a("v_and_b32 v20, 0xffff0000, v24")
    silu_inplace(a, 20, 25)
    a("v_cvt_pk_bf16_f32 v24, v20, v20")
    a("v_lshlrev_b32 v20, 16, v24")
    a("v_mul_f32 v16, v16, v20")
    a("v_cvt_pk_bf16_f32 v24, v16, v16")
    a("v_lshlrev_b32 v16, 16, v24")
    a("v_lshlrev_b32 v13, 16, v13")
    a("v_add_f32 v16, v16, v13")
    a("v_cvt_pk_bf16_f32 v24, v16, v16")
    a("buffer_store_short v24, v15, s[%d:%d], 0 offen" % (SC, SC + 3))
    exec_all(a)
    st()
    a.label("x_end")
    st.n = max(st.n, 12)
    st.flush(13)
    a("s_endpgm")


def gen_main(a):
    name = "fused_kernel"
    kernel_begin(a, name)
    prologue(a, 256, "f_end")
    a("v_mov_b32 v%d, 0" % VZ)
    a("v_mov_b32 v%d, 1" % VONE)
    a("v_lshlrev_b32 v6, 2, v1")
    a("ds_write_b32 v6, v%d offset:%d" % (VZ, EV))
    srd(a, SO, P_WS, WS_USED)
    srd(a, SD, P_DBG, 256)
    a("s_and_b32 s6, s2, 7")
    a("s_lshl_b32 s6, s6, 2")
    a("s_lshr_b32 s7, s2, 6")
    a("s_add_u32 s6, s6, s7")
    a("s_lshr_b32 s7, s2, 3")
    a("s_and_b32 s7, s7, 7")
    if DEBUG:
        for i in range(12):
            a("s_mov_b64 s[%d:%d], 0" % (70 + 2 * i, 71 + 2 * i))
    a("s_waitcnt lgkmcnt(0)")
    a("s_add_u32 s100, s%d, 0x%x" % (P_WS, CTL))
    a("s_addc_u32 s101, s%d, 0" % (P_WS + 1))
    a("s_load_dwordx4 s[%d:%d], s[100:101], 0" % (S_REC, S_REC + 3))
    a("s_barrier")
    a("s_cmp_ge_u32 s3, 4")
    a("s_cbranch_scc1 f_x")
    gen_cwave(a)
    a.label("f_x")
    gen_xwave(a)
    a.label("f_end")
    a("s_endpgm")
    return name


def main():
    a = Asm()
    a.raw('.amdgcn_target "amdgcn-amd-amdhsa--gfx950"')
    a.raw(".text")
    n = gen_main(a)
    a.raw('.section .rodata,"a"')
    a.raw(".p2align 6")
    kernel_desc(a, n, 256)
    hdr = ["; generated by gen2.py -- single persistent fused kernel",
           "; @launch kernel=%s grid=(256,1,1) block=(512,1,1) lds=%d" % (n, LDS_SIZE)]
    out = "\n".join(hdr + a.L) + "\n"
    path = sys.argv[1] if len(sys.argv) > 1 else "cdna_kernels/%s.s" % NAME
    open(path, "w").write(out)


if __name__ == "__main__":
    main()
```

```python
import sys, os
PF1 = int(os.environ.get("PF1", "16"))
PF2 = int(os.environ.get("PF2", "1"))
NTSET = set(os.environ.get("NTSET", "").split(","))
def nt(n):
    return " nt" if n in NTSET else ""

NAME = "recurrent_scan__compressed_kv_cla__swiglu_ffn__decode"

QABS = 0x000000
GU = 0x040000
STATS = 0x0C0000
PART = 0x100000
SPART = 0x600000
YPART = 0x700000
WS_USED = 0x800000

SRD3 = 0x00020000


def v(n):
    return "v%d" % n


def vr(n, c):
    return "v[%d:%d]" % (n, n + c - 1)


def s(n):
    return "s%d" % n


def sr(n, c):
    return "s[%d:%d]" % (n, n + c - 1)


class Asm:
    def __init__(self):
        self.L = []

    def __call__(self, t):
        self.L.append("    " + t)

    def label(self, t):
        self.L.append(t + ":")

    def c(self, t):
        self.L.append("    ; " + t)

    def raw(self, t):
        self.L.append(t)

    def nop(self, n):
        while n > 0:
            k = min(n, 16)
            self("s_nop %d" % (k - 1))
            n -= k


P_X, P_CKV, P_WQ, P_WUK, P_WUV, P_WO, P_BX, P_WG, P_WU, P_WD, P_OUT, P_DBG, P_WS = [16 + 2 * i for i in range(13)]
S_SELLO, S_SELHI = 14, 15
S_WV = 3


def kernel_begin(a, name):
    a.raw(".globl %s" % name)
    a.raw(".p2align 8")
    a.raw(".type %s,@function" % name)
    a.label(name)


def kernel_desc(a, name, nvgpr, nsgpr=102):
    nv = (nvgpr + 3) // 4 * 4
    a.raw(".amdhsa_kernel %s" % name)
    a.raw("  .amdhsa_next_free_vgpr %d" % nv)
    a.raw("  .amdhsa_next_free_sgpr %d" % nsgpr)
    a.raw("  .amdhsa_accum_offset %d" % nv)
    a.raw("  .amdhsa_group_segment_fixed_size 0")
    a.raw("  .amdhsa_kernarg_size 104")
    a.raw("  .amdhsa_user_sgpr_count 2")
    a.raw("  .amdhsa_user_sgpr_kernarg_segment_ptr 1")
    a.raw("  .amdhsa_system_sgpr_workgroup_id_x 1")
    a.raw(".end_amdhsa_kernel")


def prologue(a, nwg, endlabel):
    a("s_cmp_ge_u32 s2, %d" % nwg)
    a("s_cbranch_scc1 %s" % endlabel)
    a("s_load_dwordx16 s[16:31], s[0:1], 0")
    a("s_load_dwordx8 s[32:39], s[0:1], 64")
    a("s_load_dwordx2 s[40:41], s[0:1], 96")
    a("v_lshrrev_b32 v3, 6, v0")
    a("v_and_b32 v1, 63, v0")
    a("v_readfirstlane_b32 s3, v3")
    a("v_and_b32 v2, 15, v1")
    a("v_lshrrev_b32 v3, 4, v1")
    a("s_mov_b32 s%d, 0x05040100" % S_SELLO)
    a("s_mov_b32 s%d, 0x07060302" % S_SELHI)
    a("s_waitcnt lgkmcnt(0)")


def srd(a, d, p, size, off=None, off_sgpr=None):
    if off_sgpr is not None:
        a("s_add_u32 s%d, s%d, s%d" % (d, p, off_sgpr))
        a("s_addc_u32 s%d, s%d, 0" % (d + 1, p + 1))
        a("s_and_b32 s%d, s%d, 0xffff" % (d + 1, d + 1))
    elif off:
        a("s_add_u32 s%d, s%d, 0x%x" % (d, p, off))
        a("s_addc_u32 s%d, s%d, 0" % (d + 1, p + 1))
        a("s_and_b32 s%d, s%d, 0xffff" % (d + 1, d + 1))
    else:
        a("s_mov_b32 s%d, s%d" % (d, p))
        a("s_and_b32 s%d, s%d, 0xffff" % (d + 1, p + 1))
    a("s_mov_b32 s%d, 0x%x" % (d + 2, size))
    a("s_mov_b32 s%d, 0x%x" % (d + 3, SRD3))


def red_g(a, op, x, t):
    a("v_mov_b32 %s, %s" % (v(t), v(x)))
    a.nop(2)
    a("v_permlane16_swap_b32 %s, %s" % (v(x), v(t)))
    a.nop(1)
    a("%s %s, %s, %s" % (op, v(x), v(x), v(t)))
    a("v_mov_b32 %s, %s" % (v(t), v(x)))
    a.nop(2)
    a("v_permlane32_swap_b32 %s, %s" % (v(x), v(t)))
    a.nop(1)
    a("%s %s, %s, %s" % (op, v(x), v(x), v(t)))


def red_16(a, op, x, t):
    a.nop(2)
    a("%s_dpp %s, %s, %s quad_perm:[1,0,3,2] row_mask:0xf bank_mask:0xf" % (op, v(t), v(x), v(x)))
    a.nop(2)
    a("%s_dpp %s, %s, %s quad_perm:[2,3,0,1] row_mask:0xf bank_mask:0xf" % (op, v(x), v(t), v(t)))
    a.nop(2)
    a("%s_dpp %s, %s, %s row_half_mirror row_mask:0xf bank_mask:0xf" % (op, v(t), v(x), v(x)))
    a.nop(2)
    a("%s_dpp %s, %s, %s row_mirror row_mask:0xf bank_mask:0xf" % (op, v(x), v(t), v(t)))


def red_64(a, op, x, t):
    red_16(a, op, x, t)
    red_g(a, op, x, t)


def layernorm(a, vx, t, vaddr):
    f = t
    d = t + 8
    S, T, M, R, VB, MB, SQ, RC = [t + 16 + i for i in range(8)]
    for i in range(4):
        a("v_lshlrev_b32 %s, 16, %s" % (v(f + 2 * i), v(vx + i)))
        a("v_and_b32 %s, 0xffff0000, %s" % (v(f + 2 * i + 1), v(vx + i)))
    a("v_add_f32 %s, %s, %s" % (v(S), v(f), v(f + 1)))
    for i in range(2, 8):
        a("v_add_f32 %s, %s, %s" % (v(S), v(S), v(f + i)))
    red_64(a, "v_add_f32", S, T)
    a("v_mul_f32 %s, 0x3b000000, %s" % (v(M), v(S)))
    for i in range(8):
        a("v_sub_f32 %s, %s, %s" % (v(d + i), v(f + i), v(M)))
    a("v_mul_f32 %s, %s, %s" % (v(S), v(d), v(d)))
    for i in range(1, 8):
        a("v_fma_f32 %s, %s, %s, %s" % (v(S), v(d + i), v(d + i), v(S)))
    red_64(a, "v_add_f32", S, T)
    a("v_mul_f32 %s, 0x3b000000, %s" % (v(S), v(S)))
    a("v_cvt_pk_bf16_f32 %s, %s, %s" % (v(R), v(S), v(M)))
    a("v_lshlrev_b32 %s, 16, %s" % (v(VB), v(R)))
    a("v_and_b32 %s, 0xffff0000, %s" % (v(MB), v(R)))
    a("v_add_f32 %s, 0x3727c5ac, %s" % (v(VB), v(VB)))
    a("v_cvt_pk_bf16_f32 %s, %s, %s" % (v(R), v(VB), v(VB)))
    a("v_lshlrev_b32 %s, 16, %s" % (v(VB), v(R)))
    a("v_sqrt_f32 %s, %s" % (v(SQ), v(VB)))
    a.nop(1)
    a("v_cvt_pk_bf16_f32 %s, %s, %s" % (v(R), v(SQ), v(SQ)))
    a("v_lshlrev_b32 %s, 16, %s" % (v(SQ), v(R)))
    a("v_rcp_f32 %s, %s" % (v(RC), v(SQ)))
    for i in range(8):
        a("v_sub_f32 %s, %s, %s" % (v(d + i), v(f + i), v(MB)))
    for i in range(4):
        a("v_cvt_pk_bf16_f32 %s, %s, %s" % (v(f + i), v(d + 2 * i), v(d + 2 * i + 1)))
    for i in range(4):
        a("v_lshlrev_b32 %s, 16, %s" % (v(d + 2 * i), v(f + i)))
        a("v_and_b32 %s, 0xffff0000, %s" % (v(d + 2 * i + 1), v(f + i)))
    for i in range(8):
        a("v_mul_f32 %s, %s, %s" % (v(f + i), v(d + i), v(RC)))
    for i in range(8):
        a("v_fma_f32 %s, -%s, %s, %s" % (v(d + i), v(f + i), v(SQ), v(d + i)))
    for i in range(8):
        a("v_fma_f32 %s, %s, %s, %s" % (v(f + i), v(d + i), v(RC), v(f + i)))
    for i in range(4):
        a("v_cvt_pk_bf16_f32 %s, %s, %s" % (v(d + i), v(f + 2 * i), v(f + 2 * i + 1)))
    a("ds_write_b128 %s, %s" % (v(vaddr), vr(d, 4)))


def unit8(a, L, F, A, acc, first):
    def perms(t):
        c, e = t >> 1, t & 1
        for p in range(4):
            a("v_perm_b32 %s, %s, %s, s%d" % (v(F + 4 * t + p), v(L + 4 * (2 * p + 1) + c), v(L + 4 * (2 * p) + c),
                                              S_SELHI if e else S_SELLO))

    def mf(t):
        a("v_mfma_f32_16x16x32_bf16 %s, %s, %s, %s" % (vr(acc + 4 * t, 4), vr(A, 4), vr(F + 4 * t, 4),
                                                       "0" if first else vr(acc + 4 * t, 4)))
    perms(0)
    for t in range(1, 8):
        perms(t)
        mf(t - 1)
    a.nop(2)
    mf(7)


def unit4(a, L, F, A, acc, first):
    def perms(t):
        c, e = t >> 1, t & 1
        for p in range(4):
            a("v_perm_b32 %s, %s, %s, s%d" % (v(F + 4 * t + p), v(L + 2 * (2 * p + 1) + c), v(L + 2 * (2 * p) + c),
                                              S_SELHI if e else S_SELLO))

    def mf(t):
        a("v_mfma_f32_16x16x32_bf16 %s, %s, %s, %s" % (vr(acc + 4 * t, 4), vr(A, 4), vr(F + 4 * t, 4),
                                                       "0" if first else vr(acc + 4 * t, 4)))
    perms(0)
    for t in range(1, 4):
        perms(t)
        mf(t - 1)
    a.nop(2)
    mf(3)


def exec_lo16(a):
    a("s_mov_b64 exec, 0xffff")


def exec_all(a):
    a("s_mov_b64 exec, -1")


LOG2E = 1.4426950408889634


def f32hex(x):
    import struct
    return "0x%08x" % struct.unpack("<I", struct.pack("<f", x))[0]


def silu_inplace(a, x, t):
    a("v_mul_f32 %s, %s, %s" % (v(t), f32hex(-LOG2E), v(x)))
    a("v_exp_f32 %s, %s" % (v(t), v(t)))
    a.nop(1)
    a("v_add_f32 %s, 1.0, %s" % (v(t), v(t)))
    a("v_rcp_f32 %s, %s" % (v(t), v(t)))
    a.nop(1)
    a("v_mul_f32 %s, %s, %s" % (v(x), v(x), v(t)))


def gen_k1(a):
    name = "k1_kernel"
    kernel_begin(a, name)
    XN, RED, QL = 0, 4352, 12544
    prologue(a, 368, "k1_end")
    SX, SW, SU, SO = 44, 48, 52, 56
    srd(a, SX, P_X, 4096)
    srd(a, SO, P_WS, WS_USED)
    a("s_lshl_b32 s4, s3, 10")
    a("v_lshlrev_b32 v4, 4, v1")
    a("v_add_u32 v5, s4, v4")
    a("buffer_load_dwordx4 v[8:11], v5, s[%d:%d], 0 offen" % (SX, SX + 3))
    a("s_mul_i32 s4, s3, 1088")
    a("v_add_u32 v6, s4, v4")
    a("s_cmp_ge_u32 s2, 256")
    a("s_cbranch_scc1 k1_ffn")
    a("s_and_b32 s4, s2, 7")
    a("s_lshr_b32 s5, s2, 3")
    a("s_lshr_b32 s6, s5, 3")
    a("s_lshl_b32 s4, s4, 2")
    a("s_add_u32 s6, s6, s4")
    a("s_and_b32 s7, s5, 7")
    srd(a, SW, P_WQ, 4194304)
    srd(a, SU, P_WUK, 4194304)
    a("s_lshl_b32 s8, s3, 20")
    a("s_lshl_b32 s9, s6, 8")
    a("s_add_u32 s8, s8, s9")
    a("v_lshlrev_b32 v7, 16, v3")
    a("v_lshlrev_b32 v12, 4, v2")
    a("v_add3_u32 v7, v7, v12, s8")
    LQ = 16
    for u in range(4):
        for i in range(8):
            a("s_mov_b32 s10, 0x%x" % ((32 * u + i) * 8192))
            a("buffer_load_dwordx4 %s, v7, s[%d:%d], s10 offen" % (vr(LQ + 32 * u + 4 * i, 4), SW, SW + 3))
    LU = 144
    a("s_lshl_b32 s8, s7, 6")
    a("s_lshl_b32 s10, s3, 4")
    a("s_add_u32 s8, s8, s10")
    a("v_add_u32 v12, s8, v2")
    a("v_lshlrev_b32 v12, 13, v12")
    a("v_lshlrev_b32 v13, 4, v3")
    a("v_add3_u32 v12, v12, v13, s9")
    for st in range(4):
        a("buffer_load_dwordx4 %s, v12, s[%d:%d], 0 offen offset:%d%s" % (vr(LU + 4 * st, 4), SU, SU + 3, 64 * st, nt("wuk")))
    if PF1:
        srd(a, 60, P_CKV, 16777216)
        a("s_lshr_b32 s10, s2, 4")
        a("s_lshl_b32 s10, s10, 3")
        a("s_and_b32 s11, s2, 7")
        a("s_add_u32 s10, s10, s11")
        a("s_lshl_b32 s10, s10, 17")
        a("s_lshr_b32 s11, s2, 3")
        a("s_and_b32 s11, s11, 1")
        a("s_lshl_b32 s11, s11, 16")
        a("s_add_u32 s10, s10, s11")
        a("v_lshlrev_b32 v14, 4, v0")
        for i in range(PF1):
            a("s_add_u32 s11, s10, %d" % (4096 * i))
            a("buffer_load_dwordx4 v[240:243], v14, s[60:63], s11 offen")
    a("s_waitcnt vmcnt(%d)" % (36 + PF1))
    layernorm(a, 8, 208, 6)
    a("s_waitcnt lgkmcnt(0)")
    a("s_barrier")
    AF = 160
    a("v_and_b32 v13, 3, v1")
    a("v_mul_u32_u24 v13, 1088, v13")
    a("v_lshlrev_b32 v14, 4, v3")
    a("s_lshl_b32 s10, s3, 8")
    a("v_add3_u32 v13, v13, v14, s10")
    for u in range(4):
        a("ds_read_b128 %s, v13 offset:%d" % (vr(AF + 4 * u, 4), XN + 64 * u))
    ACC = 176
    FX = 208
    a("s_waitcnt lgkmcnt(0)")
    for u in range(4):
        a("s_waitcnt vmcnt(%d)" % ((3 - u) * 8 + 4 + PF1))
        unit8(a, LQ + 32 * u, FX if u == 0 else LQ + 32 * (u - 1), AF + 4 * u, ACC, u == 0)
    a.nop(8)
    a("s_lshl_b32 s10, s3, 11")
    a("v_lshlrev_b32 v13, 4, v2")
    a("v_add_u32 v13, s10, v13")
    exec_lo16(a)
    for t in range(8):
        a("ds_write_b128 v13, %s offset:%d" % (vr(ACC + 4 * t, 4), RED + 256 * t))
    exec_all(a)
    a("s_waitcnt lgkmcnt(0)")
    a("s_barrier")
    a("s_cmp_ge_u32 s3, 2")
    a("s_cbranch_scc1 k1_sumdone")
    a("v_lshlrev_b32 v13, 4, v0")
    for w in range(4):
        a("ds_read_b128 %s, v13 offset:%d" % (vr(16 + 4 * w, 4), RED + 2048 * w))
    a("v_lshrrev_b32 v14, 4, v0")
    a("v_lshlrev_b32 v15, 4, v2")
    a("v_lshl_add_u32 v14, v14, 1, v15")
    a("s_waitcnt lgkmcnt(0)")
    for b in range(4):
        a("v_add_f32 %s, %s, %s" % (v(16 + b), v(16 + b), v(20 + b)))
        a("v_add_f32 %s, %s, %s" % (v(24 + b), v(24 + b), v(28 + b)))
    for b in range(4):
        a("v_add_f32 %s, %s, %s" % (v(16 + b), v(16 + b), v(24 + b)))
    a("v_cvt_pk_bf16_f32 v20, v16, v17")
    a("v_cvt_pk_bf16_f32 v21, v18, v19")
    a("ds_write_b16 v14, v20 offset:%d" % (QL))
    a("ds_write_b16_d16_hi v14, v20 offset:%d" % (QL + 320))
    a("ds_write_b16 v14, v21 offset:%d" % (QL + 640))
    a("ds_write_b16_d16_hi v14, v21 offset:%d" % (QL + 960))
    a("s_waitcnt lgkmcnt(0)")
    a.label("k1_sumdone")
    a("s_barrier")
    a("v_and_b32 v13, 3, v1")
    a("v_mul_u32_u24 v13, 320, v13")
    a("v_lshl_add_u32 v13, v3, 4, v13")
    for st in range(4):
        a("ds_read_b128 %s, v13 offset:%d" % (vr(16 + 4 * st, 4), QL + 64 * st))
    a("s_waitcnt vmcnt(%d) lgkmcnt(0)" % PF1)
    for st in range(4):
        a("v_mfma_f32_16x16x32_bf16 v[32:35], %s, %s, %s" % (vr(LU + 4 * st, 4), vr(16 + 4 * st, 4),
                                                            "0" if st == 0 else "v[32:35]"))
    a("v_lshlrev_b32 v13, 15, v2")
    a("v_lshlrev_b32 v14, 3, v3")
    a("s_lshl_b32 s10, s6, 10")
    a("s_lshl_b32 s11, s8, 1")
    a("s_add_u32 s10, s10, s11")
    a("v_add3_u32 v13, v13, v14, s10")
    a("v_cmp_gt_u32 vcc, 4, v2")
    a.nop(4)
    sc = f32hex(LOG2E * (128 ** -0.5))
    for r in range(4):
        a("v_mul_f32 %s, %s, %s" % (v(32 + r), sc, v(32 + r)))
    a("v_cvt_pk_bf16_f32 v36, v32, v33")
    a("v_cvt_pk_bf16_f32 v37, v34, v35")
    a("s_and_saveexec_b64 s[12:13], vcc")
    a("buffer_store_dwordx2 v[36:37], v13, s[%d:%d], 0 offen offset:%d" % (SO, SO + 3, QABS))
    a("s_endpgm")
    a.label("k1_ffn")
    a("s_sub_u32 s4, s2, 256")
    a("s_and_b32 s5, s4, 3")
    a("s_lshr_b32 s6, s4, 2")
    a("s_lshr_b32 s7, s3, 1")
    a("s_and_b32 s8, s3, 1")
    a("s_cmp_eq_u32 s7, 0")
    a("s_cselect_b32 s10, s%d, s%d" % (P_WG, P_WU))
    a("s_cselect_b32 s11, s%d, s%d" % (P_WG + 1, P_WU + 1))
    srd(a, SW, 10, 512 * 3584)
    a("s_lshl_b32 s9, s5, 1")
    a("s_add_u32 s9, s9, s8")
    a("s_mul_i32 s10, s9, %d" % (64 * 3584))
    a("s_lshl_b32 s11, s6, 7")
    a("s_add_u32 s10, s10, s11")
    a("v_mul_u32_u24 v7, %d, v3" % (8 * 3584))
    a("v_lshlrev_b32 v12, 3, v2")
    a("v_add3_u32 v7, v7, v12, s10")
    LF = 16
    for u in range(2):
        for i in range(8):
            a("s_mov_b32 s10, 0x%x" % ((32 * u + i) * 3584))
            a("buffer_load_dwordx2 %s, v7, s[%d:%d], s10 offen%s" % (vr(LF + 16 * u + 2 * i, 2), SW, SW + 3, nt("ffn")))
    a("s_waitcnt vmcnt(16)")
    layernorm(a, 8, 208, 6)
    a("s_waitcnt lgkmcnt(0)")
    a("s_barrier")
    a("v_and_b32 v13, 3, v1")
    a("v_mul_u32_u24 v13, 1088, v13")
    a("v_lshlrev_b32 v14, 4, v3")
    a("s_lshl_b32 s10, s9, 7")
    a("v_add3_u32 v13, v13, v14, s10")
    for u in range(2):
        a("ds_read_b128 %s, v13 offset:%d" % (vr(AF + 4 * u, 4), XN + 64 * u))
    a("s_waitcnt lgkmcnt(0)")
    for u in range(2):
        a("s_waitcnt vmcnt(%d)" % ((1 - u) * 8))
        unit4(a, LF + 16 * u, FX + 16 * u, AF + 4 * u, ACC, u == 0)
    a("s_lshl_b32 s10, s9, 1")
    a("s_add_u32 s10, s10, s7")
    a("s_mul_i32 s10, s10, %d" % (1792 * 16))
    a("s_lshl_b32 s11, s6, 10")
    a("s_add_u32 s10, s10, s11")
    a("s_add_u32 s10, s10, 0x%x" % GU)
    a("v_lshlrev_b32 v13, 6, v2")
    a("v_add_u32 v13, s10, v13")
    a.nop(8)
    exec_lo16(a)
    for t in range(4):
        a("buffer_store_dwordx4 %s, v13, s[%d:%d], 0 offen offset:%d" % (vr(ACC + 4 * t, 4), SO, SO + 3, 16 * t))
    a.label("k1_end")
    a("s_endpgm")
    return name, 244


def gen_k2(a):
    name = "k2_kernel"
    kernel_begin(a, name)
    RS = 1056
    PL = 0
    MX = PL + 4096
    LS = MX + 256
    CKV = 4608
    prologue(a, 256, "k2_end")
    SC, SO = 44, 48
    a("s_and_b32 s4, s2, 7")
    a("s_lshr_b32 s5, s2, 3")
    a("s_and_b32 s6, s5, 1")
    a("s_lshr_b32 s5, s5, 1")
    a("s_lshl_b32 s5, s5, 3")
    a("s_add_u32 s5, s5, s4")
    a("s_lshr_b32 s7, s5, 5")
    a("s_and_b32 s8, s5, 31")
    a("s_lshl_b32 s9, s5, 17")
    srd(a, SC, P_CKV, 131072, off_sgpr=9)
    srd(a, SO, P_WS, WS_USED)
    QF = 16
    a("s_lshl_b32 s9, s7, 5")
    a("s_lshl_b32 s10, s6, 4")
    a("s_add_u32 s9, s9, s10")
    a("s_lshl_b32 s10, s9, 10")
    a("v_lshlrev_b32 v4, 10, v2")
    a("v_lshlrev_b32 v5, 4, v3")
    a("v_add3_u32 v4, v4, v5, s10")
    for st in range(16):
        a("buffer_load_dwordx4 %s, v4, s[%d:%d], 0 offen offset:%d" % (vr(QF + 4 * st, 4), SO, SO + 3, QABS + 64 * st))
    a("v_lshlrev_b32 v5, 4, v1")
    a("s_mul_i32 s10, s3, %d" % (32 * RS))
    a("s_lshl_b32 s11, s3, 15")
    for i in range(32):
        a("s_add_u32 m0, s10, %d" % (CKV + i * RS))
        a("s_add_u32 s12, s11, %d" % (i * 1024))
        a("buffer_load_dwordx4 v5, s[%d:%d], s12 offen%s lds" % (SC, SC + 3, nt("ckv")))
    NP2 = 10 if PF2 else 0
    if PF2:
        srd(a, 52, P_WUV, 4194304)
        srd(a, 56, P_WO, 4194304)
        srd(a, 60, P_WD, 1792 * 1024)
        a("s_and_b32 s12, s2, 7")
        a("s_lshr_b32 s13, s2, 3")
        a("s_lshl_b32 s64, s13, 17")
        a("s_lshl_b32 s65, s3, 13")
        a("s_add_u32 s64, s64, s65")
        a("s_lshl_b32 s65, s12, 10")
        a("s_add_u32 s64, s64, s65")
        for i in range(4):
            a("s_add_u32 s65, s64, %d" % (4 * 8192 * i))
            a("buffer_load_dwordx4 v[208:211], v5, s[52:55], s65 offen")
        a("v_lshlrev_b32 v6, 4, v0")
        a("s_lshl_b32 s64, s12, 19")
        a("s_lshl_b32 s65, s13, 14")
        a("s_add_u32 s64, s64, s65")
        for i in range(4):
            a("s_add_u32 s65, s64, %d" % (4096 * i))
            a("buffer_load_dwordx4 v[208:211], v6, s[56:59], s65 offen")
        a("s_mul_i32 s64, s13, 37")
        a("s_lshr_b32 s64, s64, 8")
        a("s_mul_i32 s65, s64, 7")
        a("s_sub_u32 s65, s13, s65")
        a("s_lshl_b32 s65, s65, 3")
        a("s_add_u32 s65, s65, s12")
        a("s_lshl_b32 s65, s65, 15")
        a("s_lshl_b32 s64, s64, 13")
        a("s_add_u32 s64, s64, s65")
        for i in range(2):
            a("s_add_u32 s65, s64, %d" % (4096 * i))
            a("buffer_load_dwordx4 v[208:211], v6, s[60:63], s65 offen")
    a("v_mul_u32_u24 v6, %d, v2" % RS)
    a("v_lshlrev_b32 v7, 4, v3")
    a("v_add3_u32 v6, v6, v7, s10")
    AF = 80
    SCO = 144
    for T in range(2):
        a("s_waitcnt vmcnt(%d)" % ((16 if T == 0 else 0) + NP2))
        for st in range(16):
            a("ds_read_b128 %s, v6 offset:%d" % (vr(AF + 4 * st, 4), CKV + T * 16 * RS + st * 64))
        for st in range(16):
            a("s_waitcnt lgkmcnt(%d)" % (15 - st))
            a("v_mfma_f32_16x16x32_bf16 %s, %s, %s, %s" % (vr(SCO + 4 * T, 4), vr(AF + 4 * st, 4), vr(QF + 4 * st, 4),
                                                          "0" if st == 0 else vr(SCO + 4 * T, 4)))
    a.nop(8)
    a("v_max3_f32 v8, v144, v145, v146")
    a("v_max3_f32 v8, v8, v147, v148")
    a("v_max3_f32 v8, v8, v149, v150")
    a("v_max_f32 v8, v8, v151")
    red_g(a, "v_max_f32", 8, 9)
    a("s_lshl_b32 s12, s3, 6")
    a("v_lshlrev_b32 v10, 2, v2")
    a("v_add_u32 v11, s12, v10")
    exec_lo16(a)
    a("ds_write_b32 v11, v8 offset:%d" % MX)
    exec_all(a)
    a("s_waitcnt lgkmcnt(0)")
    a("s_barrier")
    for w in range(4):
        a("ds_read_b32 %s, v10 offset:%d" % (v(12 + w), MX + 64 * w))
    a("s_waitcnt lgkmcnt(0)")
    a("v_max3_f32 v8, v12, v13, v14")
    a("v_max_f32 v8, v8, v15")
    for r in range(8):
        a("v_sub_f32 %s, %s, v8" % (v(SCO + r), v(SCO + r)))
    for r in range(8):
        a("v_exp_f32 %s, %s" % (v(SCO + r), v(SCO + r)))
    a.nop(1)
    for r in range(4):
        a("v_cvt_pk_bf16_f32 %s, %s, %s" % (v(152 + r), v(SCO + 2 * r), v(SCO + 2 * r + 1)))
    a("v_add_f32 v9, v144, v145")
    for r in range(2, 8):
        a("v_add_f32 v9, v9, %s" % v(SCO + r))
    a("s_lshl_b32 s12, s3, 10")
    a("v_lshlrev_b32 v12, 4, v1")
    a("v_add_u32 v13, s12, v12")
    a("ds_write_b128 v13, v[152:155] offset:%d" % PL)
    red_g(a, "v_add_f32", 9, 14)
    exec_lo16(a)
    a("ds_write_b32 v11, v9 offset:%d" % LS)
    exec_all(a)
    a("s_waitcnt lgkmcnt(0)")
    a("s_barrier")
    PF = 156
    for st in range(4):
        a("ds_read_b128 %s, v12 offset:%d" % (vr(PF + 4 * st, 4), PL + 1024 * st))
    a("v_lshrrev_b32 v13, 2, v2")
    a("v_lshl_add_u32 v13, v3, 2, v13")
    a("v_mul_u32_u24 v13, %d, v13" % RS)
    a("v_and_b32 v14, 3, v2")
    a("v_lshlrev_b32 v14, 3, v14")
    a("s_lshl_b32 s12, s3, 8")
    a("v_add3_u32 v13, v13, v14, s12")
    a("v_add_u32 v14, %d, v13" % (64 * RS))
    ACC = 176
    TB = [16, 48]
    groups = [(st, ch) for st in range(4) for ch in range(2)]

    def issue(k):
        st, ch = groups[k]
        buf = 16 + 16 * (k % 4)
        base = 13 if st < 2 else 14
        for q in range(4):
            ct = 4 * ch + q
            off = CKV + (st & 1) * 32 * RS + ct * 32
            a("ds_read_b64_tr_b16 %s, %s offset:%d" % (vr(buf + 4 * q, 2), v(base), off))
            a("ds_read_b64_tr_b16 %s, %s offset:%d" % (vr(buf + 4 * q + 2, 2), v(base), off + 16 * RS))

    def compute(k):
        st, ch = groups[k]
        buf = 16 + 16 * (k % 4)
        for q in range(4):
            ct = 4 * ch + q
            a("v_mfma_f32_16x16x32_bf16 %s, %s, %s, %s" % (vr(ACC + 4 * ct, 4), vr(buf + 4 * q, 4), vr(PF + 4 * st, 4),
                                                          "0" if st == 0 else vr(ACC + 4 * ct, 4)))
    issue(0)
    for k in range(8):
        if k + 1 < 8:
            issue(k + 1)
            a("s_waitcnt lgkmcnt(8)")
        else:
            a("s_waitcnt lgkmcnt(0)")
        compute(k)
    a("s_lshl_b32 s12, s9, 15")
    a("s_lshl_b32 s13, s8, 10")
    a("s_add_u32 s12, s12, s13")
    a("s_lshl_b32 s13, s3, 8")
    a("s_add_u32 s12, s12, s13")
    a("s_add_u32 s12, s12, 0x%x" % PART)
    a("v_lshlrev_b32 v13, 15, v2")
    a("v_lshlrev_b32 v14, 3, v3")
    a("v_add3_u32 v13, v13, v14, s12")
    a.nop(4)
    for ct in range(8):
        a("v_cvt_pk_bf16_f32 %s, %s, %s" % (v(16 + 2 * ct), v(ACC + 4 * ct), v(ACC + 4 * ct + 1)))
        a("v_cvt_pk_bf16_f32 %s, %s, %s" % (v(16 + 2 * ct + 1), v(ACC + 4 * ct + 2), v(ACC + 4 * ct + 3)))
    for ct in range(8):
        a("buffer_store_dwordx2 %s, v13, s[%d:%d], 0 offen offset:%d" % (vr(16 + 2 * ct, 2), SO, SO + 3, 32 * ct))
    a("s_cmp_lg_u32 s3, 0")
    a("s_cbranch_scc1 k2_end")
    for w in range(4):
        a("ds_read_b32 %s, v10 offset:%d" % (v(40 + w), LS + 64 * w))
    a("s_lshl_b32 s12, s9, 8")
    a("s_lshl_b32 s13, s8, 3")
    a("s_add_u32 s12, s12, s13")
    a("s_add_u32 s12, s12, 0x%x" % STATS)
    a("v_lshlrev_b32 v13, 8, v2")
    a("v_add_u32 v13, s12, v13")
    a("s_waitcnt lgkmcnt(0)")
    a("v_add_f32 v40, v40, v41")
    a("v_add_f32 v42, v42, v43")
    a("v_add_f32 v9, v40, v42")
    exec_lo16(a)
    a("buffer_store_dwordx2 v[8:9], v13, s[%d:%d], 0 offen" % (SO, SO + 3))
    a.label("k2_end")
    a("s_endpgm")
    return name, 212, 128 * RS + 4096 + 512


def gen_k3(a):
    name = "k3_kernel"
    kernel_begin(a, name)
    LAT = 0
    RED = 1280
    CTX = RED + 16384
    HA = CTX + 1280
    prologue(a, 312, "k3_end")
    SO, SV, SW = 44, 48, 52
    srd(a, SO, P_WS, WS_USED)
    a("s_cmp_ge_u32 s2, 256")
    a("s_cbranch_scc1 k3_ffn")
    a("s_and_b32 s4, s2, 7")
    a("s_lshr_b32 s5, s2, 3")
    a("s_lshr_b32 s6, s5, 3")
    a("s_lshl_b32 s4, s4, 2")
    a("s_add_u32 s6, s6, s4")
    a("s_lshr_b32 s7, s5, 1")
    a("s_and_b32 s7, s7, 3")
    a("s_and_b32 s8, s5, 1")
    srd(a, SV, P_WUV, 4194304)
    srd(a, SW, P_WO, 4194304)
    a("s_mov_b32 s13, 4096")
    ST = 16
    a("s_lshl_b32 s9, s3, 5")
    a("s_add_u32 s9, s9, s6")
    a("s_lshl_b32 s10, s9, 8")
    a("s_add_u32 s10, s10, 0x%x" % STATS)
    a("v_lshlrev_b32 v4, 6, v3")
    a("v_add_u32 v4, s10, v4")
    for i in range(4):
        a("buffer_load_dwordx4 %s, v4, s[%d:%d], 0 offen offset:%d" % (vr(ST + 4 * i, 4), SO, SO + 3, 16 * i))
    LP = 32
    a("s_lshl_b32 s10, s9, 15")
    a("s_lshl_b32 s11, s7, 8")
    a("s_add_u32 s10, s10, s11")
    a("s_add_u32 s10, s10, 0x%x" % PART)
    a("v_lshlrev_b32 v4, 13, v3")
    a("v_lshlrev_b32 v5, 4, v2")
    a("v_add3_u32 v4, v4, v5, s10")
    for i in range(8):
        a("buffer_load_dwordx4 %s, v4, s[%d:%d], %s offen offset:%d" % (vr(LP + 4 * i, 4), SO, SO + 3,
                                                                       "0" if i < 4 else "s13", (i & 3) * 1024))
    LV = 64
    a("s_lshl_b32 s10, s7, 20")
    a("s_lshl_b32 s11, s3, 18")
    a("s_add_u32 s10, s10, s11")
    a("s_lshl_b32 s11, s6, 8")
    a("s_add_u32 s10, s10, s11")
    a("v_lshlrev_b32 v4, 16, v3")
    a("v_add3_u32 v4, v4, v5, s10")
    for i in range(8):
        a("s_mov_b32 s12, 0x%x" % (i * 8192))
        a("buffer_load_dwordx4 %s, v4, s[%d:%d], s12 offen%s" % (vr(LV + 4 * i, 4), SV, SV + 3, nt("wuv")))
    LO = 96
    a("s_lshl_b32 s10, s6, 17")
    a("s_lshl_b32 s11, s3, 15")
    a("s_add_u32 s10, s10, s11")
    a("s_lshl_b32 s11, s8, 9")
    a("s_add_u32 s10, s10, s11")
    a("v_lshlrev_b32 v4, 13, v3")
    a("v_add3_u32 v4, v4, v5, s10")
    for cb in range(2):
        for i in range(8):
            a("buffer_load_dwordx4 %s, v4, s[%d:%d], %s offen offset:%d" % (
                vr(LO + 32 * cb + 4 * i, 4), SW, SW + 3, "0" if i < 4 else "s13", (i & 3) * 1024 + cb * 256))
    a("s_waitcnt vmcnt(32)")
    a("v_max3_f32 v6, v16, v18, v20")
    a("v_max3_f32 v6, v6, v22, v24")
    a("v_max3_f32 v6, v6, v26, v28")
    a("v_max_f32 v6, v6, v30")
    red_g(a, "v_max_f32", 6, 7)
    for i in range(8):
        a("v_sub_f32 %s, %s, v6" % (v(ST + 2 * i), v(ST + 2 * i)))
    for i in range(8):
        a("v_exp_f32 %s, %s" % (v(ST + 2 * i), v(ST + 2 * i)))
    a.nop(1)
    a("v_mul_f32 v7, v16, v17")
    for i in range(1, 8):
        a("v_fma_f32 v7, %s, %s, v7" % (v(ST + 2 * i), v(ST + 2 * i + 1)))
    red_g(a, "v_add_f32", 7, 8)
    a("v_rcp_f32 v7, v7")
    a.nop(1)
    for i in range(8):
        a("v_mul_f32 %s, %s, v7" % (v(ST + 2 * i), v(ST + 2 * i)))
    AW = 8
    for p in range(4):
        a("v_cvt_pk_bf16_f32 %s, %s, %s" % (v(AW + p), v(ST + 4 * p), v(ST + 4 * p + 2)))
    ACC = 192
    FX = 160
    a("s_waitcnt vmcnt(24)")
    unit8(a, LP, FX, AW, ACC, True)
    a.nop(8)
    for p in range(4):
        a("v_cvt_pk_bf16_f32 %s, %s, %s" % (v(16 + p), v(ACC + 8 * p), v(ACC + 8 * p + 4)))
    a("s_mul_i32 s10, s3, 320")
    a("v_add_u32 v4, s10, v5")
    exec_lo16(a)
    a("ds_write_b128 v4, v[16:19] offset:%d" % LAT)
    exec_all(a)
    a("s_waitcnt lgkmcnt(0)")
    a("s_barrier")
    a("v_and_b32 v6, 3, v1")
    a("v_mul_u32_u24 v6, 320, v6")
    a("v_lshl_add_u32 v6, v3, 4, v6")
    a("s_lshl_b32 s10, s3, 6")
    a("v_add_u32 v6, s10, v6")
    a("ds_read_b128 v[8:11], v6 offset:%d" % LAT)
    a("s_waitcnt vmcnt(16) lgkmcnt(0)")
    unit8(a, LV, FX, 8, ACC, True)
    a.nop(8)
    a("s_lshl_b32 s10, s3, 12")
    a("v_add_u32 v4, s10, v5")
    exec_lo16(a)
    for t in range(8):
        a("ds_write_b128 v4, %s offset:%d" % (vr(ACC + 4 * t, 4), RED + 256 * t))
    exec_all(a)
    a("s_waitcnt lgkmcnt(0)")
    a("s_barrier")
    a("s_cmp_ge_u32 s3, 2")
    a("s_cbranch_scc1 k3_sumdone")
    a("v_lshlrev_b32 v7, 4, v0")
    for w in range(4):
        a("ds_read_b128 %s, v7 offset:%d" % (vr(16 + 4 * w, 4), RED + 4096 * w))
    a("v_lshrrev_b32 v12, 4, v0")
    a("v_lshlrev_b32 v13, 4, v2")
    a("v_lshl_add_u32 v12, v12, 1, v13")
    a("s_waitcnt lgkmcnt(0)")
    for b in range(4):
        a("v_add_f32 %s, %s, %s" % (v(16 + b), v(16 + b), v(20 + b)))
        a("v_add_f32 %s, %s, %s" % (v(24 + b), v(24 + b), v(28 + b)))
    for b in range(4):
        a("v_add_f32 %s, %s, %s" % (v(16 + b), v(16 + b), v(24 + b)))
    a("v_cvt_pk_bf16_f32 v20, v16, v17")
    a("v_cvt_pk_bf16_f32 v21, v18, v19")
    a("ds_write_b16 v12, v20 offset:%d" % (CTX))
    a("ds_write_b16_d16_hi v12, v20 offset:%d" % (CTX + 320))
    a("ds_write_b16 v12, v21 offset:%d" % (CTX + 640))
    a("ds_write_b16_d16_hi v12, v21 offset:%d" % (CTX + 960))
    a("s_waitcnt lgkmcnt(0)")
    a.label("k3_sumdone")
    a("s_barrier")
    a("ds_read_b128 v[8:11], v6 offset:%d" % CTX)
    a("s_waitcnt vmcnt(8) lgkmcnt(0)")
    unit8(a, LO, FX, 8, ACC, True)
    a("s_waitcnt vmcnt(0)")
    unit8(a, LO + 32, LO, 8, ACC + 32, True)
    a.nop(8)
    exec_lo16(a)
    for cb in range(2):
        for t in range(8):
            a("ds_write_b128 v4, %s offset:%d" % (vr(ACC + 32 * cb + 4 * t, 4), RED + 2048 * cb + 256 * t))
    exec_all(a)
    a("s_waitcnt lgkmcnt(0)")
    a("s_barrier")
    a("v_lshlrev_b32 v7, 4, v0")
    for w in range(4):
        a("ds_read_b128 %s, v7 offset:%d" % (vr(16 + 4 * w, 4), RED + 4096 * w))
    a("s_lshl_b32 s10, s6, 2")
    a("s_add_u32 s10, s10, s7")
    a("s_lshl_b32 s10, s10, 13")
    a("s_lshl_b32 s11, s8, 12")
    a("s_add_u32 s10, s10, s11")
    a("s_add_u32 s10, s10, 0x%x" % SPART)
    a("v_add_u32 v12, s10, v7")
    a("s_waitcnt lgkmcnt(0)")
    for b in range(4):
        a("v_add_f32 %s, %s, %s" % (v(16 + b), v(16 + b), v(20 + b)))
        a("v_add_f32 %s, %s, %s" % (v(24 + b), v(24 + b), v(28 + b)))
    for b in range(4):
        a("v_add_f32 %s, %s, %s" % (v(16 + b), v(16 + b), v(24 + b)))
    a("buffer_store_dwordx4 v[16:19], v12, s[%d:%d], 0 offen" % (SO, SO + 3))
    a("s_endpgm")
    a.label("k3_ffn")
    a("s_sub_u32 s4, s2, 256")
    srd(a, SW, P_WD, 1792 * 1024)
    a("s_mov_b32 s13, 4096")
    GL = 16
    a("v_and_b32 v4, 31, v1")
    a("v_lshrrev_b32 v5, 5, v1")
    a("v_mul_u32_u24 v5, %d, v5" % (8 * 1792))
    a("s_lshl_b32 s10, s4, 5")
    a("v_add3_u32 v5, v5, v4, s10")
    a("v_lshlrev_b32 v5, 4, v5")
    a("v_add_u32 v5, 0x%x, v5" % GU)
    for kk in range(4):
        for mat in range(2):
            a("s_mov_b32 s12, 0x%x" % ((kk * 2 + mat) * 1792 * 16))
            a("buffer_load_dwordx4 %s, v5, s[%d:%d], s12 offen" % (vr(GL + 8 * kk + 4 * mat, 4), SO, SO + 3))
    LD = 64
    a("s_lshl_b32 s10, s4, 15")
    a("s_lshl_b32 s11, s3, 8")
    a("s_add_u32 s10, s10, s11")
    a("v_lshlrev_b32 v6, 13, v3")
    a("v_lshlrev_b32 v7, 4, v2")
    a("v_add3_u32 v6, v6, v7, s10")
    for i in range(8):
        a("buffer_load_dwordx4 %s, v6, s[%d:%d], %s offen offset:%d%s" % (vr(LD + 4 * i, 4), SW, SW + 3,
                                                                       "0" if i < 4 else "s13", (i & 3) * 1024, nt("wd")))
    a("s_waitcnt vmcnt(8)")
    for q in range(8):
        a("v_add_f32 %s, %s, %s" % (v(GL + q), v(GL + q), v(GL + 8 + q)))
        a("v_add_f32 %s, %s, %s" % (v(GL + 16 + q), v(GL + 16 + q), v(GL + 24 + q)))
    for q in range(8):
        a("v_add_f32 %s, %s, %s" % (v(GL + q), v(GL + q), v(GL + 16 + q)))
    for q in range(8):
        a("v_mov_b32 %s, %s" % (v(GL + 8 + q), v(GL + q)))
    a.nop(2)
    for q in range(8):
        a("v_permlane32_swap_b32 %s, %s" % (v(GL + q), v(GL + 8 + q)))
    a.nop(1)
    for q in range(8):
        a("v_add_f32 %s, %s, %s" % (v(GL + q), v(GL + q), v(GL + 8 + q)))
    for p in range(4):
        a("v_cvt_pk_bf16_f32 %s, %s, %s" % (v(24 + p), v(GL + 2 * p), v(GL + 2 * p + 1)))
    for p in range(4):
        a("v_lshlrev_b32 %s, 16, %s" % (v(GL + 2 * p), v(24 + p)))
        a("v_and_b32 %s, 0xffff0000, %s" % (v(GL + 2 * p + 1), v(24 + p)))
    for b in range(4):
        silu_inplace(a, GL + b, 28 + b)
    a("v_cvt_pk_bf16_f32 v24, v16, v17")
    a("v_cvt_pk_bf16_f32 v25, v18, v19")
    a("v_lshlrev_b32 v16, 16, v24")
    a("v_and_b32 v17, 0xffff0000, v24")
    a("v_lshlrev_b32 v18, 16, v25")
    a("v_and_b32 v19, 0xffff0000, v25")
    for b in range(4):
        a("v_mul_f32 %s, %s, %s" % (v(16 + b), v(16 + b), v(20 + b)))
    a("v_cvt_pk_bf16_f32 v24, v16, v17")
    a("v_cvt_pk_bf16_f32 v25, v18, v19")
    a("s_mul_i32 s10, s3, 320")
    a("v_lshlrev_b32 v8, 1, v4")
    a("v_add_u32 v8, s10, v8")
    a("ds_write_b16 v8, v24 offset:%d" % (HA))
    a("ds_write_b16_d16_hi v8, v24 offset:%d" % (HA + 80))
    a("ds_write_b16 v8, v25 offset:%d" % (HA + 160))
    a("ds_write_b16_d16_hi v8, v25 offset:%d" % (HA + 240))
    a("v_and_b32 v9, 3, v1")
    a("v_mul_u32_u24 v9, 80, v9")
    a("v_lshl_add_u32 v9, v3, 4, v9")
    a("v_add_u32 v9, s10, v9")
    a("s_waitcnt lgkmcnt(0)")
    a("ds_read_b128 v[8:11], v9 offset:%d" % HA)
    a("s_waitcnt vmcnt(0) lgkmcnt(0)")
    unit8(a, LD, 96, 8, 128, True)
    a("s_lshl_b32 s10, s4, 13")
    a("s_lshl_b32 s11, s3, 11")
    a("s_add_u32 s10, s10, s11")
    a("s_add_u32 s10, s10, 0x%x" % YPART)
    a("v_add_u32 v4, s10, v7")
    a.nop(8)
    exec_lo16(a)
    for t in range(8):
        a("buffer_store_dwordx4 %s, v4, s[%d:%d], 0 offen offset:%d" % (vr(128 + 4 * t, 4), SO, SO + 3, 256 * t))
    a.label("k3_end")
    a("s_endpgm")
    return name, 256, HA + 1280


def gen_k4(a):
    name = "k4_kernel"
    kernel_begin(a, name)
    prologue(a, 64, "k4_end")
    SS, SY, SX, SOUT = 44, 48, 52, 56
    srd(a, SS, P_WS, 128 * 8192, off=SPART)
    srd(a, SY, P_WS, 56 * 8192, off=YPART)
    srd(a, SX, P_X, 4096)
    srd(a, SOUT, P_OUT, 4096)
    a("s_mov_b32 s13, 8192")
    a("s_mov_b32 s12, 16384")
    a("s_mov_b32 s11, 24576")
    a("v_and_b32 v4, 7, v0")
    a("v_lshrrev_b32 v5, 3, v0")
    a("s_lshl_b32 s10, s2, 7")
    a("v_lshlrev_b32 v6, 4, v4")
    a("v_add_u32 v6, s10, v6")
    a("v_lshlrev_b32 v7, 15, v5")
    a("v_add_u32 v7, v7, v6")
    a("buffer_load_dwordx4 v[16:19], v7, s[%d:%d], 0 offen" % (SS, SS + 3))
    a("buffer_load_dwordx4 v[20:23], v7, s[%d:%d], s13 offen" % (SS, SS + 3))
    a("buffer_load_dwordx4 v[24:27], v7, s[%d:%d], s12 offen" % (SS, SS + 3))
    a("buffer_load_dwordx4 v[28:31], v7, s[%d:%d], s11 offen" % (SS, SS + 3))
    a("v_lshlrev_b32 v7, 14, v5")
    a("v_add_u32 v7, v7, v6")
    a("buffer_load_dwordx4 v[32:35], v7, s[%d:%d], 0 offen" % (SY, SY + 3))
    a("buffer_load_dwordx4 v[36:39], v7, s[%d:%d], s13 offen" % (SY, SY + 3))
    a("v_lshrrev_b32 v8, 2, v0")
    a("s_lshl_b32 s10, s2, 3")
    a("v_add_u32 v8, s10, v8")
    a("v_and_b32 v9, 15, v8")
    a("v_lshrrev_b32 v10, 4, v8")
    a("v_and_b32 v10, 7, v10")
    a("v_lshrrev_b32 v11, 7, v8")
    a("v_lshlrev_b32 v11, 7, v11")
    a("v_lshl_add_u32 v11, v9, 3, v11")
    a("v_add_u32 v11, v11, v10")
    a("v_and_b32 v12, 3, v0")
    a("v_lshl_add_u32 v11, v12, 9, v11")
    a("v_lshlrev_b32 v11, 1, v11")
    a("buffer_load_ushort v13, v11, s[%d:%d], 0 offen" % (SX, SX + 3))
    a("s_waitcnt vmcnt(1)")
    for q in range(4):
        a("v_add_f32 %s, %s, %s" % (v(16 + q), v(16 + q), v(20 + q)))
        a("v_add_f32 %s, %s, %s" % (v(24 + q), v(24 + q), v(28 + q)))
        a("v_add_f32 %s, %s, %s" % (v(20 + q), v(32 + q), v(36 + q)))
    for q in range(4):
        a("v_add_f32 %s, %s, %s" % (v(16 + q), v(16 + q), v(24 + q)))
    a.nop(2)
    for q in range(8):
        a("v_add_f32_dpp %s, %s, %s row_ror:8 row_mask:0xf bank_mask:0xf" % (v(24 + q), v(16 + q), v(16 + q)))
    for q in range(8):
        a("v_mov_b32 %s, %s" % (v(16 + q), v(24 + q)))
    a.nop(2)
    for q in range(8):
        a("v_permlane16_swap_b32 %s, %s" % (v(16 + q), v(24 + q)))
    a.nop(1)
    for q in range(8):
        a("v_add_f32 %s, %s, %s" % (v(16 + q), v(16 + q), v(24 + q)))
    for q in range(8):
        a("v_mov_b32 %s, %s" % (v(24 + q), v(16 + q)))
    a.nop(2)
    for q in range(8):
        a("v_permlane32_swap_b32 %s, %s" % (v(16 + q), v(24 + q)))
    a.nop(1)
    for q in range(8):
        a("v_add_f32 %s, %s, %s" % (v(16 + q), v(16 + q), v(24 + q)))
    a("s_lshl_b32 s10, s3, 8")
    a("v_lshlrev_b32 v14, 5, v4")
    a("v_add_u32 v14, s10, v14")
    a("s_mov_b64 exec, 0xff")
    a("ds_write_b128 v14, v[16:19]")
    a("ds_write_b128 v14, v[20:23] offset:16")
    exec_all(a)
    a("s_waitcnt lgkmcnt(0)")
    a("s_barrier")
    a("s_cmp_lg_u32 s3, 0")
    a("s_cbranch_scc1 k4_end")
    a("s_mov_b32 exec_lo, -1")
    a("s_mov_b32 exec_hi, 0")
    a("v_lshrrev_b32 v14, 2, v0")
    a("v_lshlrev_b32 v14, 5, v14")
    a("v_lshl_add_u32 v14, v12, 2, v14")
    for w in range(4):
        a("ds_read_b32 %s, v14 offset:%d" % (v(16 + w), 256 * w))
        a("ds_read_b32 %s, v14 offset:%d" % (v(20 + w), 256 * w + 16))
    a("s_waitcnt vmcnt(0) lgkmcnt(0)")
    a("v_add_f32 v16, v16, v17")
    a("v_add_f32 v18, v18, v19")
    a("v_add_f32 v20, v20, v21")
    a("v_add_f32 v22, v22, v23")
    a("v_add_f32 v16, v16, v18")
    a("v_add_f32 v20, v20, v22")
    a("v_cvt_pk_bf16_f32 v24, v16, v20")
    a("v_lshlrev_b32 v16, 16, v24")
    a("v_and_b32 v20, 0xffff0000, v24")
    silu_inplace(a, 20, 25)
    a("v_cvt_pk_bf16_f32 v24, v20, v20")
    a("v_lshlrev_b32 v20, 16, v24")
    a("v_mul_f32 v16, v16, v20")
    a("v_cvt_pk_bf16_f32 v24, v16, v16")
    a("v_lshlrev_b32 v16, 16, v24")
    a("v_lshlrev_b32 v13, 16, v13")
    a("v_add_f32 v16, v16, v13")
    a("v_cvt_pk_bf16_f32 v24, v16, v16")
    a("buffer_store_short v24, v11, s[%d:%d], 0 offen" % (SOUT, SOUT + 3))
    a.label("k4_end")
    a("s_endpgm")
    return name, 40, 1024


def main():
    hdr = []
    a = Asm()
    a.raw('.amdgcn_target "amdgcn-amd-amdhsa--gfx950"')
    a.raw(".text")
    n1, v1 = gen_k1(a)
    n2, v2, l2 = gen_k2(a)
    n3, v3, l3 = gen_k3(a)
    n4, v4, l4 = gen_k4(a)
    a.raw('.section .rodata,"a"')
    for n, nv in ((n1, v1), (n2, v2), (n3, v3), (n4, v4)):
        a.raw(".p2align 6")
        kernel_desc(a, n, nv)
    hdr.append("; @launch kernel=%s grid=(368,1,1) block=(256,1,1) lds=14336" % n1)
    hdr.append("; @launch kernel=%s grid=(256,1,1) block=(256,1,1) lds=%d" % (n2, l2))
    hdr.append("; @launch kernel=%s grid=(312,1,1) block=(256,1,1) lds=%d" % (n3, l3))
    hdr.append("; @launch kernel=%s grid=(64,1,1) block=(256,1,1) lds=%d" % (n4, l4))
    out = "\n".join(hdr + a.L) + "\n"
    path = sys.argv[1] if len(sys.argv) > 1 else "cdna_kernels/%s.s" % NAME
    open(path, "w").write(out)


if __name__ == "__main__":
    main()
```

```python
import sys, os
PF1 = int(os.environ.get("PF1", "16"))
PF2 = int(os.environ.get("PF2", "1"))

NAME = "recurrent_scan__compressed_kv_cla__swiglu_ffn__decode"

QABS = 0x000000
GU = 0x040000
STATS = 0x0C0000
PART = 0x100000
SPART = 0x600000
YPART = 0x700000
WS_USED = 0x800000

SRD3 = 0x00020000


def v(n):
    return "v%d" % n


def vr(n, c):
    return "v[%d:%d]" % (n, n + c - 1)


def s(n):
    return "s%d" % n


def sr(n, c):
    return "s[%d:%d]" % (n, n + c - 1)


class Asm:
    def __init__(self):
        self.L = []

    def __call__(self, t):
        self.L.append("    " + t)

    def label(self, t):
        self.L.append(t + ":")

    def c(self, t):
        self.L.append("    ; " + t)

    def raw(self, t):
        self.L.append(t)

    def nop(self, n):
        while n > 0:
            k = min(n, 16)
            self("s_nop %d" % (k - 1))
            n -= k


P_X, P_CKV, P_WQ, P_WUK, P_WUV, P_WO, P_BX, P_WG, P_WU, P_WD, P_OUT, P_DBG, P_WS = [16 + 2 * i for i in range(13)]
S_SELLO, S_SELHI = 14, 15
S_WV = 3


def kernel_begin(a, name):
    a.raw(".globl %s" % name)
    a.raw(".p2align 8")
    a.raw(".type %s,@function" % name)
    a.label(name)


def kernel_desc(a, name, nvgpr, nsgpr=102):
    nv = (nvgpr + 3) // 4 * 4
    a.raw(".amdhsa_kernel %s" % name)
    a.raw("  .amdhsa_next_free_vgpr %d" % nv)
    a.raw("  .amdhsa_next_free_sgpr %d" % nsgpr)
    a.raw("  .amdhsa_accum_offset %d" % nv)
    a.raw("  .amdhsa_group_segment_fixed_size 0")
    a.raw("  .amdhsa_kernarg_size 104")
    a.raw("  .amdhsa_user_sgpr_count 2")
    a.raw("  .amdhsa_user_sgpr_kernarg_segment_ptr 1")
    a.raw("  .amdhsa_system_sgpr_workgroup_id_x 1")
    a.raw(".end_amdhsa_kernel")


def prologue(a, nwg, endlabel):
    a("s_cmp_ge_u32 s2, %d" % nwg)
    a("s_cbranch_scc1 %s" % endlabel)
    a("s_load_dwordx16 s[16:31], s[0:1], 0")
    a("s_load_dwordx8 s[32:39], s[0:1], 64")
    a("s_load_dwordx2 s[40:41], s[0:1], 96")
    a("v_lshrrev_b32 v3, 6, v0")
    a("v_and_b32 v1, 63, v0")
    a("v_readfirstlane_b32 s3, v3")
    a("v_and_b32 v2, 15, v1")
    a("v_lshrrev_b32 v3, 4, v1")
    a("s_mov_b32 s%d, 0x05040100" % S_SELLO)
    a("s_mov_b32 s%d, 0x07060302" % S_SELHI)
    a("s_waitcnt lgkmcnt(0)")


def srd(a, d, p, size, off=None, off_sgpr=None):
    if off_sgpr is not None:
        a("s_add_u32 s%d, s%d, s%d" % (d, p, off_sgpr))
        a("s_addc_u32 s%d, s%d, 0" % (d + 1, p + 1))
        a("s_and_b32 s%d, s%d, 0xffff" % (d + 1, d + 1))
    elif off:
        a("s_add_u32 s%d, s%d, 0x%x" % (d, p, off))
        a("s_addc_u32 s%d, s%d, 0" % (d + 1, p + 1))
        a("s_and_b32 s%d, s%d, 0xffff" % (d + 1, d + 1))
    else:
        a("s_mov_b32 s%d, s%d" % (d, p))
        a("s_and_b32 s%d, s%d, 0xffff" % (d + 1, p + 1))
    a("s_mov_b32 s%d, 0x%x" % (d + 2, size))
    a("s_mov_b32 s%d, 0x%x" % (d + 3, SRD3))


def red_g(a, op, x, t):
    a("v_mov_b32 %s, %s" % (v(t), v(x)))
    a.nop(2)
    a("v_permlane16_swap_b32 %s, %s" % (v(x), v(t)))
    a.nop(1)
    a("%s %s, %s, %s" % (op, v(x), v(x), v(t)))
    a("v_mov_b32 %s, %s" % (v(t), v(x)))
    a.nop(2)
    a("v_permlane32_swap_b32 %s, %s" % (v(x), v(t)))
    a.nop(1)
    a("%s %s, %s, %s" % (op, v(x), v(x), v(t)))


def red_16(a, op, x, t):
    a.nop(2)
    a("%s_dpp %s, %s, %s quad_perm:[1,0,3,2] row_mask:0xf bank_mask:0xf" % (op, v(t), v(x), v(x)))
    a.nop(2)
    a("%s_dpp %s, %s, %s quad_perm:[2,3,0,1] row_mask:0xf bank_mask:0xf" % (op, v(x), v(t), v(t)))
    a.nop(2)
    a("%s_dpp %s, %s, %s row_half_mirror row_mask:0xf bank_mask:0xf" % (op, v(t), v(x), v(x)))
    a.nop(2)
    a("%s_dpp %s, %s, %s row_mirror row_mask:0xf bank_mask:0xf" % (op, v(x), v(t), v(t)))


def red_64(a, op, x, t):
    red_16(a, op, x, t)
    red_g(a, op, x, t)


def layernorm(a, vx, t, vaddr):
    f = t
    d = t + 8
    S, T, M, R, VB, MB, SQ, RC = [t + 16 + i for i in range(8)]
    for i in range(4):
        a("v_lshlrev_b32 %s, 16, %s" % (v(f + 2 * i), v(vx + i)))
        a("v_and_b32 %s, 0xffff0000, %s" % (v(f + 2 * i + 1), v(vx + i)))
    a("v_add_f32 %s, %s, %s" % (v(S), v(f), v(f + 1)))
    for i in range(2, 8):
        a("v_add_f32 %s, %s, %s" % (v(S), v(S), v(f + i)))
    red_64(a, "v_add_f32", S, T)
    a("v_mul_f32 %s, 0x3b000000, %s" % (v(M), v(S)))
    for i in range(8):
        a("v_sub_f32 %s, %s, %s" % (v(d + i), v(f + i), v(M)))
    a("v_mul_f32 %s, %s, %s" % (v(S), v(d), v(d)))
    for i in range(1, 8):
        a("v_fma_f32 %s, %s, %s, %s" % (v(S), v(d + i), v(d + i), v(S)))
    red_64(a, "v_add_f32", S, T)
    a("v_mul_f32 %s, 0x3b000000, %s" % (v(S), v(S)))
    a("v_cvt_pk_bf16_f32 %s, %s, %s" % (v(R), v(S), v(M)))
    a("v_lshlrev_b32 %s, 16, %s" % (v(VB), v(R)))
    a("v_and_b32 %s, 0xffff0000, %s" % (v(MB), v(R)))
    a("v_add_f32 %s, 0x3727c5ac, %s" % (v(VB), v(VB)))
    a("v_cvt_pk_bf16_f32 %s, %s, %s" % (v(R), v(VB), v(VB)))
    a("v_lshlrev_b32 %s, 16, %s" % (v(VB), v(R)))
    a("v_sqrt_f32 %s, %s" % (v(SQ), v(VB)))
    a.nop(1)
    a("v_cvt_pk_bf16_f32 %s, %s, %s" % (v(R), v(SQ), v(SQ)))
    a("v_lshlrev_b32 %s, 16, %s" % (v(SQ), v(R)))
    a("v_rcp_f32 %s, %s" % (v(RC), v(SQ)))
    for i in range(8):
        a("v_sub_f32 %s, %s, %s" % (v(d + i), v(f + i), v(MB)))
    for i in range(4):
        a("v_cvt_pk_bf16_f32 %s, %s, %s" % (v(f + i), v(d + 2 * i), v(d + 2 * i + 1)))
    for i in range(4):
        a("v_lshlrev_b32 %s, 16, %s" % (v(d + 2 * i), v(f + i)))
        a("v_and_b32 %s, 0xffff0000, %s" % (v(d + 2 * i + 1), v(f + i)))
    for i in range(8):
        a("v_mul_f32 %s, %s, %s" % (v(f + i), v(d + i), v(RC)))
    for i in range(8):
        a("v_fma_f32 %s, -%s, %s, %s" % (v(d + i), v(f + i), v(SQ), v(d + i)))
    for i in range(8):
        a("v_fma_f32 %s, %s, %s, %s" % (v(f + i), v(d + i), v(RC), v(f + i)))
    for i in range(4):
        a("v_cvt_pk_bf16_f32 %s, %s, %s" % (v(d + i), v(f + 2 * i), v(f + 2 * i + 1)))
    a("ds_write_b128 %s, %s" % (v(vaddr), vr(d, 4)))


def unit8(a, L, F, A, acc, first):
    def perms(t):
        c, e = t >> 1, t & 1
        for p in range(4):
            a("v_perm_b32 %s, %s, %s, s%d" % (v(F + 4 * t + p), v(L + 4 * (2 * p + 1) + c), v(L + 4 * (2 * p) + c),
                                              S_SELHI if e else S_SELLO))

    def mf(t):
        a("v_mfma_f32_16x16x32_bf16 %s, %s, %s, %s" % (vr(acc + 4 * t, 4), vr(A, 4), vr(F + 4 * t, 4),
                                                       "0" if first else vr(acc + 4 * t, 4)))
    perms(0)
    for t in range(1, 8):
        perms(t)
        mf(t - 1)
    a.nop(2)
    mf(7)


def unit4(a, L, F, A, acc, first):
    def perms(t):
        c, e = t >> 1, t & 1
        for p in range(4):
            a("v_perm_b32 %s, %s, %s, s%d" % (v(F + 4 * t + p), v(L + 2 * (2 * p + 1) + c), v(L + 2 * (2 * p) + c),
                                              S_SELHI if e else S_SELLO))

    def mf(t):
        a("v_mfma_f32_16x16x32_bf16 %s, %s, %s, %s" % (vr(acc + 4 * t, 4), vr(A, 4), vr(F + 4 * t, 4),
                                                       "0" if first else vr(acc + 4 * t, 4)))
    perms(0)
    for t in range(1, 4):
        perms(t)
        mf(t - 1)
    a.nop(2)
    mf(3)


def exec_lo16(a):
    a("s_mov_b64 exec, 0xffff")


def exec_all(a):
    a("s_mov_b64 exec, -1")


LOG2E = 1.4426950408889634


def f32hex(x):
    import struct
    return "0x%08x" % struct.unpack("<I", struct.pack("<f", x))[0]


def silu_inplace(a, x, t):
    a("v_mul_f32 %s, %s, %s" % (v(t), f32hex(-LOG2E), v(x)))
    a("v_exp_f32 %s, %s" % (v(t), v(t)))
    a.nop(1)
    a("v_add_f32 %s, 1.0, %s" % (v(t), v(t)))
    a("v_rcp_f32 %s, %s" % (v(t), v(t)))
    a.nop(1)
    a("v_mul_f32 %s, %s, %s" % (v(x), v(x), v(t)))


def gen_k1(a):
    name = "k1_kernel"
    kernel_begin(a, name)
    XN, RED, QL = 0, 4352, 12544
    prologue(a, 368, "k1_end")
    SX, SW, SU, SO = 44, 48, 52, 56
    srd(a, SX, P_X, 4096)
    srd(a, SO, P_WS, WS_USED)
    a("s_lshl_b32 s4, s3, 10")
    a("v_lshlrev_b32 v4, 4, v1")
    a("v_add_u32 v5, s4, v4")
    a("buffer_load_dwordx4 v[8:11], v5, s[%d:%d], 0 offen" % (SX, SX + 3))
    a("s_mul_i32 s4, s3, 1088")
    a("v_add_u32 v6, s4, v4")
    a("s_cmp_ge_u32 s2, 256")
    a("s_cbranch_scc1 k1_ffn")
    a("s_and_b32 s4, s2, 7")
    a("s_lshr_b32 s5, s2, 3")
    a("s_lshr_b32 s6, s5, 3")
    a("s_lshl_b32 s4, s4, 2")
    a("s_add_u32 s6, s6, s4")
    a("s_and_b32 s7, s5, 7")
    srd(a, SW, P_WQ, 4194304)
    srd(a, SU, P_WUK, 4194304)
    a("s_lshl_b32 s8, s3, 20")
    a("s_lshl_b32 s9, s6, 8")
    a("s_add_u32 s8, s8, s9")
    a("v_lshlrev_b32 v7, 16, v3")
    a("v_lshlrev_b32 v12, 4, v2")
    a("v_add3_u32 v7, v7, v12, s8")
    LQ = 16
    for u in range(4):
        for i in range(8):
            a("s_mov_b32 s10, 0x%x" % ((32 * u + i) * 8192))
            a("buffer_load_dwordx4 %s, v7, s[%d:%d], s10 offen" % (vr(LQ + 32 * u + 4 * i, 4), SW, SW + 3))
    LU = 144
    a("s_lshl_b32 s8, s7, 6")
    a("s_lshl_b32 s10, s3, 4")
    a("s_add_u32 s8, s8, s10")
    a("v_add_u32 v12, s8, v2")
    a("v_lshlrev_b32 v12, 13, v12")
    a("v_lshlrev_b32 v13, 4, v3")
    a("v_add3_u32 v12, v12, v13, s9")
    for st in range(4):
        a("buffer_load_dwordx4 %s, v12, s[%d:%d], 0 offen offset:%d" % (vr(LU + 4 * st, 4), SU, SU + 3, 64 * st))
    if PF1:
        srd(a, 60, P_CKV, 16777216)
        a("s_lshr_b32 s10, s2, 4")
        a("s_lshl_b32 s10, s10, 3")
        a("s_and_b32 s11, s2, 7")
        a("s_add_u32 s10, s10, s11")
        a("s_lshl_b32 s10, s10, 17")
        a("s_lshr_b32 s11, s2, 3")
        a("s_and_b32 s11, s11, 1")
        a("s_lshl_b32 s11, s11, 16")
        a("s_add_u32 s10, s10, s11")
        a("v_lshlrev_b32 v14, 4, v0")
        for i in range(PF1):
            a("s_add_u32 s11, s10, %d" % (4096 * i))
            a("buffer_load_dwordx4 v[240:243], v14, s[60:63], s11 offen")
    a("s_waitcnt vmcnt(%d)" % (36 + PF1))
    layernorm(a, 8, 208, 6)
    a("s_waitcnt lgkmcnt(0)")
    a("s_barrier")
    AF = 160
    a("v_and_b32 v13, 3, v1")
    a("v_mul_u32_u24 v13, 1088, v13")
    a("v_lshlrev_b32 v14, 4, v3")
    a("s_lshl_b32 s10, s3, 8")
    a("v_add3_u32 v13, v13, v14, s10")
    for u in range(4):
        a("ds_read_b128 %s, v13 offset:%d" % (vr(AF + 4 * u, 4), XN + 64 * u))
    ACC = 176
    FX = 208
    a("s_waitcnt lgkmcnt(0)")
    for u in range(4):
        a("s_waitcnt vmcnt(%d)" % ((3 - u) * 8 + 4 + PF1))
        unit8(a, LQ + 32 * u, FX if u == 0 else LQ + 32 * (u - 1), AF + 4 * u, ACC, u == 0)
    a.nop(8)
    a("s_lshl_b32 s10, s3, 11")
    a("v_lshlrev_b32 v13, 4, v2")
    a("v_add_u32 v13, s10, v13")
    exec_lo16(a)
    for t in range(8):
        a("ds_write_b128 v13, %s offset:%d" % (vr(ACC + 4 * t, 4), RED + 256 * t))
    exec_all(a)
    a("s_waitcnt lgkmcnt(0)")
    a("s_barrier")
    a("s_cmp_ge_u32 s3, 2")
    a("s_cbranch_scc1 k1_sumdone")
    a("v_lshlrev_b32 v13, 4, v0")
    for w in range(4):
        a("ds_read_b128 %s, v13 offset:%d" % (vr(16 + 4 * w, 4), RED + 2048 * w))
    a("v_lshrrev_b32 v14, 4, v0")
    a("v_lshlrev_b32 v15, 4, v2")
    a("v_lshl_add_u32 v14, v14, 1, v15")
    a("s_waitcnt lgkmcnt(0)")
    for b in range(4):
        a("v_add_f32 %s, %s, %s" % (v(16 + b), v(16 + b), v(20 + b)))
        a("v_add_f32 %s, %s, %s" % (v(24 + b), v(24 + b), v(28 + b)))
    for b in range(4):
        a("v_add_f32 %s, %s, %s" % (v(16 + b), v(16 + b), v(24 + b)))
    a("v_cvt_pk_bf16_f32 v20, v16, v17")
    a("v_cvt_pk_bf16_f32 v21, v18, v19")
    a("ds_write_b16 v14, v20 offset:%d" % (QL))
    a("ds_write_b16_d16_hi v14, v20 offset:%d" % (QL + 320))
    a("ds_write_b16 v14, v21 offset:%d" % (QL + 640))
    a("ds_write_b16_d16_hi v14, v21 offset:%d" % (QL + 960))
    a("s_waitcnt lgkmcnt(0)")
    a.label("k1_sumdone")
    a("s_barrier")
    a("v_and_b32 v13, 3, v1")
    a("v_mul_u32_u24 v13, 320, v13")
    a("v_lshl_add_u32 v13, v3, 4, v13")
    for st in range(4):
        a("ds_read_b128 %s, v13 offset:%d" % (vr(16 + 4 * st, 4), QL + 64 * st))
    a("s_waitcnt vmcnt(%d) lgkmcnt(0)" % PF1)
    for st in range(4):
        a("v_mfma_f32_16x16x32_bf16 v[32:35], %s, %s, %s" % (vr(LU + 4 * st, 4), vr(16 + 4 * st, 4),
                                                            "0" if st == 0 else "v[32:35]"))
    a("v_lshlrev_b32 v13, 15, v2")
    a("v_lshlrev_b32 v14, 3, v3")
    a("s_lshl_b32 s10, s6, 10")
    a("s_lshl_b32 s11, s8, 1")
    a("s_add_u32 s10, s10, s11")
    a("v_add3_u32 v13, v13, v14, s10")
    a("v_cmp_gt_u32 vcc, 4, v2")
    a.nop(4)
    sc = f32hex(LOG2E * (128 ** -0.5))
    for r in range(4):
        a("v_mul_f32 %s, %s, %s" % (v(32 + r), sc, v(32 + r)))
    a("v_cvt_pk_bf16_f32 v36, v32, v33")
    a("v_cvt_pk_bf16_f32 v37, v34, v35")
    a("s_and_saveexec_b64 s[12:13], vcc")
    a("buffer_store_dwordx2 v[36:37], v13, s[%d:%d], 0 offen offset:%d" % (SO, SO + 3, QABS))
    a("s_endpgm")
    a.label("k1_ffn")
    a("s_sub_u32 s4, s2, 256")
    a("s_and_b32 s5, s4, 3")
    a("s_lshr_b32 s6, s4, 2")
    a("s_lshr_b32 s7, s3, 1")
    a("s_and_b32 s8, s3, 1")
    a("s_cmp_eq_u32 s7, 0")
    a("s_cselect_b32 s10, s%d, s%d" % (P_WG, P_WU))
    a("s_cselect_b32 s11, s%d, s%d" % (P_WG + 1, P_WU + 1))
    srd(a, SW, 10, 512 * 3584)
    a("s_lshl_b32 s9, s5, 1")
    a("s_add_u32 s9, s9, s8")
    a("s_mul_i32 s10, s9, %d" % (64 * 3584))
    a("s_lshl_b32 s11, s6, 7")
    a("s_add_u32 s10, s10, s11")
    a("v_mul_u32_u24 v7, %d, v3" % (8 * 3584))
    a("v_lshlrev_b32 v12, 3, v2")
    a("v_add3_u32 v7, v7, v12, s10")
    LF = 16
    for u in range(2):
        for i in range(8):
            a("s_mov_b32 s10, 0x%x" % ((32 * u + i) * 3584))
            a("buffer_load_dwordx2 %s, v7, s[%d:%d], s10 offen" % (vr(LF + 16 * u + 2 * i, 2), SW, SW + 3))
    a("s_waitcnt vmcnt(16)")
    layernorm(a, 8, 208, 6)
    a("s_waitcnt lgkmcnt(0)")
    a("s_barrier")
    a("v_and_b32 v13, 3, v1")
    a("v_mul_u32_u24 v13, 1088, v13")
    a("v_lshlrev_b32 v14, 4, v3")
    a("s_lshl_b32 s10, s9, 7")
    a("v_add3_u32 v13, v13, v14, s10")
    for u in range(2):
        a("ds_read_b128 %s, v13 offset:%d" % (vr(AF + 4 * u, 4), XN + 64 * u))
    a("s_waitcnt lgkmcnt(0)")
    for u in range(2):
        a("s_waitcnt vmcnt(%d)" % ((1 - u) * 8))
        unit4(a, LF + 16 * u, FX + 16 * u, AF + 4 * u, ACC, u == 0)
    a("s_lshl_b32 s10, s9, 1")
    a("s_add_u32 s10, s10, s7")
    a("s_mul_i32 s10, s10, %d" % (1792 * 16))
    a("s_lshl_b32 s11, s6, 10")
    a("s_add_u32 s10, s10, s11")
    a("s_add_u32 s10, s10, 0x%x" % GU)
    a("v_lshlrev_b32 v13, 6, v2")
    a("v_add_u32 v13, s10, v13")
    a.nop(8)
    exec_lo16(a)
    for t in range(4):
        a("buffer_store_dwordx4 %s, v13, s[%d:%d], 0 offen offset:%d" % (vr(ACC + 4 * t, 4), SO, SO + 3, 16 * t))
    a.label("k1_end")
    a("s_endpgm")
    return name, 244


def gen_k2(a):
    name = "k2_kernel"
    kernel_begin(a, name)
    RS = 1056
    PL = 0
    MX = PL + 4096
    LS = MX + 256
    CKV = 4608
    prologue(a, 256, "k2_end")
    SC, SO = 44, 48
    a("s_and_b32 s4, s2, 7")
    a("s_lshr_b32 s5, s2, 3")
    a("s_and_b32 s6, s5, 1")
    a("s_lshr_b32 s5, s5, 1")
    a("s_lshl_b32 s5, s5, 3")
    a("s_add_u32 s5, s5, s4")
    a("s_lshr_b32 s7, s5, 5")
    a("s_and_b32 s8, s5, 31")
    a("s_lshl_b32 s9, s5, 17")
    srd(a, SC, P_CKV, 131072, off_sgpr=9)
    srd(a, SO, P_WS, WS_USED)
    QF = 16
    a("s_lshl_b32 s9, s7, 5")
    a("s_lshl_b32 s10, s6, 4")
    a("s_add_u32 s9, s9, s10")
    a("s_lshl_b32 s10, s9, 10")
    a("v_lshlrev_b32 v4, 10, v2")
    a("v_lshlrev_b32 v5, 4, v3")
    a("v_add3_u32 v4, v4, v5, s10")
    for st in range(16):
        a("buffer_load_dwordx4 %s, v4, s[%d:%d], 0 offen offset:%d" % (vr(QF + 4 * st, 4), SO, SO + 3, QABS + 64 * st))
    a("v_lshlrev_b32 v5, 4, v1")
    a("s_mul_i32 s10, s3, %d" % (32 * RS))
    a("s_lshl_b32 s11, s3, 15")
    for i in range(32):
        a("s_add_u32 m0, s10, %d" % (CKV + i * RS))
        a("s_add_u32 s12, s11, %d" % (i * 1024))
        a("buffer_load_dwordx4 v5, s[%d:%d], s12 offen lds" % (SC, SC + 3))
    NP2 = 10 if PF2 else 0
    if PF2:
        srd(a, 52, P_WUV, 4194304)
        srd(a, 56, P_WO, 4194304)
        srd(a, 60, P_WD, 1792 * 1024)
        a("s_and_b32 s12, s2, 7")
        a("s_lshr_b32 s13, s2, 3")
        a("s_lshl_b32 s64, s13, 17")
        a("s_lshl_b32 s65, s3, 13")
        a("s_add_u32 s64, s64, s65")
        a("s_lshl_b32 s65, s12, 10")
        a("s_add_u32 s64, s64, s65")
        for i in range(4):
            a("s_add_u32 s65, s64, %d" % (4 * 8192 * i))
            a("buffer_load_dwordx4 v[208:211], v5, s[52:55], s65 offen")
        a("v_lshlrev_b32 v6, 4, v0")
        a("s_lshl_b32 s64, s12, 19")
        a("s_lshl_b32 s65, s13, 14")
        a("s_add_u32 s64, s64, s65")
        for i in range(4):
            a("s_add_u32 s65, s64, %d" % (4096 * i))
            a("buffer_load_dwordx4 v[208:211], v6, s[56:59], s65 offen")
        a("s_mul_i32 s64, s13, 37")
        a("s_lshr_b32 s64, s64, 8")
        a("s_mul_i32 s65, s64, 7")
        a("s_sub_u32 s65, s13, s65")
        a("s_lshl_b32 s65, s65, 3")
        a("s_add_u32 s65, s65, s12")
        a("s_lshl_b32 s65, s65, 15")
        a("s_lshl_b32 s64, s64, 13")
        a("s_add_u32 s64, s64, s65")
        for i in range(2):
            a("s_add_u32 s65, s64, %d" % (4096 * i))
            a("buffer_load_dwordx4 v[208:211], v6, s[60:63], s65 offen")
    a("v_mul_u32_u24 v6, %d, v2" % RS)
    a("v_lshlrev_b32 v7, 4, v3")
    a("v_add3_u32 v6, v6, v7, s10")
    AF = 80
    SCO = 144
    for T in range(2):
        a("s_waitcnt vmcnt(%d)" % ((16 if T == 0 else 0) + NP2))
        for st in range(16):
            a("ds_read_b128 %s, v6 offset:%d" % (vr(AF + 4 * st, 4), CKV + T * 16 * RS + st * 64))
        for st in range(16):
            a("s_waitcnt lgkmcnt(%d)" % (15 - st))
            a("v_mfma_f32_16x16x32_bf16 %s, %s, %s, %s" % (vr(SCO + 4 * T, 4), vr(AF + 4 * st, 4), vr(QF + 4 * st, 4),
                                                          "0" if st == 0 else vr(SCO + 4 * T, 4)))
    a.nop(8)
    a("v_max3_f32 v8, v144, v145, v146")
    a("v_max3_f32 v8, v8, v147, v148")
    a("v_max3_f32 v8, v8, v149, v150")
    a("v_max_f32 v8, v8, v151")
    red_g(a, "v_max_f32", 8, 9)
    a("s_lshl_b32 s12, s3, 6")
    a("v_lshlrev_b32 v10, 2, v2")
    a("v_add_u32 v11, s12, v10")
    exec_lo16(a)
    a("ds_write_b32 v11, v8 offset:%d" % MX)
    exec_all(a)
    a("s_waitcnt lgkmcnt(0)")
    a("s_barrier")
    for w in range(4):
        a("ds_read_b32 %s, v10 offset:%d" % (v(12 + w), MX + 64 * w))
    a("s_waitcnt lgkmcnt(0)")
    a("v_max3_f32 v8, v12, v13, v14")
    a("v_max_f32 v8, v8, v15")
    for r in range(8):
        a("v_sub_f32 %s, %s, v8" % (v(SCO + r), v(SCO + r)))
    for r in range(8):
        a("v_exp_f32 %s, %s" % (v(SCO + r), v(SCO + r)))
    a.nop(1)
    for r in range(4):
        a("v_cvt_pk_bf16_f32 %s, %s, %s" % (v(152 + r), v(SCO + 2 * r), v(SCO + 2 * r + 1)))
    a("v_add_f32 v9, v144, v145")
    for r in range(2, 8):
        a("v_add_f32 v9, v9, %s" % v(SCO + r))
    a("s_lshl_b32 s12, s3, 10")
    a("v_lshlrev_b32 v12, 4, v1")
    a("v_add_u32 v13, s12, v12")
    a("ds_write_b128 v13, v[152:155] offset:%d" % PL)
    red_g(a, "v_add_f32", 9, 14)
    exec_lo16(a)
    a("ds_write_b32 v11, v9 offset:%d" % LS)
    exec_all(a)
    a("s_waitcnt lgkmcnt(0)")
    a("s_barrier")
    PF = 156
    for st in range(4):
        a("ds_read_b128 %s, v12 offset:%d" % (vr(PF + 4 * st, 4), PL + 1024 * st))
    a("v_lshrrev_b32 v13, 2, v2")
    a("v_lshl_add_u32 v13, v3, 2, v13")
    a("v_mul_u32_u24 v13, %d, v13" % RS)
    a("v_and_b32 v14, 3, v2")
    a("v_lshlrev_b32 v14, 3, v14")
    a("s_lshl_b32 s12, s3, 8")
    a("v_add3_u32 v13, v13, v14, s12")
    a("v_add_u32 v14, %d, v13" % (64 * RS))
    ACC = 176
    TB = [16, 48]
    groups = [(st, ch) for st in range(4) for ch in range(2)]

    def issue(k):
        st, ch = groups[k]
        buf = 16 + 16 * (k % 4)
        base = 13 if st < 2 else 14
        for q in range(4):
            ct = 4 * ch + q
            off = CKV + (st & 1) * 32 * RS + ct * 32
            a("ds_read_b64_tr_b16 %s, %s offset:%d" % (vr(buf + 4 * q, 2), v(base), off))
            a("ds_read_b64_tr_b16 %s, %s offset:%d" % (vr(buf + 4 * q + 2, 2), v(base), off + 16 * RS))

    def compute(k):
        st, ch = groups[k]
        buf = 16 + 16 * (k % 4)
        for q in range(4):
            ct = 4 * ch + q
            a("v_mfma_f32_16x16x32_bf16 %s, %s, %s, %s" % (vr(ACC + 4 * ct, 4), vr(buf + 4 * q, 4), vr(PF + 4 * st, 4),
                                                          "0" if st == 0 else vr(ACC + 4 * ct, 4)))
    issue(0)
    for k in range(8):
        if k + 1 < 8:
            issue(k + 1)
            a("s_waitcnt lgkmcnt(8)")
        else:
            a("s_waitcnt lgkmcnt(0)")
        compute(k)
    a("s_lshl_b32 s12, s9, 15")
    a("s_lshl_b32 s13, s8, 10")
    a("s_add_u32 s12, s12, s13")
    a("s_lshl_b32 s13, s3, 8")
    a("s_add_u32 s12, s12, s13")
    a("s_add_u32 s12, s12, 0x%x" % PART)
    a("v_lshlrev_b32 v13, 15, v2")
    a("v_lshlrev_b32 v14, 3, v3")
    a("v_add3_u32 v13, v13, v14, s12")
    a.nop(4)
    for ct in range(8):
        a("v_cvt_pk_bf16_f32 %s, %s, %s" % (v(16 + 2 * ct), v(ACC + 4 * ct), v(ACC + 4 * ct + 1)))
        a("v_cvt_pk_bf16_f32 %s, %s, %s" % (v(16 + 2 * ct + 1), v(ACC + 4 * ct + 2), v(ACC + 4 * ct + 3)))
    for ct in range(8):
        a("buffer_store_dwordx2 %s, v13, s[%d:%d], 0 offen offset:%d" % (vr(16 + 2 * ct, 2), SO, SO + 3, 32 * ct))
    a("s_cmp_lg_u32 s3, 0")
    a("s_cbranch_scc1 k2_end")
    for w in range(4):
        a("ds_read_b32 %s, v10 offset:%d" % (v(40 + w), LS + 64 * w))
    a("s_lshl_b32 s12, s9, 8")
    a("s_lshl_b32 s13, s8, 3")
    a("s_add_u32 s12, s12, s13")
    a("s_add_u32 s12, s12, 0x%x" % STATS)
    a("v_lshlrev_b32 v13, 8, v2")
    a("v_add_u32 v13, s12, v13")
    a("s_waitcnt lgkmcnt(0)")
    a("v_add_f32 v40, v40, v41")
    a("v_add_f32 v42, v42, v43")
    a("v_add_f32 v9, v40, v42")
    exec_lo16(a)
    a("buffer_store_dwordx2 v[8:9], v13, s[%d:%d], 0 offen" % (SO, SO + 3))
    a.label("k2_end")
    a("s_endpgm")
    return name, 212, 128 * RS + 4096 + 512


def gen_k3(a):
    name = "k3_kernel"
    kernel_begin(a, name)
    LAT = 0
    RED = 1280
    CTX = RED + 16384
    HA = CTX + 1280
    prologue(a, 312, "k3_end")
    SO, SV, SW = 44, 48, 52
    srd(a, SO, P_WS, WS_USED)
    a("s_cmp_ge_u32 s2, 256")
    a("s_cbranch_scc1 k3_ffn")
    a("s_and_b32 s4, s2, 7")
    a("s_lshr_b32 s5, s2, 3")
    a("s_lshr_b32 s6, s5, 3")
    a("s_lshl_b32 s4, s4, 2")
    a("s_add_u32 s6, s6, s4")
    a("s_lshr_b32 s7, s5, 1")
    a("s_and_b32 s7, s7, 3")
    a("s_and_b32 s8, s5, 1")
    srd(a, SV, P_WUV, 4194304)
    srd(a, SW, P_WO, 4194304)
    a("s_mov_b32 s13, 4096")
    ST = 16
    a("s_lshl_b32 s9, s3, 5")
    a("s_add_u32 s9, s9, s6")
    a("s_lshl_b32 s10, s9, 8")
    a("s_add_u32 s10, s10, 0x%x" % STATS)
    a("v_lshlrev_b32 v4, 6, v3")
    a("v_add_u32 v4, s10, v4")
    for i in range(4):
        a("buffer_load_dwordx4 %s, v4, s[%d:%d], 0 offen offset:%d" % (vr(ST + 4 * i, 4), SO, SO + 3, 16 * i))
    LP = 32
    a("s_lshl_b32 s10, s9, 15")
    a("s_lshl_b32 s11, s7, 8")
    a("s_add_u32 s10, s10, s11")
    a("s_add_u32 s10, s10, 0x%x" % PART)
    a("v_lshlrev_b32 v4, 13, v3")
    a("v_lshlrev_b32 v5, 4, v2")
    a("v_add3_u32 v4, v4, v5, s10")
    for i in range(8):
        a("buffer_load_dwordx4 %s, v4, s[%d:%d], %s offen offset:%d" % (vr(LP + 4 * i, 4), SO, SO + 3,
                                                                       "0" if i < 4 else "s13", (i & 3) * 1024))
    LV = 64
    a("s_lshl_b32 s10, s7, 20")
    a("s_lshl_b32 s11, s3, 18")
    a("s_add_u32 s10, s10, s11")
    a("s_lshl_b32 s11, s6, 8")
    a("s_add_u32 s10, s10, s11")
    a("v_lshlrev_b32 v4, 16, v3")
    a("v_add3_u32 v4, v4, v5, s10")
    for i in range(8):
        a("s_mov_b32 s12, 0x%x" % (i * 8192))
        a("buffer_load_dwordx4 %s, v4, s[%d:%d], s12 offen" % (vr(LV + 4 * i, 4), SV, SV + 3))
    LO = 96
    a("s_lshl_b32 s10, s6, 17")
    a("s_lshl_b32 s11, s3, 15")
    a("s_add_u32 s10, s10, s11")
    a("s_lshl_b32 s11, s8, 9")
    a("s_add_u32 s10, s10, s11")
    a("v_lshlrev_b32 v4, 13, v3")
    a("v_add3_u32 v4, v4, v5, s10")
    for cb in range(2):
        for i in range(8):
            a("buffer_load_dwordx4 %s, v4, s[%d:%d], %s offen offset:%d" % (
                vr(LO + 32 * cb + 4 * i, 4), SW, SW + 3, "0" if i < 4 else "s13", (i & 3) * 1024 + cb * 256))
    a("s_waitcnt vmcnt(32)")
    a("v_max3_f32 v6, v16, v18, v20")
    a("v_max3_f32 v6, v6, v22, v24")
    a("v_max3_f32 v6, v6, v26, v28")
    a("v_max_f32 v6, v6, v30")
    red_g(a, "v_max_f32", 6, 7)
    for i in range(8):
        a("v_sub_f32 %s, %s, v6" % (v(ST + 2 * i), v(ST + 2 * i)))
    for i in range(8):
        a("v_exp_f32 %s, %s" % (v(ST + 2 * i), v(ST + 2 * i)))
    a.nop(1)
    a("v_mul_f32 v7, v16, v17")
    for i in range(1, 8):
        a("v_fma_f32 v7, %s, %s, v7" % (v(ST + 2 * i), v(ST + 2 * i + 1)))
    red_g(a, "v_add_f32", 7, 8)
    a("v_rcp_f32 v7, v7")
    a.nop(1)
    for i in range(8):
        a("v_mul_f32 %s, %s, v7" % (v(ST + 2 * i), v(ST + 2 * i)))
    AW = 8
    for p in range(4):
        a("v_cvt_pk_bf16_f32 %s, %s, %s" % (v(AW + p), v(ST + 4 * p), v(ST + 4 * p + 2)))
    ACC = 192
    FX = 160
    a("s_waitcnt vmcnt(24)")
    unit8(a, LP, FX, AW, ACC, True)
    a.nop(8)
    for p in range(4):
        a("v_cvt_pk_bf16_f32 %s, %s, %s" % (v(16 + p), v(ACC + 8 * p), v(ACC + 8 * p + 4)))
    a("s_mul_i32 s10, s3, 320")
    a("v_add_u32 v4, s10, v5")
    exec_lo16(a)
    a("ds_write_b128 v4, v[16:19] offset:%d" % LAT)
    exec_all(a)
    a("s_waitcnt lgkmcnt(0)")
    a("s_barrier")
    a("v_and_b32 v6, 3, v1")
    a("v_mul_u32_u24 v6, 320, v6")
    a("v_lshl_add_u32 v6, v3, 4, v6")
    a("s_lshl_b32 s10, s3, 6")
    a("v_add_u32 v6, s10, v6")
    a("ds_read_b128 v[8:11], v6 offset:%d" % LAT)
    a("s_waitcnt vmcnt(16) lgkmcnt(0)")
    unit8(a, LV, FX, 8, ACC, True)
    a.nop(8)
    a("s_lshl_b32 s10, s3, 12")
    a("v_add_u32 v4, s10, v5")
    exec_lo16(a)
    for t in range(8):
        a("ds_write_b128 v4, %s offset:%d" % (vr(ACC + 4 * t, 4), RED + 256 * t))
    exec_all(a)
    a("s_waitcnt lgkmcnt(0)")
    a("s_barrier")
    a("s_cmp_ge_u32 s3, 2")
    a("s_cbranch_scc1 k3_sumdone")
    a("v_lshlrev_b32 v7, 4, v0")
    for w in range(4):
        a("ds_read_b128 %s, v7 offset:%d" % (vr(16 + 4 * w, 4), RED + 4096 * w))
    a("v_lshrrev_b32 v12, 4, v0")
    a("v_lshlrev_b32 v13, 4, v2")
    a("v_lshl_add_u32 v12, v12, 1, v13")
    a("s_waitcnt lgkmcnt(0)")
    for b in range(4):
        a("v_add_f32 %s, %s, %s" % (v(16 + b), v(16 + b), v(20 + b)))
        a("v_add_f32 %s, %s, %s" % (v(24 + b), v(24 + b), v(28 + b)))
    for b in range(4):
        a("v_add_f32 %s, %s, %s" % (v(16 + b), v(16 + b), v(24 + b)))
    a("v_cvt_pk_bf16_f32 v20, v16, v17")
    a("v_cvt_pk_bf16_f32 v21, v18, v19")
    a("ds_write_b16 v12, v20 offset:%d" % (CTX))
    a("ds_write_b16_d16_hi v12, v20 offset:%d" % (CTX + 320))
    a("ds_write_b16 v12, v21 offset:%d" % (CTX + 640))
    a("ds_write_b16_d16_hi v12, v21 offset:%d" % (CTX + 960))
    a("s_waitcnt lgkmcnt(0)")
    a.label("k3_sumdone")
    a("s_barrier")
    a("ds_read_b128 v[8:11], v6 offset:%d" % CTX)
    a("s_waitcnt vmcnt(8) lgkmcnt(0)")
    unit8(a, LO, FX, 8, ACC, True)
    a("s_waitcnt vmcnt(0)")
    unit8(a, LO + 32, LO, 8, ACC + 32, True)
    a.nop(8)
    exec_lo16(a)
    for cb in range(2):
        for t in range(8):
            a("ds_write_b128 v4, %s offset:%d" % (vr(ACC + 32 * cb + 4 * t, 4), RED + 2048 * cb + 256 * t))
    exec_all(a)
    a("s_waitcnt lgkmcnt(0)")
    a("s_barrier")
    a("v_lshlrev_b32 v7, 4, v0")
    for w in range(4):
        a("ds_read_b128 %s, v7 offset:%d" % (vr(16 + 4 * w, 4), RED + 4096 * w))
    a("s_lshl_b32 s10, s6, 2")
    a("s_add_u32 s10, s10, s7")
    a("s_lshl_b32 s10, s10, 13")
    a("s_lshl_b32 s11, s8, 12")
    a("s_add_u32 s10, s10, s11")
    a("s_add_u32 s10, s10, 0x%x" % SPART)
    a("v_add_u32 v12, s10, v7")
    a("s_waitcnt lgkmcnt(0)")
    for b in range(4):
        a("v_add_f32 %s, %s, %s" % (v(16 + b), v(16 + b), v(20 + b)))
        a("v_add_f32 %s, %s, %s" % (v(24 + b), v(24 + b), v(28 + b)))
    for b in range(4):
        a("v_add_f32 %s, %s, %s" % (v(16 + b), v(16 + b), v(24 + b)))
    a("buffer_store_dwordx4 v[16:19], v12, s[%d:%d], 0 offen" % (SO, SO + 3))
    a("s_endpgm")
    a.label("k3_ffn")
    a("s_sub_u32 s4, s2, 256")
    srd(a, SW, P_WD, 1792 * 1024)
    a("s_mov_b32 s13, 4096")
    GL = 16
    a("v_and_b32 v4, 31, v1")
    a("v_lshrrev_b32 v5, 5, v1")
    a("v_mul_u32_u24 v5, %d, v5" % (8 * 1792))
    a("s_lshl_b32 s10, s4, 5")
    a("v_add3_u32 v5, v5, v4, s10")
    a("v_lshlrev_b32 v5, 4, v5")
    a("v_add_u32 v5, 0x%x, v5" % GU)
    for kk in range(4):
        for mat in range(2):
            a("s_mov_b32 s12, 0x%x" % ((kk * 2 + mat) * 1792 * 16))
            a("buffer_load_dwordx4 %s, v5, s[%d:%d], s12 offen" % (vr(GL + 8 * kk + 4 * mat, 4), SO, SO + 3))
    LD = 64
    a("s_lshl_b32 s10, s4, 15")
    a("s_lshl_b32 s11, s3, 8")
    a("s_add_u32 s10, s10, s11")
    a("v_lshlrev_b32 v6, 13, v3")
    a("v_lshlrev_b32 v7, 4, v2")
    a("v_add3_u32 v6, v6, v7, s10")
    for i in range(8):
        a("buffer_load_dwordx4 %s, v6, s[%d:%d], %s offen offset:%d" % (vr(LD + 4 * i, 4), SW, SW + 3,
                                                                       "0" if i < 4 else "s13", (i & 3) * 1024))
    a("s_waitcnt vmcnt(8)")
    for q in range(8):
        a("v_add_f32 %s, %s, %s" % (v(GL + q), v(GL + q), v(GL + 8 + q)))
        a("v_add_f32 %s, %s, %s" % (v(GL + 16 + q), v(GL + 16 + q), v(GL + 24 + q)))
    for q in range(8):
        a("v_add_f32 %s, %s, %s" % (v(GL + q), v(GL + q), v(GL + 16 + q)))
    for q in range(8):
        a("v_mov_b32 %s, %s" % (v(GL + 8 + q), v(GL + q)))
    a.nop(2)
    for q in range(8):
        a("v_permlane32_swap_b32 %s, %s" % (v(GL + q), v(GL + 8 + q)))
    a.nop(1)
    for q in range(8):
        a("v_add_f32 %s, %s, %s" % (v(GL + q), v(GL + q), v(GL + 8 + q)))
    for p in range(4):
        a("v_cvt_pk_bf16_f32 %s, %s, %s" % (v(24 + p), v(GL + 2 * p), v(GL + 2 * p + 1)))
    for p in range(4):
        a("v_lshlrev_b32 %s, 16, %s" % (v(GL + 2 * p), v(24 + p)))
        a("v_and_b32 %s, 0xffff0000, %s" % (v(GL + 2 * p + 1), v(24 + p)))
    for b in range(4):
        silu_inplace(a, GL + b, 28 + b)
    a("v_cvt_pk_bf16_f32 v24, v16, v17")
    a("v_cvt_pk_bf16_f32 v25, v18, v19")
    a("v_lshlrev_b32 v16, 16, v24")
    a("v_and_b32 v17, 0xffff0000, v24")
    a("v_lshlrev_b32 v18, 16, v25")
    a("v_and_b32 v19, 0xffff0000, v25")
    for b in range(4):
        a("v_mul_f32 %s, %s, %s" % (v(16 + b), v(16 + b), v(20 + b)))
    a("v_cvt_pk_bf16_f32 v24, v16, v17")
    a("v_cvt_pk_bf16_f32 v25, v18, v19")
    a("s_mul_i32 s10, s3, 320")
    a("v_lshlrev_b32 v8, 1, v4")
    a("v_add_u32 v8, s10, v8")
    a("ds_write_b16 v8, v24 offset:%d" % (HA))
    a("ds_write_b16_d16_hi v8, v24 offset:%d" % (HA + 80))
    a("ds_write_b16 v8, v25 offset:%d" % (HA + 160))
    a("ds_write_b16_d16_hi v8, v25 offset:%d" % (HA + 240))
    a("v_and_b32 v9, 3, v1")
    a("v_mul_u32_u24 v9, 80, v9")
    a("v_lshl_add_u32 v9, v3, 4, v9")
    a("v_add_u32 v9, s10, v9")
    a("s_waitcnt lgkmcnt(0)")
    a("ds_read_b128 v[8:11], v9 offset:%d" % HA)
    a("s_waitcnt vmcnt(0) lgkmcnt(0)")
    unit8(a, LD, 96, 8, 128, True)
    a("s_lshl_b32 s10, s4, 13")
    a("s_lshl_b32 s11, s3, 11")
    a("s_add_u32 s10, s10, s11")
    a("s_add_u32 s10, s10, 0x%x" % YPART)
    a("v_add_u32 v4, s10, v7")
    a.nop(8)
    exec_lo16(a)
    for t in range(8):
        a("buffer_store_dwordx4 %s, v4, s[%d:%d], 0 offen offset:%d" % (vr(128 + 4 * t, 4), SO, SO + 3, 256 * t))
    a.label("k3_end")
    a("s_endpgm")
    return name, 256, HA + 1280


def gen_k4(a):
    name = "k4_kernel"
    kernel_begin(a, name)
    prologue(a, 64, "k4_end")
    SS, SY, SX, SOUT = 44, 48, 52, 56
    srd(a, SS, P_WS, 128 * 8192, off=SPART)
    srd(a, SY, P_WS, 56 * 8192, off=YPART)
    srd(a, SX, P_X, 4096)
    srd(a, SOUT, P_OUT, 4096)
    a("s_mov_b32 s13, 8192")
    a("s_mov_b32 s12, 16384")
    a("s_mov_b32 s11, 24576")
    a("v_and_b32 v4, 7, v0")
    a("v_lshrrev_b32 v5, 3, v0")
    a("s_lshl_b32 s10, s2, 7")
    a("v_lshlrev_b32 v6, 4, v4")
    a("v_add_u32 v6, s10, v6")
    a("v_lshlrev_b32 v7, 15, v5")
    a("v_add_u32 v7, v7, v6")
    a("buffer_load_dwordx4 v[16:19], v7, s[%d:%d], 0 offen" % (SS, SS + 3))
    a("buffer_load_dwordx4 v[20:23], v7, s[%d:%d], s13 offen" % (SS, SS + 3))
    a("buffer_load_dwordx4 v[24:27], v7, s[%d:%d], s12 offen" % (SS, SS + 3))
    a("buffer_load_dwordx4 v[28:31], v7, s[%d:%d], s11 offen" % (SS, SS + 3))
    a("v_lshlrev_b32 v7, 14, v5")
    a("v_add_u32 v7, v7, v6")
    a("buffer_load_dwordx4 v[32:35], v7, s[%d:%d], 0 offen" % (SY, SY + 3))
    a("buffer_load_dwordx4 v[36:39], v7, s[%d:%d], s13 offen" % (SY, SY + 3))
    a("v_lshrrev_b32 v8, 2, v0")
    a("s_lshl_b32 s10, s2, 3")
    a("v_add_u32 v8, s10, v8")
    a("v_and_b32 v9, 15, v8")
    a("v_lshrrev_b32 v10, 4, v8")
    a("v_and_b32 v10, 7, v10")
    a("v_lshrrev_b32 v11, 7, v8")
    a("v_lshlrev_b32 v11, 7, v11")
    a("v_lshl_add_u32 v11, v9, 3, v11")
    a("v_add_u32 v11, v11, v10")
    a("v_and_b32 v12, 3, v0")
    a("v_lshl_add_u32 v11, v12, 9, v11")
    a("v_lshlrev_b32 v11, 1, v11")
    a("buffer_load_ushort v13, v11, s[%d:%d], 0 offen" % (SX, SX + 3))
    a("s_waitcnt vmcnt(1)")
    for q in range(4):
        a("v_add_f32 %s, %s, %s" % (v(16 + q), v(16 + q), v(20 + q)))
        a("v_add_f32 %s, %s, %s" % (v(24 + q), v(24 + q), v(28 + q)))
        a("v_add_f32 %s, %s, %s" % (v(20 + q), v(32 + q), v(36 + q)))
    for q in range(4):
        a("v_add_f32 %s, %s, %s" % (v(16 + q), v(16 + q), v(24 + q)))
    a.nop(2)
    for q in range(8):
        a("v_add_f32_dpp %s, %s, %s row_ror:8 row_mask:0xf bank_mask:0xf" % (v(24 + q), v(16 + q), v(16 + q)))
    for q in range(8):
        a("v_mov_b32 %s, %s" % (v(16 + q), v(24 + q)))
    a.nop(2)
    for q in range(8):
        a("v_permlane16_swap_b32 %s, %s" % (v(16 + q), v(24 + q)))
    a.nop(1)
    for q in range(8):
        a("v_add_f32 %s, %s, %s" % (v(16 + q), v(16 + q), v(24 + q)))
    for q in range(8):
        a("v_mov_b32 %s, %s" % (v(24 + q), v(16 + q)))
    a.nop(2)
    for q in range(8):
        a("v_permlane32_swap_b32 %s, %s" % (v(16 + q), v(24 + q)))
    a.nop(1)
    for q in range(8):
        a("v_add_f32 %s, %s, %s" % (v(16 + q), v(16 + q), v(24 + q)))
    a("s_lshl_b32 s10, s3, 8")
    a("v_lshlrev_b32 v14, 5, v4")
    a("v_add_u32 v14, s10, v14")
    a("s_mov_b64 exec, 0xff")
    a("ds_write_b128 v14, v[16:19]")
    a("ds_write_b128 v14, v[20:23] offset:16")
    exec_all(a)
    a("s_waitcnt lgkmcnt(0)")
    a("s_barrier")
    a("s_cmp_lg_u32 s3, 0")
    a("s_cbranch_scc1 k4_end")
    a("s_mov_b32 exec_lo, -1")
    a("s_mov_b32 exec_hi, 0")
    a("v_lshrrev_b32 v14, 2, v0")
    a("v_lshlrev_b32 v14, 5, v14")
    a("v_lshl_add_u32 v14, v12, 2, v14")
    for w in range(4):
        a("ds_read_b32 %s, v14 offset:%d" % (v(16 + w), 256 * w))
        a("ds_read_b32 %s, v14 offset:%d" % (v(20 + w), 256 * w + 16))
    a("s_waitcnt vmcnt(0) lgkmcnt(0)")
    a("v_add_f32 v16, v16, v17")
    a("v_add_f32 v18, v18, v19")
    a("v_add_f32 v20, v20, v21")
    a("v_add_f32 v22, v22, v23")
    a("v_add_f32 v16, v16, v18")
    a("v_add_f32 v20, v20, v22")
    a("v_cvt_pk_bf16_f32 v24, v16, v20")
    a("v_lshlrev_b32 v16, 16, v24")
    a("v_and_b32 v20, 0xffff0000, v24")
    silu_inplace(a, 20, 25)
    a("v_cvt_pk_bf16_f32 v24, v20, v20")
    a("v_lshlrev_b32 v20, 16, v24")
    a("v_mul_f32 v16, v16, v20")
    a("v_cvt_pk_bf16_f32 v24, v16, v16")
    a("v_lshlrev_b32 v16, 16, v24")
    a("v_lshlrev_b32 v13, 16, v13")
    a("v_add_f32 v16, v16, v13")
    a("v_cvt_pk_bf16_f32 v24, v16, v16")
    a("buffer_store_short v24, v11, s[%d:%d], 0 offen" % (SOUT, SOUT + 3))
    a.label("k4_end")
    a("s_endpgm")
    return name, 40, 1024


def main():
    hdr = []
    a = Asm()
    a.raw('.amdgcn_target "amdgcn-amd-amdhsa--gfx950"')
    a.raw(".text")
    n1, v1 = gen_k1(a)
    n2, v2, l2 = gen_k2(a)
    n3, v3, l3 = gen_k3(a)
    n4, v4, l4 = gen_k4(a)
    a.raw('.section .rodata,"a"')
    for n, nv in ((n1, v1), (n2, v2), (n3, v3), (n4, v4)):
        a.raw(".p2align 6")
        kernel_desc(a, n, nv)
    hdr.append("; @launch kernel=%s grid=(368,1,1) block=(256,1,1) lds=14336" % n1)
    hdr.append("; @launch kernel=%s grid=(256,1,1) block=(256,1,1) lds=%d" % (n2, l2))
    hdr.append("; @launch kernel=%s grid=(312,1,1) block=(256,1,1) lds=%d" % (n3, l3))
    hdr.append("; @launch kernel=%s grid=(64,1,1) block=(256,1,1) lds=%d" % (n4, l4))
    out = "\n".join(hdr + a.L) + "\n"
    path = sys.argv[1] if len(sys.argv) > 1 else "cdna_kernels/%s.s" % NAME
    open(path, "w").write(out)


if __name__ == "__main__":
    main()
```

```python
import sys

NAME = "recurrent_scan__compressed_kv_cla__swiglu_ffn__decode"

QABS = 0x000000
GU = 0x040000
STATS = 0x0C0000
PART = 0x100000
SPART = 0x600000
YPART = 0x700000
WS_USED = 0x800000

SRD3 = 0x00020000


def v(n):
    return "v%d" % n


def vr(n, c):
    return "v[%d:%d]" % (n, n + c - 1)


def s(n):
    return "s%d" % n


def sr(n, c):
    return "s[%d:%d]" % (n, n + c - 1)


class Asm:
    def __init__(self):
        self.L = []

    def __call__(self, t):
        self.L.append("    " + t)

    def label(self, t):
        self.L.append(t + ":")

    def c(self, t):
        self.L.append("    ; " + t)

    def raw(self, t):
        self.L.append(t)

    def nop(self, n):
        while n > 0:
            k = min(n, 16)
            self("s_nop %d" % (k - 1))
            n -= k


P_X, P_CKV, P_WQ, P_WUK, P_WUV, P_WO, P_BX, P_WG, P_WU, P_WD, P_OUT, P_DBG, P_WS = [16 + 2 * i for i in range(13)]
S_SELLO, S_SELHI = 14, 15
S_WV = 3


def kernel_begin(a, name):
    a.raw(".globl %s" % name)
    a.raw(".p2align 8")
    a.raw(".type %s,@function" % name)
    a.label(name)


def kernel_desc(a, name, nvgpr, nsgpr=102):
    nv = (nvgpr + 3) // 4 * 4
    a.raw(".amdhsa_kernel %s" % name)
    a.raw("  .amdhsa_next_free_vgpr %d" % nv)
    a.raw("  .amdhsa_next_free_sgpr %d" % nsgpr)
    a.raw("  .amdhsa_accum_offset %d" % nv)
    a.raw("  .amdhsa_group_segment_fixed_size 0")
    a.raw("  .amdhsa_kernarg_size 104")
    a.raw("  .amdhsa_user_sgpr_count 2")
    a.raw("  .amdhsa_user_sgpr_kernarg_segment_ptr 1")
    a.raw("  .amdhsa_system_sgpr_workgroup_id_x 1")
    a.raw(".end_amdhsa_kernel")


def prologue(a, nwg, endlabel):
    a("s_cmp_ge_u32 s2, %d" % nwg)
    a("s_cbranch_scc1 %s" % endlabel)
    a("s_load_dwordx16 s[16:31], s[0:1], 0")
    a("s_load_dwordx8 s[32:39], s[0:1], 64")
    a("s_load_dwordx2 s[40:41], s[0:1], 96")
    a("v_lshrrev_b32 v3, 6, v0")
    a("v_and_b32 v1, 63, v0")
    a("v_readfirstlane_b32 s3, v3")
    a("v_and_b32 v2, 15, v1")
    a("v_lshrrev_b32 v3, 4, v1")
    a("s_mov_b32 s%d, 0x05040100" % S_SELLO)
    a("s_mov_b32 s%d, 0x07060302" % S_SELHI)
    a("s_waitcnt lgkmcnt(0)")


def srd(a, d, p, size, off=None, off_sgpr=None):
    if off_sgpr is not None:
        a("s_add_u32 s%d, s%d, s%d" % (d, p, off_sgpr))
        a("s_addc_u32 s%d, s%d, 0" % (d + 1, p + 1))
        a("s_and_b32 s%d, s%d, 0xffff" % (d + 1, d + 1))
    elif off:
        a("s_add_u32 s%d, s%d, 0x%x" % (d, p, off))
        a("s_addc_u32 s%d, s%d, 0" % (d + 1, p + 1))
        a("s_and_b32 s%d, s%d, 0xffff" % (d + 1, d + 1))
    else:
        a("s_mov_b32 s%d, s%d" % (d, p))
        a("s_and_b32 s%d, s%d, 0xffff" % (d + 1, p + 1))
    a("s_mov_b32 s%d, 0x%x" % (d + 2, size))
    a("s_mov_b32 s%d, 0x%x" % (d + 3, SRD3))


def red_g(a, op, x, t):
    a("v_mov_b32 %s, %s" % (v(t), v(x)))
    a.nop(2)
    a("v_permlane16_swap_b32 %s, %s" % (v(x), v(t)))
    a.nop(1)
    a("%s %s, %s, %s" % (op, v(x), v(x), v(t)))
    a("v_mov_b32 %s, %s" % (v(t), v(x)))
    a.nop(2)
    a("v_permlane32_swap_b32 %s, %s" % (v(x), v(t)))
    a.nop(1)
    a("%s %s, %s, %s" % (op, v(x), v(x), v(t)))


def red_16(a, op, x, t):
    a.nop(2)
    a("%s_dpp %s, %s, %s quad_perm:[1,0,3,2] row_mask:0xf bank_mask:0xf" % (op, v(t), v(x), v(x)))
    a.nop(2)
    a("%s_dpp %s, %s, %s quad_perm:[2,3,0,1] row_mask:0xf bank_mask:0xf" % (op, v(x), v(t), v(t)))
    a.nop(2)
    a("%s_dpp %s, %s, %s row_half_mirror row_mask:0xf bank_mask:0xf" % (op, v(t), v(x), v(x)))
    a.nop(2)
    a("%s_dpp %s, %s, %s row_mirror row_mask:0xf bank_mask:0xf" % (op, v(x), v(t), v(t)))


def red_64(a, op, x, t):
    red_16(a, op, x, t)
    red_g(a, op, x, t)


def layernorm(a, vx, t, vaddr):
    f = t
    d = t + 8
    S, T, M, R, VB, MB, SQ, RC = [t + 16 + i for i in range(8)]
    for i in range(4):
        a("v_lshlrev_b32 %s, 16, %s" % (v(f + 2 * i), v(vx + i)))
        a("v_and_b32 %s, 0xffff0000, %s" % (v(f + 2 * i + 1), v(vx + i)))
    a("v_add_f32 %s, %s, %s" % (v(S), v(f), v(f + 1)))
    for i in range(2, 8):
        a("v_add_f32 %s, %s, %s" % (v(S), v(S), v(f + i)))
    red_64(a, "v_add_f32", S, T)
    a("v_mul_f32 %s, 0x3b000000, %s" % (v(M), v(S)))
    for i in range(8):
        a("v_sub_f32 %s, %s, %s" % (v(d + i), v(f + i), v(M)))
    a("v_mul_f32 %s, %s, %s" % (v(S), v(d), v(d)))
    for i in range(1, 8):
        a("v_fma_f32 %s, %s, %s, %s" % (v(S), v(d + i), v(d + i), v(S)))
    red_64(a, "v_add_f32", S, T)
    a("v_mul_f32 %s, 0x3b000000, %s" % (v(S), v(S)))
    a("v_cvt_pk_bf16_f32 %s, %s, %s" % (v(R), v(S), v(M)))
    a("v_lshlrev_b32 %s, 16, %s" % (v(VB), v(R)))
    a("v_and_b32 %s, 0xffff0000, %s" % (v(MB), v(R)))
    a("v_add_f32 %s, 0x3727c5ac, %s" % (v(VB), v(VB)))
    a("v_cvt_pk_bf16_f32 %s, %s, %s" % (v(R), v(VB), v(VB)))
    a("v_lshlrev_b32 %s, 16, %s" % (v(VB), v(R)))
    a("v_sqrt_f32 %s, %s" % (v(SQ), v(VB)))
    a.nop(1)
    a("v_cvt_pk_bf16_f32 %s, %s, %s" % (v(R), v(SQ), v(SQ)))
    a("v_lshlrev_b32 %s, 16, %s" % (v(SQ), v(R)))
    a("v_rcp_f32 %s, %s" % (v(RC), v(SQ)))
    for i in range(8):
        a("v_sub_f32 %s, %s, %s" % (v(d + i), v(f + i), v(MB)))
    for i in range(4):
        a("v_cvt_pk_bf16_f32 %s, %s, %s" % (v(f + i), v(d + 2 * i), v(d + 2 * i + 1)))
    for i in range(4):
        a("v_lshlrev_b32 %s, 16, %s" % (v(d + 2 * i), v(f + i)))
        a("v_and_b32 %s, 0xffff0000, %s" % (v(d + 2 * i + 1), v(f + i)))
    for i in range(8):
        a("v_mul_f32 %s, %s, %s" % (v(f + i), v(d + i), v(RC)))
    for i in range(8):
        a("v_fma_f32 %s, -%s, %s, %s" % (v(d + i), v(f + i), v(SQ), v(d + i)))
    for i in range(8):
        a("v_fma_f32 %s, %s, %s, %s" % (v(f + i), v(d + i), v(RC), v(f + i)))
    for i in range(4):
        a("v_cvt_pk_bf16_f32 %s, %s, %s" % (v(d + i), v(f + 2 * i), v(f + 2 * i + 1)))
    a("ds_write_b128 %s, %s" % (v(vaddr), vr(d, 4)))


def unit8(a, L, F, A, acc, first):
    def perms(t):
        c, e = t >> 1, t & 1
        for p in range(4):
            a("v_perm_b32 %s, %s, %s, s%d" % (v(F + 4 * t + p), v(L + 4 * (2 * p + 1) + c), v(L + 4 * (2 * p) + c),
                                              S_SELHI if e else S_SELLO))

    def mf(t):
        a("v_mfma_f32_16x16x32_bf16 %s, %s, %s, %s" % (vr(acc + 4 * t, 4), vr(A, 4), vr(F + 4 * t, 4),
                                                       "0" if first else vr(acc + 4 * t, 4)))
    perms(0)
    for t in range(1, 8):
        perms(t)
        mf(t - 1)
    a.nop(2)
    mf(7)


def unit4(a, L, F, A, acc, first):
    def perms(t):
        c, e = t >> 1, t & 1
        for p in range(4):
            a("v_perm_b32 %s, %s, %s, s%d" % (v(F + 4 * t + p), v(L + 2 * (2 * p + 1) + c), v(L + 2 * (2 * p) + c),
                                              S_SELHI if e else S_SELLO))

    def mf(t):
        a("v_mfma_f32_16x16x32_bf16 %s, %s, %s, %s" % (vr(acc + 4 * t, 4), vr(A, 4), vr(F + 4 * t, 4),
                                                       "0" if first else vr(acc + 4 * t, 4)))
    perms(0)
    for t in range(1, 4):
        perms(t)
        mf(t - 1)
    a.nop(2)
    mf(3)


def exec_lo16(a):
    a("s_mov_b64 exec, 0xffff")


def exec_all(a):
    a("s_mov_b64 exec, -1")


LOG2E = 1.4426950408889634


def f32hex(x):
    import struct
    return "0x%08x" % struct.unpack("<I", struct.pack("<f", x))[0]


def silu_inplace(a, x, t):
    a("v_mul_f32 %s, %s, %s" % (v(t), f32hex(-LOG2E), v(x)))
    a("v_exp_f32 %s, %s" % (v(t), v(t)))
    a.nop(1)
    a("v_add_f32 %s, 1.0, %s" % (v(t), v(t)))
    a("v_rcp_f32 %s, %s" % (v(t), v(t)))
    a.nop(1)
    a("v_mul_f32 %s, %s, %s" % (v(x), v(x), v(t)))


def gen_k1(a):
    name = "k1_kernel"
    kernel_begin(a, name)
    XN, RED, QL = 0, 4352, 12544
    prologue(a, 368, "k1_end")
    SX, SW, SU, SO = 44, 48, 52, 56
    srd(a, SX, P_X, 4096)
    srd(a, SO, P_WS, WS_USED)
    a("s_lshl_b32 s4, s3, 10")
    a("v_lshlrev_b32 v4, 4, v1")
    a("v_add_u32 v5, s4, v4")
    a("buffer_load_dwordx4 v[8:11], v5, s[%d:%d], 0 offen" % (SX, SX + 3))
    a("s_mul_i32 s4, s3, 1088")
    a("v_add_u32 v6, s4, v4")
    a("s_cmp_ge_u32 s2, 256")
    a("s_cbranch_scc1 k1_ffn")
    a("s_and_b32 s4, s2, 7")
    a("s_lshr_b32 s5, s2, 3")
    a("s_lshr_b32 s6, s5, 3")
    a("s_lshl_b32 s4, s4, 2")
    a("s_add_u32 s6, s6, s4")
    a("s_and_b32 s7, s5, 3")
    a("s_bfe_u32 s13, s5, 0x10002")
    srd(a, SW, P_WQ, 4194304)
    srd(a, SU, P_WUK, 4194304)
    a("s_lshl_b32 s8, s3, 20")
    a("s_lshl_b32 s9, s6, 8")
    a("s_lshl_b32 s10, s13, 7")
    a("s_add_u32 s9, s9, s10")
    a("s_add_u32 s8, s8, s9")
    a("v_lshrrev_b32 v12, 3, v2")
    a("v_lshl_add_u32 v7, v12, 2, v3")
    a("v_lshlrev_b32 v7, 16, v7")
    a("v_and_b32 v15, 7, v2")
    a("v_lshlrev_b32 v15, 4, v15")
    a("v_add3_u32 v7, v7, v15, s8")
    LQ = 16
    for u in range(2):
        for i in range(8):
            a("s_mov_b32 s10, 0x%x" % ((64 * u + i) * 8192))
            a("buffer_load_dwordx4 %s, v7, s[%d:%d], s10 offen" % (vr(LQ + 32 * u + 4 * i, 4), SW, SW + 3))
    LU = 144
    a("s_lshl_b32 s8, s7, 7")
    a("s_lshl_b32 s10, s3, 5")
    a("s_add_u32 s8, s8, s10")
    a("v_add_u32 v14, s8, v2")
    a("v_lshlrev_b32 v14, 13, v14")
    a("v_lshlrev_b32 v13, 4, v3")
    a("v_add3_u32 v14, v14, v13, s9")
    a("s_mov_b32 s10, 0x20000")
    for T in range(2):
        for st in range(2):
            a("buffer_load_dwordx4 %s, v14, s[%d:%d], %s offen offset:%d" % (vr(LU + 8 * T + 4 * st, 4), SU, SU + 3,
                                                                          "0" if T == 0 else "s10", 64 * st))
    a("s_lshl_b32 s10, s3, 11")
    a("v_lshl_add_u32 v12, v12, 10, v15")
    a("v_add_u32 v12, s10, v12")
    a("s_waitcnt vmcnt(20)")
    layernorm(a, 8, 208, 6)
    a("s_waitcnt lgkmcnt(0)")
    a("s_barrier")
    AF = 160
    a("v_and_b32 v13, 3, v1")
    a("v_mul_u32_u24 v13, 1088, v13")
    a("v_bfe_u32 v14, v2, 2, 1")
    a("v_lshlrev_b32 v14, 2, v14")
    a("v_add_u32 v14, v14, v3")
    a("v_lshlrev_b32 v14, 4, v14")
    a("s_lshl_b32 s10, s3, 8")
    a("v_add3_u32 v13, v13, v14, s10")
    for u in range(2):
        a("ds_read_b128 %s, v13 offset:%d" % (vr(AF + 4 * u, 4), XN + 128 * u))
    ACC = 176
    FX = 208
    a("s_waitcnt lgkmcnt(0)")
    for u in range(2):
        a("s_waitcnt vmcnt(%d)" % ((1 - u) * 8 + 4))
        unit8(a, LQ + 32 * u, FX if u == 0 else LQ + 32 * (u - 1), AF + 4 * u, ACC, u == 0)
    a.nop(8)
    a("s_mov_b32 exec_lo, 0xff0000ff")
    a("s_mov_b32 exec_hi, 0")
    for t in range(8):
        a("ds_write_b128 v12, %s offset:%d" % (vr(ACC + 4 * t, 4), RED + 128 * t))
    exec_all(a)
    a("s_waitcnt lgkmcnt(0)")
    a("s_barrier")
    a("s_cmp_ge_u32 s3, 1")
    a("s_cbranch_scc1 k1_sumdone")
    a("v_lshlrev_b32 v13, 4, v0")
    for w in range(8):
        a("ds_read_b128 %s, v13 offset:%d" % (vr(16 + 4 * w, 4), RED + 1024 * w))
    a("v_lshrrev_b32 v14, 3, v0")
    a("v_lshl_add_u32 v14, v14, 1, v15")
    a("s_waitcnt lgkmcnt(0)")
    for b in range(4):
        for w in range(4):
            a("v_add_f32 %s, %s, %s" % (v(16 + 8 * w + b), v(16 + 8 * w + b), v(20 + 8 * w + b)))
    for b in range(4):
        a("v_add_f32 %s, %s, %s" % (v(16 + b), v(16 + b), v(24 + b)))
        a("v_add_f32 %s, %s, %s" % (v(32 + b), v(32 + b), v(40 + b)))
    for b in range(4):
        a("v_add_f32 %s, %s, %s" % (v(16 + b), v(16 + b), v(32 + b)))
    a("v_cvt_pk_bf16_f32 v20, v16, v17")
    a("v_cvt_pk_bf16_f32 v21, v18, v19")
    a("ds_write_b16 v14, v20 offset:%d" % (QL))
    a("ds_write_b16_d16_hi v14, v20 offset:%d" % (QL + 320))
    a("ds_write_b16 v14, v21 offset:%d" % (QL + 640))
    a("ds_write_b16_d16_hi v14, v21 offset:%d" % (QL + 960))
    a("s_waitcnt lgkmcnt(0)")
    a.label("k1_sumdone")
    a("s_barrier")
    a("v_and_b32 v13, 3, v1")
    a("v_mul_u32_u24 v13, 320, v13")
    a("v_lshl_add_u32 v13, v3, 4, v13")
    for st in range(2):
        a("ds_read_b128 %s, v13 offset:%d" % (vr(16 + 4 * st, 4), QL + 64 * st))
    a("s_waitcnt vmcnt(0) lgkmcnt(0)")
    for st in range(2):
        for T in range(2):
            a("v_mfma_f32_16x16x32_bf16 %s, %s, %s, %s" % (vr(32 + 4 * T, 4), vr(LU + 8 * T + 4 * st, 4), vr(16 + 4 * st, 4),
                                                          "0" if st == 0 else vr(32 + 4 * T, 4)))
    a("v_lshlrev_b32 v13, 15, v2")
    a("v_lshlrev_b32 v14, 3, v3")
    a("s_lshl_b32 s10, s6, 10")
    a("s_lshl_b32 s11, s8, 1")
    a("s_add_u32 s10, s10, s11")
    a("s_lshl_b32 s11, s13, 17")
    a("s_add_u32 s10, s10, s11")
    a("v_add3_u32 v13, v13, v14, s10")
    a("v_cmp_gt_u32 vcc, 4, v2")
    a.nop(4)
    sc = f32hex(LOG2E * (128 ** -0.5))
    for r in range(8):
        a("v_mul_f32 %s, %s, %s" % (v(32 + r), sc, v(32 + r)))
    for r in range(4):
        a("v_cvt_pk_bf16_f32 %s, %s, %s" % (v(40 + r), v(32 + 2 * r), v(33 + 2 * r)))
    a("s_and_saveexec_b64 s[12:13], vcc")
    for T in range(2):
        a("buffer_store_dwordx2 %s, v13, s[%d:%d], 0 offen offset:%d" % (vr(40 + 2 * T, 2), SO, SO + 3, QABS + 32 * T))
    a("s_endpgm")
    a.label("k1_ffn")
    a("s_sub_u32 s4, s2, 256")
    a("s_and_b32 s5, s4, 3")
    a("s_lshr_b32 s6, s4, 2")
    a("s_lshr_b32 s7, s3, 1")
    a("s_and_b32 s8, s3, 1")
    a("s_cmp_eq_u32 s7, 0")
    a("s_cselect_b32 s10, s%d, s%d" % (P_WG, P_WU))
    a("s_cselect_b32 s11, s%d, s%d" % (P_WG + 1, P_WU + 1))
    srd(a, SW, 10, 512 * 3584)
    a("s_lshl_b32 s9, s5, 1")
    a("s_add_u32 s9, s9, s8")
    a("s_mul_i32 s10, s9, %d" % (64 * 3584))
    a("s_lshl_b32 s11, s6, 7")
    a("s_add_u32 s10, s10, s11")
    a("v_mul_u32_u24 v7, %d, v3" % (8 * 3584))
    a("v_lshlrev_b32 v12, 3, v2")
    a("v_add3_u32 v7, v7, v12, s10")
    LF = 16
    for u in range(2):
        for i in range(8):
            a("s_mov_b32 s10, 0x%x" % ((32 * u + i) * 3584))
            a("buffer_load_dwordx2 %s, v7, s[%d:%d], s10 offen" % (vr(LF + 16 * u + 2 * i, 2), SW, SW + 3))
    a("s_waitcnt vmcnt(16)")
    layernorm(a, 8, 208, 6)
    a("s_waitcnt lgkmcnt(0)")
    a("s_barrier")
    a("v_and_b32 v13, 3, v1")
    a("v_mul_u32_u24 v13, 1088, v13")
    a("v_lshlrev_b32 v14, 4, v3")
    a("s_lshl_b32 s10, s9, 7")
    a("v_add3_u32 v13, v13, v14, s10")
    for u in range(2):
        a("ds_read_b128 %s, v13 offset:%d" % (vr(AF + 4 * u, 4), XN + 64 * u))
    a("s_waitcnt lgkmcnt(0)")
    for u in range(2):
        a("s_waitcnt vmcnt(%d)" % ((1 - u) * 8))
        unit4(a, LF + 16 * u, FX + 16 * u, AF + 4 * u, ACC, u == 0)
    a("s_lshl_b32 s10, s9, 1")
    a("s_add_u32 s10, s10, s7")
    a("s_mul_i32 s10, s10, %d" % (1792 * 16))
    a("s_lshl_b32 s11, s6, 10")
    a("s_add_u32 s10, s10, s11")
    a("s_add_u32 s10, s10, 0x%x" % GU)
    a("v_lshlrev_b32 v13, 6, v2")
    a("v_add_u32 v13, s10, v13")
    a.nop(8)
    exec_lo16(a)
    for t in range(4):
        a("buffer_store_dwordx4 %s, v13, s[%d:%d], 0 offen offset:%d" % (vr(ACC + 4 * t, 4), SO, SO + 3, 16 * t))
    a.label("k1_end")
    a("s_endpgm")
    return name, 240


def gen_k2(a):
    name = "k2_kernel"
    kernel_begin(a, name)
    RS = 1056
    PL = 0
    MX = PL + 4096
    LS = MX + 256
    CKV = 4608
    prologue(a, 256, "k2_end")
    SC, SO = 44, 48
    a("s_and_b32 s4, s2, 7")
    a("s_lshr_b32 s5, s2, 3")
    a("s_and_b32 s6, s5, 1")
    a("s_lshr_b32 s5, s5, 1")
    a("s_lshl_b32 s5, s5, 3")
    a("s_add_u32 s5, s5, s4")
    a("s_lshr_b32 s7, s5, 5")
    a("s_and_b32 s8, s5, 31")
    a("s_lshl_b32 s9, s5, 17")
    srd(a, SC, P_CKV, 131072, off_sgpr=9)
    srd(a, SO, P_WS, WS_USED)
    QF = 16
    QLD = 139776
    a("s_lshl_b32 s9, s7, 5")
    a("s_lshl_b32 s10, s6, 4")
    a("s_add_u32 s9, s9, s10")
    a("s_lshl_b32 s10, s3, 2")
    a("s_add_u32 s10, s10, s9")
    a("s_lshl_b32 s10, s10, 10")
    a("v_lshlrev_b32 v4, 4, v1")
    a("v_add_u32 v4, s10, v4")
    a("s_mov_b32 s10, 0x20000")
    for i in range(4):
        a("buffer_load_dwordx4 %s, v4, s[%d:%d], 0 offen offset:%d" % (vr(144 + 4 * i, 4), SO, SO + 3, QABS + 1024 * i))
        a("buffer_load_dwordx4 %s, v4, s[%d:%d], s10 offen offset:%d" % (vr(160 + 4 * i, 4), SO, SO + 3, QABS + 1024 * i))
    a("v_lshlrev_b32 v5, 4, v1")
    a("s_mul_i32 s10, s3, %d" % (32 * RS))
    a("s_lshl_b32 s11, s3, 15")
    for i in range(32):
        a("s_add_u32 m0, s10, %d" % (CKV + i * RS))
        a("s_add_u32 s12, s11, %d" % (i * 1024))
        a("buffer_load_dwordx4 v5, s[%d:%d], s12 offen lds" % (SC, SC + 3))
    a("v_mul_u32_u24 v6, %d, v2" % RS)
    a("v_lshlrev_b32 v7, 4, v3")
    a("v_add3_u32 v6, v6, v7, s10")
    AF = 80
    SCO = 144
    a("s_mul_i32 s12, s3, %d" % (4 * RS))
    a("s_add_u32 s12, s12, %d" % QLD)
    a("v_add_u32 v4, s12, v5")
    a("v_mul_u32_u24 v12, %d, v2" % RS)
    a("s_mov_b32 s13, %d" % QLD)
    a("v_add3_u32 v12, v12, v7, s13")
    for i in range(4):
        a("s_waitcnt vmcnt(%d)" % (32 + 2 * (3 - i)))
        for q in range(4):
            x, y = 144 + 4 * i + q, 160 + 4 * i + q
            a("v_lshlrev_b32 v8, 16, %s" % v(x))
            a("v_lshlrev_b32 v9, 16, %s" % v(y))
            a("v_and_b32 v10, 0xffff0000, %s" % v(x))
            a("v_and_b32 v11, 0xffff0000, %s" % v(y))
            a("v_add_f32 v8, v8, v9")
            a("v_add_f32 v10, v10, v11")
            a("v_cvt_pk_bf16_f32 %s, v8, v10" % v(x))
        a("ds_write_b128 v4, %s offset:%d" % (vr(144 + 4 * i, 4), i * RS))
    a("s_waitcnt lgkmcnt(0)")
    a("s_barrier")
    for st in range(16):
        a("ds_read_b128 %s, v12 offset:%d" % (vr(QF + 4 * st, 4), st * 64))
    for T in range(2):
        a("s_waitcnt vmcnt(%d)" % (16 if T == 0 else 0))
        for st in range(16):
            a("ds_read_b128 %s, v6 offset:%d" % (vr(AF + 4 * st, 4), CKV + T * 16 * RS + st * 64))
        for st in range(16):
            a("s_waitcnt lgkmcnt(%d)" % (15 - st))
            a("v_mfma_f32_16x16x32_bf16 %s, %s, %s, %s" % (vr(SCO + 4 * T, 4), vr(AF + 4 * st, 4), vr(QF + 4 * st, 4),
                                                          "0" if st == 0 else vr(SCO + 4 * T, 4)))
    a.nop(8)
    a("v_max3_f32 v8, v144, v145, v146")
    a("v_max3_f32 v8, v8, v147, v148")
    a("v_max3_f32 v8, v8, v149, v150")
    a("v_max_f32 v8, v8, v151")
    red_g(a, "v_max_f32", 8, 9)
    a("s_lshl_b32 s12, s3, 6")
    a("v_lshlrev_b32 v10, 2, v2")
    a("v_add_u32 v11, s12, v10")
    exec_lo16(a)
    a("ds_write_b32 v11, v8 offset:%d" % MX)
    exec_all(a)
    a("s_waitcnt lgkmcnt(0)")
    a("s_barrier")
    for w in range(4):
        a("ds_read_b32 %s, v10 offset:%d" % (v(12 + w), MX + 64 * w))
    a("s_waitcnt lgkmcnt(0)")
    a("v_max3_f32 v8, v12, v13, v14")
    a("v_max_f32 v8, v8, v15")
    for r in range(8):
        a("v_sub_f32 %s, %s, v8" % (v(SCO + r), v(SCO + r)))
    for r in range(8):
        a("v_exp_f32 %s, %s" % (v(SCO + r), v(SCO + r)))
    a.nop(1)
    for r in range(4):
        a("v_cvt_pk_bf16_f32 %s, %s, %s" % (v(152 + r), v(SCO + 2 * r), v(SCO + 2 * r + 1)))
    a("v_add_f32 v9, v144, v145")
    for r in range(2, 8):
        a("v_add_f32 v9, v9, %s" % v(SCO + r))
    a("s_lshl_b32 s12, s3, 10")
    a("v_lshlrev_b32 v12, 4, v1")
    a("v_add_u32 v13, s12, v12")
    a("ds_write_b128 v13, v[152:155] offset:%d" % PL)
    red_g(a, "v_add_f32", 9, 14)
    exec_lo16(a)
    a("ds_write_b32 v11, v9 offset:%d" % LS)
    exec_all(a)
    a("s_waitcnt lgkmcnt(0)")
    a("s_barrier")
    PF = 156
    for st in range(4):
        a("ds_read_b128 %s, v12 offset:%d" % (vr(PF + 4 * st, 4), PL + 1024 * st))
    a("v_lshrrev_b32 v13, 2, v2")
    a("v_lshl_add_u32 v13, v3, 2, v13")
    a("v_mul_u32_u24 v13, %d, v13" % RS)
    a("v_and_b32 v14, 3, v2")
    a("v_lshlrev_b32 v14, 3, v14")
    a("s_lshl_b32 s12, s3, 8")
    a("v_add3_u32 v13, v13, v14, s12")
    a("v_add_u32 v14, %d, v13" % (64 * RS))
    ACC = 176
    TB = [16, 48]
    groups = [(st, ch) for st in range(4) for ch in range(2)]

    def issue(k):
        st, ch = groups[k]
        buf = 16 + 16 * (k % 4)
        base = 13 if st < 2 else 14
        for q in range(4):
            ct = 4 * ch + q
            off = CKV + (st & 1) * 32 * RS + ct * 32
            a("ds_read_b64_tr_b16 %s, %s offset:%d" % (vr(buf + 4 * q, 2), v(base), off))
            a("ds_read_b64_tr_b16 %s, %s offset:%d" % (vr(buf + 4 * q + 2, 2), v(base), off + 16 * RS))

    def compute(k):
        st, ch = groups[k]
        buf = 16 + 16 * (k % 4)
        for q in range(4):
            ct = 4 * ch + q
            a("v_mfma_f32_16x16x32_bf16 %s, %s, %s, %s" % (vr(ACC + 4 * ct, 4), vr(buf + 4 * q, 4), vr(PF + 4 * st, 4),
                                                          "0" if st == 0 else vr(ACC + 4 * ct, 4)))
    issue(0)
    for k in range(8):
        if k + 1 < 8:
            issue(k + 1)
            a("s_waitcnt lgkmcnt(8)")
        else:
            a("s_waitcnt lgkmcnt(0)")
        compute(k)
    a("s_lshl_b32 s12, s9, 15")
    a("s_lshl_b32 s13, s8, 10")
    a("s_add_u32 s12, s12, s13")
    a("s_lshl_b32 s13, s3, 8")
    a("s_add_u32 s12, s12, s13")
    a("s_add_u32 s12, s12, 0x%x" % PART)
    a("v_lshlrev_b32 v13, 15, v2")
    a("v_lshlrev_b32 v14, 3, v3")
    a("v_add3_u32 v13, v13, v14, s12")
    a.nop(4)
    for ct in range(8):
        a("v_cvt_pk_bf16_f32 %s, %s, %s" % (v(16 + 2 * ct), v(ACC + 4 * ct), v(ACC + 4 * ct + 1)))
        a("v_cvt_pk_bf16_f32 %s, %s, %s" % (v(16 + 2 * ct + 1), v(ACC + 4 * ct + 2), v(ACC + 4 * ct + 3)))
    for ct in range(8):
        a("buffer_store_dwordx2 %s, v13, s[%d:%d], 0 offen offset:%d" % (vr(16 + 2 * ct, 2), SO, SO + 3, 32 * ct))
    a("s_cmp_lg_u32 s3, 0")
    a("s_cbranch_scc1 k2_end")
    for w in range(4):
        a("ds_read_b32 %s, v10 offset:%d" % (v(40 + w), LS + 64 * w))
    a("s_lshl_b32 s12, s9, 8")
    a("s_lshl_b32 s13, s8, 3")
    a("s_add_u32 s12, s12, s13")
    a("s_add_u32 s12, s12, 0x%x" % STATS)
    a("v_lshlrev_b32 v13, 8, v2")
    a("v_add_u32 v13, s12, v13")
    a("s_waitcnt lgkmcnt(0)")
    a("v_add_f32 v40, v40, v41")
    a("v_add_f32 v42, v42, v43")
    a("v_add_f32 v9, v40, v42")
    exec_lo16(a)
    a("buffer_store_dwordx2 v[8:9], v13, s[%d:%d], 0 offen" % (SO, SO + 3))
    a.label("k2_end")
    a("s_endpgm")
    return name, 208, QLD + 16 * RS


def gen_k3(a):
    name = "k3_kernel"
    kernel_begin(a, name)
    LAT = 0
    RED = 1280
    CTX = RED + 16384
    HA = CTX + 1280
    prologue(a, 312, "k3_end")
    SO, SV, SW = 44, 48, 52
    srd(a, SO, P_WS, WS_USED)
    a("s_cmp_ge_u32 s2, 256")
    a("s_cbranch_scc1 k3_ffn")
    a("s_and_b32 s4, s2, 7")
    a("s_lshr_b32 s5, s2, 3")
    a("s_lshr_b32 s6, s5, 3")
    a("s_lshl_b32 s4, s4, 2")
    a("s_add_u32 s6, s6, s4")
    a("s_lshr_b32 s7, s5, 1")
    a("s_and_b32 s7, s7, 3")
    a("s_and_b32 s8, s5, 1")
    srd(a, SV, P_WUV, 4194304)
    srd(a, SW, P_WO, 4194304)
    a("s_mov_b32 s13, 4096")
    ST = 16
    a("s_lshl_b32 s9, s3, 5")
    a("s_add_u32 s9, s9, s6")
    a("s_lshl_b32 s10, s9, 8")
    a("s_add_u32 s10, s10, 0x%x" % STATS)
    a("v_lshlrev_b32 v4, 6, v3")
    a("v_add_u32 v4, s10, v4")
    for i in range(4):
        a("buffer_load_dwordx4 %s, v4, s[%d:%d], 0 offen offset:%d" % (vr(ST + 4 * i, 4), SO, SO + 3, 16 * i))
    LP = 32
    a("s_lshl_b32 s10, s9, 15")
    a("s_lshl_b32 s11, s7, 8")
    a("s_add_u32 s10, s10, s11")
    a("s_add_u32 s10, s10, 0x%x" % PART)
    a("v_lshlrev_b32 v4, 13, v3")
    a("v_lshlrev_b32 v5, 4, v2")
    a("v_add3_u32 v4, v4, v5, s10")
    for i in range(8):
        a("buffer_load_dwordx4 %s, v4, s[%d:%d], %s offen offset:%d" % (vr(LP + 4 * i, 4), SO, SO + 3,
                                                                       "0" if i < 4 else "s13", (i & 3) * 1024))
    LV = 64
    a("s_lshl_b32 s10, s7, 20")
    a("s_lshl_b32 s11, s3, 18")
    a("s_add_u32 s10, s10, s11")
    a("s_lshl_b32 s11, s6, 8")
    a("s_add_u32 s10, s10, s11")
    a("v_lshlrev_b32 v4, 16, v3")
    a("v_add3_u32 v4, v4, v5, s10")
    for i in range(8):
        a("s_mov_b32 s12, 0x%x" % (i * 8192))
        a("buffer_load_dwordx4 %s, v4, s[%d:%d], s12 offen" % (vr(LV + 4 * i, 4), SV, SV + 3))
    LO = 96
    a("s_lshl_b32 s10, s6, 17")
    a("s_lshl_b32 s11, s3, 15")
    a("s_add_u32 s10, s10, s11")
    a("s_lshl_b32 s11, s8, 9")
    a("s_add_u32 s10, s10, s11")
    a("v_lshlrev_b32 v4, 13, v3")
    a("v_add3_u32 v4, v4, v5, s10")
    for cb in range(2):
        for i in range(8):
            a("buffer_load_dwordx4 %s, v4, s[%d:%d], %s offen offset:%d" % (
                vr(LO + 32 * cb + 4 * i, 4), SW, SW + 3, "0" if i < 4 else "s13", (i & 3) * 1024 + cb * 256))
    a("s_waitcnt vmcnt(32)")
    a("v_max3_f32 v6, v16, v18, v20")
    a("v_max3_f32 v6, v6, v22, v24")
    a("v_max3_f32 v6, v6, v26, v28")
    a("v_max_f32 v6, v6, v30")
    red_g(a, "v_max_f32", 6, 7)
    for i in range(8):
        a("v_sub_f32 %s, %s, v6" % (v(ST + 2 * i), v(ST + 2 * i)))
    for i in range(8):
        a("v_exp_f32 %s, %s" % (v(ST + 2 * i), v(ST + 2 * i)))
    a.nop(1)
    a("v_mul_f32 v7, v16, v17")
    for i in range(1, 8):
        a("v_fma_f32 v7, %s, %s, v7" % (v(ST + 2 * i), v(ST + 2 * i + 1)))
    red_g(a, "v_add_f32", 7, 8)
    a("v_rcp_f32 v7, v7")
    a.nop(1)
    for i in range(8):
        a("v_mul_f32 %s, %s, v7" % (v(ST + 2 * i), v(ST + 2 * i)))
    AW = 8
    for p in range(4):
        a("v_cvt_pk_bf16_f32 %s, %s, %s" % (v(AW + p), v(ST + 4 * p), v(ST + 4 * p + 2)))
    ACC = 192
    FX = 160
    a("s_waitcnt vmcnt(24)")
    unit8(a, LP, FX, AW, ACC, True)
    a.nop(8)
    for p in range(4):
        a("v_cvt_pk_bf16_f32 %s, %s, %s" % (v(16 + p), v(ACC + 8 * p), v(ACC + 8 * p + 4)))
    a("s_mul_i32 s10, s3, 320")
    a("v_add_u32 v4, s10, v5")
    exec_lo16(a)
    a("ds_write_b128 v4, v[16:19] offset:%d" % LAT)
    exec_all(a)
    a("s_waitcnt lgkmcnt(0)")
    a("s_barrier")
    a("v_and_b32 v6, 3, v1")
    a("v_mul_u32_u24 v6, 320, v6")
    a("v_lshl_add_u32 v6, v3, 4, v6")
    a("s_lshl_b32 s10, s3, 6")
    a("v_add_u32 v6, s10, v6")
    a("ds_read_b128 v[8:11], v6 offset:%d" % LAT)
    a("s_waitcnt vmcnt(16) lgkmcnt(0)")
    unit8(a, LV, FX, 8, ACC, True)
    a.nop(8)
    a("s_lshl_b32 s10, s3, 12")
    a("v_add_u32 v4, s10, v5")
    exec_lo16(a)
    for t in range(8):
        a("ds_write_b128 v4, %s offset:%d" % (vr(ACC + 4 * t, 4), RED + 256 * t))
    exec_all(a)
    a("s_waitcnt lgkmcnt(0)")
    a("s_barrier")
    a("s_cmp_ge_u32 s3, 2")
    a("s_cbranch_scc1 k3_sumdone")
    a("v_lshlrev_b32 v7, 4, v0")
    for w in range(4):
        a("ds_read_b128 %s, v7 offset:%d" % (vr(16 + 4 * w, 4), RED + 4096 * w))
    a("v_lshrrev_b32 v12, 4, v0")
    a("v_lshlrev_b32 v13, 4, v2")
    a("v_lshl_add_u32 v12, v12, 1, v13")
    a("s_waitcnt lgkmcnt(0)")
    for b in range(4):
        a("v_add_f32 %s, %s, %s" % (v(16 + b), v(16 + b), v(20 + b)))
        a("v_add_f32 %s, %s, %s" % (v(24 + b), v(24 + b), v(28 + b)))
    for b in range(4):
        a("v_add_f32 %s, %s, %s" % (v(16 + b), v(16 + b), v(24 + b)))
    a("v_cvt_pk_bf16_f32 v20, v16, v17")
    a("v_cvt_pk_bf16_f32 v21, v18, v19")
    a("ds_write_b16 v12, v20 offset:%d" % (CTX))
    a("ds_write_b16_d16_hi v12, v20 offset:%d" % (CTX + 320))
    a("ds_write_b16 v12, v21 offset:%d" % (CTX + 640))
    a("ds_write_b16_d16_hi v12, v21 offset:%d" % (CTX + 960))
    a("s_waitcnt lgkmcnt(0)")
    a.label("k3_sumdone")
    a("s_barrier")
    a("ds_read_b128 v[8:11], v6 offset:%d" % CTX)
    a("s_waitcnt vmcnt(8) lgkmcnt(0)")
    unit8(a, LO, FX, 8, ACC, True)
    a("s_waitcnt vmcnt(0)")
    unit8(a, LO + 32, LO, 8, ACC + 32, True)
    a.nop(8)
    exec_lo16(a)
    for cb in range(2):
        for t in range(8):
            a("ds_write_b128 v4, %s offset:%d" % (vr(ACC + 32 * cb + 4 * t, 4), RED + 2048 * cb + 256 * t))
    exec_all(a)
    a("s_waitcnt lgkmcnt(0)")
    a("s_barrier")
    a("v_lshlrev_b32 v7, 4, v0")
    for w in range(4):
        a("ds_read_b128 %s, v7 offset:%d" % (vr(16 + 4 * w, 4), RED + 4096 * w))
    a("s_lshl_b32 s10, s6, 2")
    a("s_add_u32 s10, s10, s7")
    a("s_lshl_b32 s10, s10, 13")
    a("s_lshl_b32 s11, s8, 12")
    a("s_add_u32 s10, s10, s11")
    a("s_add_u32 s10, s10, 0x%x" % SPART)
    a("v_add_u32 v12, s10, v7")
    a("s_waitcnt lgkmcnt(0)")
    for b in range(4):
        a("v_add_f32 %s, %s, %s" % (v(16 + b), v(16 + b), v(20 + b)))
        a("v_add_f32 %s, %s, %s" % (v(24 + b), v(24 + b), v(28 + b)))
    for b in range(4):
        a("v_add_f32 %s, %s, %s" % (v(16 + b), v(16 + b), v(24 + b)))
    a("buffer_store_dwordx4 v[16:19], v12, s[%d:%d], 0 offen" % (SO, SO + 3))
    a("s_endpgm")
    a.label("k3_ffn")
    a("s_sub_u32 s4, s2, 256")
    srd(a, SW, P_WD, 1792 * 1024)
    a("s_mov_b32 s13, 4096")
    GL = 16
    a("v_and_b32 v4, 31, v1")
    a("v_lshrrev_b32 v5, 5, v1")
    a("v_mul_u32_u24 v5, %d, v5" % (8 * 1792))
    a("s_lshl_b32 s10, s4, 5")
    a("v_add3_u32 v5, v5, v4, s10")
    a("v_lshlrev_b32 v5, 4, v5")
    a("v_add_u32 v5, 0x%x, v5" % GU)
    for kk in range(4):
        for mat in range(2):
            a("s_mov_b32 s12, 0x%x" % ((kk * 2 + mat) * 1792 * 16))
            a("buffer_load_dwordx4 %s, v5, s[%d:%d], s12 offen" % (vr(GL + 8 * kk + 4 * mat, 4), SO, SO + 3))
    LD = 64
    a("s_lshl_b32 s10, s4, 15")
    a("s_lshl_b32 s11, s3, 8")
    a("s_add_u32 s10, s10, s11")
    a("v_lshlrev_b32 v6, 13, v3")
    a("v_lshlrev_b32 v7, 4, v2")
    a("v_add3_u32 v6, v6, v7, s10")
    for i in range(8):
        a("buffer_load_dwordx4 %s, v6, s[%d:%d], %s offen offset:%d" % (vr(LD + 4 * i, 4), SW, SW + 3,
                                                                       "0" if i < 4 else "s13", (i & 3) * 1024))
    a("s_waitcnt vmcnt(8)")
    for q in range(8):
        a("v_add_f32 %s, %s, %s" % (v(GL + q), v(GL + q), v(GL + 8 + q)))
        a("v_add_f32 %s, %s, %s" % (v(GL + 16 + q), v(GL + 16 + q), v(GL + 24 + q)))
    for q in range(8):
        a("v_add_f32 %s, %s, %s" % (v(GL + q), v(GL + q), v(GL + 16 + q)))
    for q in range(8):
        a("v_mov_b32 %s, %s" % (v(GL + 8 + q), v(GL + q)))
    a.nop(2)
    for q in range(8):
        a("v_permlane32_swap_b32 %s, %s" % (v(GL + q), v(GL + 8 + q)))
    a.nop(1)
    for q in range(8):
        a("v_add_f32 %s, %s, %s" % (v(GL + q), v(GL + q), v(GL + 8 + q)))
    for p in range(4):
        a("v_cvt_pk_bf16_f32 %s, %s, %s" % (v(24 + p), v(GL + 2 * p), v(GL + 2 * p + 1)))
    for p in range(4):
        a("v_lshlrev_b32 %s, 16, %s" % (v(GL + 2 * p), v(24 + p)))
        a("v_and_b32 %s, 0xffff0000, %s" % (v(GL + 2 * p + 1), v(24 + p)))
    for b in range(4):
        silu_inplace(a, GL + b, 28 + b)
    a("v_cvt_pk_bf16_f32 v24, v16, v17")
    a("v_cvt_pk_bf16_f32 v25, v18, v19")
    a("v_lshlrev_b32 v16, 16, v24")
    a("v_and_b32 v17, 0xffff0000, v24")
    a("v_lshlrev_b32 v18, 16, v25")
    a("v_and_b32 v19, 0xffff0000, v25")
    for b in range(4):
        a("v_mul_f32 %s, %s, %s" % (v(16 + b), v(16 + b), v(20 + b)))
    a("v_cvt_pk_bf16_f32 v24, v16, v17")
    a("v_cvt_pk_bf16_f32 v25, v18, v19")
    a("s_mul_i32 s10, s3, 320")
    a("v_lshlrev_b32 v8, 1, v4")
    a("v_add_u32 v8, s10, v8")
    a("ds_write_b16 v8, v24 offset:%d" % (HA))
    a("ds_write_b16_d16_hi v8, v24 offset:%d" % (HA + 80))
    a("ds_write_b16 v8, v25 offset:%d" % (HA + 160))
    a("ds_write_b16_d16_hi v8, v25 offset:%d" % (HA + 240))
    a("v_and_b32 v9, 3, v1")
    a("v_mul_u32_u24 v9, 80, v9")
    a("v_lshl_add_u32 v9, v3, 4, v9")
    a("v_add_u32 v9, s10, v9")
    a("s_waitcnt lgkmcnt(0)")
    a("ds_read_b128 v[8:11], v9 offset:%d" % HA)
    a("s_waitcnt vmcnt(0) lgkmcnt(0)")
    unit8(a, LD, 96, 8, 128, True)
    a("s_lshl_b32 s10, s4, 13")
    a("s_lshl_b32 s11, s3, 11")
    a("s_add_u32 s10, s10, s11")
    a("s_add_u32 s10, s10, 0x%x" % YPART)
    a("v_add_u32 v4, s10, v7")
    a.nop(8)
    exec_lo16(a)
    for t in range(8):
        a("buffer_store_dwordx4 %s, v4, s[%d:%d], 0 offen offset:%d" % (vr(128 + 4 * t, 4), SO, SO + 3, 256 * t))
    a.label("k3_end")
    a("s_endpgm")
    return name, 256, HA + 1280


def gen_k4(a):
    name = "k4_kernel"
    kernel_begin(a, name)
    prologue(a, 64, "k4_end")
    SS, SY, SX, SOUT = 44, 48, 52, 56
    srd(a, SS, P_WS, 128 * 8192, off=SPART)
    srd(a, SY, P_WS, 56 * 8192, off=YPART)
    srd(a, SX, P_X, 4096)
    srd(a, SOUT, P_OUT, 4096)
    a("s_mov_b32 s13, 8192")
    a("s_mov_b32 s12, 16384")
    a("s_mov_b32 s11, 24576")
    a("v_and_b32 v4, 7, v0")
    a("v_lshrrev_b32 v5, 3, v0")
    a("s_lshl_b32 s10, s2, 7")
    a("v_lshlrev_b32 v6, 4, v4")
    a("v_add_u32 v6, s10, v6")
    a("v_lshlrev_b32 v7, 15, v5")
    a("v_add_u32 v7, v7, v6")
    a("buffer_load_dwordx4 v[16:19], v7, s[%d:%d], 0 offen" % (SS, SS + 3))
    a("buffer_load_dwordx4 v[20:23], v7, s[%d:%d], s13 offen" % (SS, SS + 3))
    a("buffer_load_dwordx4 v[24:27], v7, s[%d:%d], s12 offen" % (SS, SS + 3))
    a("buffer_load_dwordx4 v[28:31], v7, s[%d:%d], s11 offen" % (SS, SS + 3))
    a("v_lshlrev_b32 v7, 14, v5")
    a("v_add_u32 v7, v7, v6")
    a("buffer_load_dwordx4 v[32:35], v7, s[%d:%d], 0 offen" % (SY, SY + 3))
    a("buffer_load_dwordx4 v[36:39], v7, s[%d:%d], s13 offen" % (SY, SY + 3))
    a("v_lshrrev_b32 v8, 2, v0")
    a("s_lshl_b32 s10, s2, 3")
    a("v_add_u32 v8, s10, v8")
    a("v_and_b32 v9, 15, v8")
    a("v_lshrrev_b32 v10, 4, v8")
    a("v_and_b32 v10, 7, v10")
    a("v_lshrrev_b32 v11, 7, v8")
    a("v_lshlrev_b32 v11, 7, v11")
    a("v_lshl_add_u32 v11, v9, 3, v11")
    a("v_add_u32 v11, v11, v10")
    a("v_and_b32 v12, 3, v0")
    a("v_lshl_add_u32 v11, v12, 9, v11")
    a("v_lshlrev_b32 v11, 1, v11")
    a("buffer_load_ushort v13, v11, s[%d:%d], 0 offen" % (SX, SX + 3))
    a("s_waitcnt vmcnt(1)")
    for q in range(4):
        a("v_add_f32 %s, %s, %s" % (v(16 + q), v(16 + q), v(20 + q)))
        a("v_add_f32 %s, %s, %s" % (v(24 + q), v(24 + q), v(28 + q)))
        a("v_add_f32 %s, %s, %s" % (v(20 + q), v(32 + q), v(36 + q)))
    for q in range(4):
        a("v_add_f32 %s, %s, %s" % (v(16 + q), v(16 + q), v(24 + q)))
    a.nop(2)
    for q in range(8):
        a("v_add_f32_dpp %s, %s, %s row_ror:8 row_mask:0xf bank_mask:0xf" % (v(24 + q), v(16 + q), v(16 + q)))
    for q in range(8):
        a("v_mov_b32 %s, %s" % (v(16 + q), v(24 + q)))
    a.nop(2)
    for q in range(8):
        a("v_permlane16_swap_b32 %s, %s" % (v(16 + q), v(24 + q)))
    a.nop(1)
    for q in range(8):
        a("v_add_f32 %s, %s, %s" % (v(16 + q), v(16 + q), v(24 + q)))
    for q in range(8):
        a("v_mov_b32 %s, %s" % (v(24 + q), v(16 + q)))
    a.nop(2)
    for q in range(8):
        a("v_permlane32_swap_b32 %s, %s" % (v(16 + q), v(24 + q)))
    a.nop(1)
    for q in range(8):
        a("v_add_f32 %s, %s, %s" % (v(16 + q), v(16 + q), v(24 + q)))
    a("s_lshl_b32 s10, s3, 8")
    a("v_lshlrev_b32 v14, 5, v4")
    a("v_add_u32 v14, s10, v14")
    a("s_mov_b64 exec, 0xff")
    a("ds_write_b128 v14, v[16:19]")
    a("ds_write_b128 v14, v[20:23] offset:16")
    exec_all(a)
    a("s_waitcnt lgkmcnt(0)")
    a("s_barrier")
    a("s_cmp_lg_u32 s3, 0")
    a("s_cbranch_scc1 k4_end")
    a("s_mov_b32 exec_lo, -1")
    a("s_mov_b32 exec_hi, 0")
    a("v_lshrrev_b32 v14, 2, v0")
    a("v_lshlrev_b32 v14, 5, v14")
    a("v_lshl_add_u32 v14, v12, 2, v14")
    for w in range(4):
        a("ds_read_b32 %s, v14 offset:%d" % (v(16 + w), 256 * w))
        a("ds_read_b32 %s, v14 offset:%d" % (v(20 + w), 256 * w + 16))
    a("s_waitcnt vmcnt(0) lgkmcnt(0)")
    a("v_add_f32 v16, v16, v17")
    a("v_add_f32 v18, v18, v19")
    a("v_add_f32 v20, v20, v21")
    a("v_add_f32 v22, v22, v23")
    a("v_add_f32 v16, v16, v18")
    a("v_add_f32 v20, v20, v22")
    a("v_cvt_pk_bf16_f32 v24, v16, v20")
    a("v_lshlrev_b32 v16, 16, v24")
    a("v_and_b32 v20, 0xffff0000, v24")
    silu_inplace(a, 20, 25)
    a("v_cvt_pk_bf16_f32 v24, v20, v20")
    a("v_lshlrev_b32 v20, 16, v24")
    a("v_mul_f32 v16, v16, v20")
    a("v_cvt_pk_bf16_f32 v24, v16, v16")
    a("v_lshlrev_b32 v16, 16, v24")
    a("v_lshlrev_b32 v13, 16, v13")
    a("v_add_f32 v16, v16, v13")
    a("v_cvt_pk_bf16_f32 v24, v16, v16")
    a("buffer_store_short v24, v11, s[%d:%d], 0 offen" % (SOUT, SOUT + 3))
    a.label("k4_end")
    a("s_endpgm")
    return name, 40, 1024


def main():
    hdr = []
    a = Asm()
    a.raw('.amdgcn_target "amdgcn-amd-amdhsa--gfx950"')
    a.raw(".text")
    n1, v1 = gen_k1(a)
    n2, v2, l2 = gen_k2(a)
    n3, v3, l3 = gen_k3(a)
    n4, v4, l4 = gen_k4(a)
    a.raw('.section .rodata,"a"')
    for n, nv in ((n1, v1), (n2, v2), (n3, v3), (n4, v4)):
        a.raw(".p2align 6")
        kernel_desc(a, n, nv)
    hdr.append("; @launch kernel=%s grid=(368,1,1) block=(256,1,1) lds=14336" % n1)
    hdr.append("; @launch kernel=%s grid=(256,1,1) block=(256,1,1) lds=%d" % (n2, l2))
    hdr.append("; @launch kernel=%s grid=(312,1,1) block=(256,1,1) lds=%d" % (n3, l3))
    hdr.append("; @launch kernel=%s grid=(64,1,1) block=(256,1,1) lds=%d" % (n4, l4))
    out = "\n".join(hdr + a.L) + "\n"
    path = sys.argv[1] if len(sys.argv) > 1 else "cdna_kernels/%s.s" % NAME
    open(path, "w").write(out)


if __name__ == "__main__":
    main()
```

```python
import sys

NAME = "recurrent_scan__compressed_kv_cla__swiglu_ffn__decode"

QABS = 0x000000
GU = 0x040000
STATS = 0x0C0000
PART = 0x100000
SPART = 0x600000
YPART = 0x700000
WS_USED = 0x800000

SRD3 = 0x00020000


def v(n):
    return "v%d" % n


def vr(n, c):
    return "v[%d:%d]" % (n, n + c - 1)


def s(n):
    return "s%d" % n


def sr(n, c):
    return "s[%d:%d]" % (n, n + c - 1)


class Asm:
    def __init__(self):
        self.L = []

    def __call__(self, t):
        self.L.append("    " + t)

    def label(self, t):
        self.L.append(t + ":")

    def c(self, t):
        self.L.append("    ; " + t)

    def raw(self, t):
        self.L.append(t)

    def nop(self, n):
        while n > 0:
            k = min(n, 16)
            self("s_nop %d" % (k - 1))
            n -= k


P_X, P_CKV, P_WQ, P_WUK, P_WUV, P_WO, P_BX, P_WG, P_WU, P_WD, P_OUT, P_DBG, P_WS = [16 + 2 * i for i in range(13)]
S_SELLO, S_SELHI = 14, 15
S_WV = 3


def kernel_begin(a, name):
    a.raw(".globl %s" % name)
    a.raw(".p2align 8")
    a.raw(".type %s,@function" % name)
    a.label(name)


def kernel_desc(a, name, nvgpr, nsgpr=102):
    nv = (nvgpr + 3) // 4 * 4
    a.raw(".amdhsa_kernel %s" % name)
    a.raw("  .amdhsa_next_free_vgpr %d" % nv)
    a.raw("  .amdhsa_next_free_sgpr %d" % nsgpr)
    a.raw("  .amdhsa_accum_offset %d" % nv)
    a.raw("  .amdhsa_group_segment_fixed_size 0")
    a.raw("  .amdhsa_kernarg_size 104")
    a.raw("  .amdhsa_user_sgpr_count 2")
    a.raw("  .amdhsa_user_sgpr_kernarg_segment_ptr 1")
    a.raw("  .amdhsa_system_sgpr_workgroup_id_x 1")
    a.raw(".end_amdhsa_kernel")


def prologue(a, nwg, endlabel):
    a("s_cmp_ge_u32 s2, %d" % nwg)
    a("s_cbranch_scc1 %s" % endlabel)
    a("s_load_dwordx16 s[16:31], s[0:1], 0")
    a("s_load_dwordx8 s[32:39], s[0:1], 64")
    a("s_load_dwordx2 s[40:41], s[0:1], 96")
    a("v_lshrrev_b32 v3, 6, v0")
    a("v_and_b32 v1, 63, v0")
    a("v_readfirstlane_b32 s3, v3")
    a("v_and_b32 v2, 15, v1")
    a("v_lshrrev_b32 v3, 4, v1")
    a("s_mov_b32 s%d, 0x05040100" % S_SELLO)
    a("s_mov_b32 s%d, 0x07060302" % S_SELHI)
    a("s_waitcnt lgkmcnt(0)")


def srd(a, d, p, size, off=None, off_sgpr=None):
    if off_sgpr is not None:
        a("s_add_u32 s%d, s%d, s%d" % (d, p, off_sgpr))
        a("s_addc_u32 s%d, s%d, 0" % (d + 1, p + 1))
        a("s_and_b32 s%d, s%d, 0xffff" % (d + 1, d + 1))
    elif off:
        a("s_add_u32 s%d, s%d, 0x%x" % (d, p, off))
        a("s_addc_u32 s%d, s%d, 0" % (d + 1, p + 1))
        a("s_and_b32 s%d, s%d, 0xffff" % (d + 1, d + 1))
    else:
        a("s_mov_b32 s%d, s%d" % (d, p))
        a("s_and_b32 s%d, s%d, 0xffff" % (d + 1, p + 1))
    a("s_mov_b32 s%d, 0x%x" % (d + 2, size))
    a("s_mov_b32 s%d, 0x%x" % (d + 3, SRD3))


def red_g(a, op, x, t):
    a("v_mov_b32 %s, %s" % (v(t), v(x)))
    a.nop(2)
    a("v_permlane16_swap_b32 %s, %s" % (v(x), v(t)))
    a.nop(1)
    a("%s %s, %s, %s" % (op, v(x), v(x), v(t)))
    a("v_mov_b32 %s, %s" % (v(t), v(x)))
    a.nop(2)
    a("v_permlane32_swap_b32 %s, %s" % (v(x), v(t)))
    a.nop(1)
    a("%s %s, %s, %s" % (op, v(x), v(x), v(t)))


def red_16(a, op, x, t):
    a.nop(2)
    a("%s_dpp %s, %s, %s quad_perm:[1,0,3,2] row_mask:0xf bank_mask:0xf" % (op, v(t), v(x), v(x)))
    a.nop(2)
    a("%s_dpp %s, %s, %s quad_perm:[2,3,0,1] row_mask:0xf bank_mask:0xf" % (op, v(x), v(t), v(t)))
    a.nop(2)
    a("%s_dpp %s, %s, %s row_half_mirror row_mask:0xf bank_mask:0xf" % (op, v(t), v(x), v(x)))
    a.nop(2)
    a("%s_dpp %s, %s, %s row_mirror row_mask:0xf bank_mask:0xf" % (op, v(x), v(t), v(t)))


def red_64(a, op, x, t):
    red_16(a, op, x, t)
    red_g(a, op, x, t)


def layernorm(a, vx, t, vaddr):
    f = t
    d = t + 8
    S, T, M, R, VB, MB, SQ, RC = [t + 16 + i for i in range(8)]
    for i in range(4):
        a("v_lshlrev_b32 %s, 16, %s" % (v(f + 2 * i), v(vx + i)))
        a("v_and_b32 %s, 0xffff0000, %s" % (v(f + 2 * i + 1), v(vx + i)))
    a("v_add_f32 %s, %s, %s" % (v(S), v(f), v(f + 1)))
    for i in range(2, 8):
        a("v_add_f32 %s, %s, %s" % (v(S), v(S), v(f + i)))
    red_64(a, "v_add_f32", S, T)
    a("v_mul_f32 %s, 0x3b000000, %s" % (v(M), v(S)))
    for i in range(8):
        a("v_sub_f32 %s, %s, %s" % (v(d + i), v(f + i), v(M)))
    a("v_mul_f32 %s, %s, %s" % (v(S), v(d), v(d)))
    for i in range(1, 8):
        a("v_fma_f32 %s, %s, %s, %s" % (v(S), v(d + i), v(d + i), v(S)))
    red_64(a, "v_add_f32", S, T)
    a("v_mul_f32 %s, 0x3b000000, %s" % (v(S), v(S)))
    a("v_cvt_pk_bf16_f32 %s, %s, %s" % (v(R), v(S), v(M)))
    a("v_lshlrev_b32 %s, 16, %s" % (v(VB), v(R)))
    a("v_and_b32 %s, 0xffff0000, %s" % (v(MB), v(R)))
    a("v_add_f32 %s, 0x3727c5ac, %s" % (v(VB), v(VB)))
    a("v_cvt_pk_bf16_f32 %s, %s, %s" % (v(R), v(VB), v(VB)))
    a("v_lshlrev_b32 %s, 16, %s" % (v(VB), v(R)))
    a("v_sqrt_f32 %s, %s" % (v(SQ), v(VB)))
    a.nop(1)
    a("v_cvt_pk_bf16_f32 %s, %s, %s" % (v(R), v(SQ), v(SQ)))
    a("v_lshlrev_b32 %s, 16, %s" % (v(SQ), v(R)))
    a("v_rcp_f32 %s, %s" % (v(RC), v(SQ)))
    for i in range(8):
        a("v_sub_f32 %s, %s, %s" % (v(d + i), v(f + i), v(MB)))
    for i in range(4):
        a("v_cvt_pk_bf16_f32 %s, %s, %s" % (v(f + i), v(d + 2 * i), v(d + 2 * i + 1)))
    for i in range(4):
        a("v_lshlrev_b32 %s, 16, %s" % (v(d + 2 * i), v(f + i)))
        a("v_and_b32 %s, 0xffff0000, %s" % (v(d + 2 * i + 1), v(f + i)))
    for i in range(8):
        a("v_mul_f32 %s, %s, %s" % (v(f + i), v(d + i), v(RC)))
    for i in range(8):
        a("v_fma_f32 %s, -%s, %s, %s" % (v(d + i), v(f + i), v(SQ), v(d + i)))
    for i in range(8):
        a("v_fma_f32 %s, %s, %s, %s" % (v(f + i), v(d + i), v(RC), v(f + i)))
    for i in range(4):
        a("v_cvt_pk_bf16_f32 %s, %s, %s" % (v(d + i), v(f + 2 * i), v(f + 2 * i + 1)))
    a("ds_write_b128 %s, %s" % (v(vaddr), vr(d, 4)))


def unit8(a, L, F, A, acc, first):
    def perms(t):
        c, e = t >> 1, t & 1
        for p in range(4):
            a("v_perm_b32 %s, %s, %s, s%d" % (v(F + 4 * t + p), v(L + 4 * (2 * p + 1) + c), v(L + 4 * (2 * p) + c),
                                              S_SELHI if e else S_SELLO))

    def mf(t):
        a("v_mfma_f32_16x16x32_bf16 %s, %s, %s, %s" % (vr(acc + 4 * t, 4), vr(A, 4), vr(F + 4 * t, 4),
                                                       "0" if first else vr(acc + 4 * t, 4)))
    perms(0)
    for t in range(1, 8):
        perms(t)
        mf(t - 1)
    a.nop(2)
    mf(7)


def unit4(a, L, F, A, acc, first):
    def perms(t):
        c, e = t >> 1, t & 1
        for p in range(4):
            a("v_perm_b32 %s, %s, %s, s%d" % (v(F + 4 * t + p), v(L + 2 * (2 * p + 1) + c), v(L + 2 * (2 * p) + c),
                                              S_SELHI if e else S_SELLO))

    def mf(t):
        a("v_mfma_f32_16x16x32_bf16 %s, %s, %s, %s" % (vr(acc + 4 * t, 4), vr(A, 4), vr(F + 4 * t, 4),
                                                       "0" if first else vr(acc + 4 * t, 4)))
    perms(0)
    for t in range(1, 4):
        perms(t)
        mf(t - 1)
    a.nop(2)
    mf(3)


def exec_lo16(a):
    a("s_mov_b64 exec, 0xffff")


def exec_all(a):
    a("s_mov_b64 exec, -1")


LOG2E = 1.4426950408889634


def f32hex(x):
    import struct
    return "0x%08x" % struct.unpack("<I", struct.pack("<f", x))[0]


def silu_inplace(a, x, t):
    a("v_mul_f32 %s, %s, %s" % (v(t), f32hex(-LOG2E), v(x)))
    a("v_exp_f32 %s, %s" % (v(t), v(t)))
    a.nop(1)
    a("v_add_f32 %s, 1.0, %s" % (v(t), v(t)))
    a("v_rcp_f32 %s, %s" % (v(t), v(t)))
    a.nop(1)
    a("v_mul_f32 %s, %s, %s" % (v(x), v(x), v(t)))


def gen_k1(a):
    name = "k1_kernel"
    kernel_begin(a, name)
    XN, RED, QL = 0, 4352, 12544
    prologue(a, 368, "k1_end")
    SX, SW, SU, SO = 44, 48, 52, 56
    srd(a, SX, P_X, 4096)
    srd(a, SO, P_WS, WS_USED)
    a("s_lshl_b32 s4, s3, 10")
    a("v_lshlrev_b32 v4, 4, v1")
    a("v_add_u32 v5, s4, v4")
    a("buffer_load_dwordx4 v[8:11], v5, s[%d:%d], 0 offen" % (SX, SX + 3))
    a("s_mul_i32 s4, s3, 1088")
    a("v_add_u32 v6, s4, v4")
    a("s_cmp_ge_u32 s2, 256")
    a("s_cbranch_scc1 k1_ffn")
    a("s_and_b32 s4, s2, 7")
    a("s_lshr_b32 s5, s2, 3")
    a("s_lshr_b32 s6, s5, 3")
    a("s_lshl_b32 s4, s4, 2")
    a("s_add_u32 s6, s6, s4")
    a("s_and_b32 s7, s5, 3")
    a("s_bfe_u32 s13, s5, 0x10002")
    srd(a, SW, P_WQ, 4194304)
    srd(a, SU, P_WUK, 4194304)
    a("s_lshl_b32 s8, s3, 20")
    a("s_lshl_b32 s9, s6, 8")
    a("s_lshl_b32 s10, s13, 7")
    a("s_add_u32 s9, s9, s10")
    a("s_add_u32 s8, s8, s9")
    a("v_lshrrev_b32 v12, 3, v2")
    a("v_lshl_add_u32 v7, v12, 2, v3")
    a("v_lshlrev_b32 v7, 16, v7")
    a("v_and_b32 v15, 7, v2")
    a("v_lshlrev_b32 v15, 4, v15")
    a("v_add3_u32 v7, v7, v15, s8")
    LQ = 16
    for u in range(2):
        for i in range(8):
            a("s_mov_b32 s10, 0x%x" % ((64 * u + i) * 8192))
            a("buffer_load_dwordx4 %s, v7, s[%d:%d], s10 offen" % (vr(LQ + 32 * u + 4 * i, 4), SW, SW + 3))
    LU = 144
    a("s_lshl_b32 s8, s7, 7")
    a("s_lshl_b32 s10, s3, 5")
    a("s_add_u32 s8, s8, s10")
    a("v_add_u32 v14, s8, v2")
    a("v_lshlrev_b32 v14, 13, v14")
    a("v_lshlrev_b32 v13, 4, v3")
    a("v_add3_u32 v14, v14, v13, s9")
    a("s_mov_b32 s10, 0x20000")
    for T in range(2):
        for st in range(2):
            a("buffer_load_dwordx4 %s, v14, s[%d:%d], %s offen offset:%d" % (vr(LU + 8 * T + 4 * st, 4), SU, SU + 3,
                                                                          "0" if T == 0 else "s10", 64 * st))
    a("s_lshl_b32 s10, s3, 11")
    a("v_lshl_add_u32 v12, v12, 10, v15")
    a("v_add_u32 v12, s10, v12")
    a("s_waitcnt vmcnt(20)")
    layernorm(a, 8, 208, 6)
    a("s_waitcnt lgkmcnt(0)")
    a("s_barrier")
    AF = 160
    a("v_and_b32 v13, 3, v1")
    a("v_mul_u32_u24 v13, 1088, v13")
    a("v_bfe_u32 v14, v2, 2, 1")
    a("v_lshlrev_b32 v14, 2, v14")
    a("v_add_u32 v14, v14, v3")
    a("v_lshlrev_b32 v14, 4, v14")
    a("s_lshl_b32 s10, s3, 8")
    a("v_add3_u32 v13, v13, v14, s10")
    for u in range(2):
        a("ds_read_b128 %s, v13 offset:%d" % (vr(AF + 4 * u, 4), XN + 128 * u))
    ACC = 176
    FX = 208
    a("s_waitcnt lgkmcnt(0)")
    for u in range(2):
        a("s_waitcnt vmcnt(%d)" % ((1 - u) * 8 + 4))
        unit8(a, LQ + 32 * u, FX if u == 0 else LQ + 32 * (u - 1), AF + 4 * u, ACC, u == 0)
    a.nop(8)
    a("s_mov_b32 exec_lo, 0xff0000ff")
    a("s_mov_b32 exec_hi, 0")
    for t in range(8):
        a("ds_write_b128 v12, %s offset:%d" % (vr(ACC + 4 * t, 4), RED + 128 * t))
    exec_all(a)
    a("s_waitcnt lgkmcnt(0)")
    a("s_barrier")
    a("s_cmp_ge_u32 s3, 1")
    a("s_cbranch_scc1 k1_sumdone")
    a("v_lshlrev_b32 v13, 4, v0")
    for w in range(8):
        a("ds_read_b128 %s, v13 offset:%d" % (vr(16 + 4 * w, 4), RED + 1024 * w))
    a("v_lshrrev_b32 v14, 3, v0")
    a("v_lshl_add_u32 v14, v14, 1, v15")
    a("s_waitcnt lgkmcnt(0)")
    for b in range(4):
        for w in range(4):
            a("v_add_f32 %s, %s, %s" % (v(16 + 8 * w + b), v(16 + 8 * w + b), v(20 + 8 * w + b)))
    for b in range(4):
        a("v_add_f32 %s, %s, %s" % (v(16 + b), v(16 + b), v(24 + b)))
        a("v_add_f32 %s, %s, %s" % (v(32 + b), v(32 + b), v(40 + b)))
    for b in range(4):
        a("v_add_f32 %s, %s, %s" % (v(16 + b), v(16 + b), v(32 + b)))
    a("v_cvt_pk_bf16_f32 v20, v16, v17")
    a("v_cvt_pk_bf16_f32 v21, v18, v19")
    a("ds_write_b16 v14, v20 offset:%d" % (QL))
    a("ds_write_b16_d16_hi v14, v20 offset:%d" % (QL + 320))
    a("ds_write_b16 v14, v21 offset:%d" % (QL + 640))
    a("ds_write_b16_d16_hi v14, v21 offset:%d" % (QL + 960))
    a("s_waitcnt lgkmcnt(0)")
    a.label("k1_sumdone")
    a("s_barrier")
    a("v_and_b32 v13, 3, v1")
    a("v_mul_u32_u24 v13, 320, v13")
    a("v_lshl_add_u32 v13, v3, 4, v13")
    for st in range(2):
        a("ds_read_b128 %s, v13 offset:%d" % (vr(16 + 4 * st, 4), QL + 64 * st))
    a("s_waitcnt vmcnt(0) lgkmcnt(0)")
    for st in range(2):
        for T in range(2):
            a("v_mfma_f32_16x16x32_bf16 %s, %s, %s, %s" % (vr(32 + 4 * T, 4), vr(LU + 8 * T + 4 * st, 4), vr(16 + 4 * st, 4),
                                                          "0" if st == 0 else vr(32 + 4 * T, 4)))
    a("v_lshlrev_b32 v13, 15, v2")
    a("v_lshlrev_b32 v14, 3, v3")
    a("s_lshl_b32 s10, s6, 10")
    a("s_lshl_b32 s11, s8, 1")
    a("s_add_u32 s10, s10, s11")
    a("s_lshl_b32 s11, s13, 17")
    a("s_add_u32 s10, s10, s11")
    a("v_add3_u32 v13, v13, v14, s10")
    a("v_cmp_gt_u32 vcc, 4, v2")
    a.nop(4)
    sc = f32hex(LOG2E * (128 ** -0.5))
    for r in range(8):
        a("v_mul_f32 %s, %s, %s" % (v(32 + r), sc, v(32 + r)))
    for r in range(4):
        a("v_cvt_pk_bf16_f32 %s, %s, %s" % (v(40 + r), v(32 + 2 * r), v(33 + 2 * r)))
    a("s_and_saveexec_b64 s[12:13], vcc")
    for T in range(2):
        a("buffer_store_dwordx2 %s, v13, s[%d:%d], 0 offen offset:%d" % (vr(40 + 2 * T, 2), SO, SO + 3, QABS + 32 * T))
    a("s_endpgm")
    a.label("k1_ffn")
    a("s_sub_u32 s4, s2, 256")
    a("s_and_b32 s5, s4, 3")
    a("s_lshr_b32 s6, s4, 2")
    a("s_lshr_b32 s7, s3, 1")
    a("s_and_b32 s8, s3, 1")
    a("s_cmp_eq_u32 s7, 0")
    a("s_cselect_b32 s10, s%d, s%d" % (P_WG, P_WU))
    a("s_cselect_b32 s11, s%d, s%d" % (P_WG + 1, P_WU + 1))
    srd(a, SW, 10, 512 * 3584)
    a("s_lshl_b32 s9, s5, 1")
    a("s_add_u32 s9, s9, s8")
    a("s_mul_i32 s10, s9, %d" % (64 * 3584))
    a("s_lshl_b32 s11, s6, 7")
    a("s_add_u32 s10, s10, s11")
    a("v_mul_u32_u24 v7, %d, v3" % (8 * 3584))
    a("v_lshlrev_b32 v12, 3, v2")
    a("v_add3_u32 v7, v7, v12, s10")
    LF = 16
    for u in range(2):
        for i in range(8):
            a("s_mov_b32 s10, 0x%x" % ((32 * u + i) * 3584))
            a("buffer_load_dwordx2 %s, v7, s[%d:%d], s10 offen" % (vr(LF + 16 * u + 2 * i, 2), SW, SW + 3))
    a("s_waitcnt vmcnt(16)")
    layernorm(a, 8, 208, 6)
    a("s_waitcnt lgkmcnt(0)")
    a("s_barrier")
    a("v_and_b32 v13, 3, v1")
    a("v_mul_u32_u24 v13, 1088, v13")
    a("v_lshlrev_b32 v14, 4, v3")
    a("s_lshl_b32 s10, s9, 7")
    a("v_add3_u32 v13, v13, v14, s10")
    for u in range(2):
        a("ds_read_b128 %s, v13 offset:%d" % (vr(AF + 4 * u, 4), XN + 64 * u))
    a("s_waitcnt lgkmcnt(0)")
    for u in range(2):
        a("s_waitcnt vmcnt(%d)" % ((1 - u) * 8))
        unit4(a, LF + 16 * u, FX + 16 * u, AF + 4 * u, ACC, u == 0)
    a("s_lshl_b32 s10, s9, 1")
    a("s_add_u32 s10, s10, s7")
    a("s_mul_i32 s10, s10, %d" % (1792 * 16))
    a("s_lshl_b32 s11, s6, 10")
    a("s_add_u32 s10, s10, s11")
    a("s_add_u32 s10, s10, 0x%x" % GU)
    a("v_lshlrev_b32 v13, 6, v2")
    a("v_add_u32 v13, s10, v13")
    a.nop(8)
    exec_lo16(a)
    for t in range(4):
        a("buffer_store_dwordx4 %s, v13, s[%d:%d], 0 offen offset:%d" % (vr(ACC + 4 * t, 4), SO, SO + 3, 16 * t))
    a.label("k1_end")
    a("s_endpgm")
    return name, 240


def gen_k2(a):
    name = "k2_kernel"
    kernel_begin(a, name)
    RS = 1056
    PL = 0
    MX = PL + 4096
    LS = MX + 256
    CKV = 4608
    prologue(a, 256, "k2_end")
    SC, SO = 44, 48
    a("s_and_b32 s4, s2, 7")
    a("s_lshr_b32 s5, s2, 3")
    a("s_and_b32 s6, s5, 1")
    a("s_lshr_b32 s5, s5, 1")
    a("s_lshl_b32 s5, s5, 3")
    a("s_add_u32 s5, s5, s4")
    a("s_lshr_b32 s7, s5, 5")
    a("s_and_b32 s8, s5, 31")
    a("s_lshl_b32 s9, s5, 17")
    srd(a, SC, P_CKV, 131072, off_sgpr=9)
    srd(a, SO, P_WS, WS_USED)
    QF = 16
    QLD = 139776
    a("s_lshl_b32 s9, s7, 5")
    a("s_lshl_b32 s10, s6, 4")
    a("s_add_u32 s9, s9, s10")
    a("s_lshl_b32 s10, s3, 2")
    a("s_add_u32 s10, s10, s9")
    a("s_lshl_b32 s10, s10, 10")
    a("v_lshlrev_b32 v4, 4, v1")
    a("v_add_u32 v4, s10, v4")
    a("s_mov_b32 s10, 0x20000")
    for i in range(4):
        a("buffer_load_dwordx4 %s, v4, s[%d:%d], 0 offen offset:%d" % (vr(144 + 4 * i, 4), SO, SO + 3, QABS + 1024 * i))
        a("buffer_load_dwordx4 %s, v4, s[%d:%d], s10 offen offset:%d" % (vr(160 + 4 * i, 4), SO, SO + 3, QABS + 1024 * i))
    a("v_lshlrev_b32 v5, 4, v1")
    a("s_mul_i32 s10, s3, %d" % (32 * RS))
    a("s_lshl_b32 s11, s3, 15")
    for i in range(32):
        a("s_add_u32 m0, s10, %d" % (CKV + i * RS))
        a("s_add_u32 s12, s11, %d" % (i * 1024))
        a("buffer_load_dwordx4 v5, s[%d:%d], s12 offen lds" % (SC, SC + 3))
    a("v_mul_u32_u24 v6, %d, v2" % RS)
    a("v_lshlrev_b32 v7, 4, v3")
    a("v_add3_u32 v6, v6, v7, s10")
    AF = 80
    SCO = 144
    a("s_mul_i32 s12, s3, %d" % (4 * RS))
    a("s_add_u32 s12, s12, %d" % QLD)
    a("v_add_u32 v4, s12, v5")
    a("v_mul_u32_u24 v12, %d, v2" % RS)
    a("s_mov_b32 s13, %d" % QLD)
    a("v_add3_u32 v12, v12, v7, s13")
    for i in range(4):
        a("s_waitcnt vmcnt(%d)" % (32 + 2 * (3 - i)))
        for q in range(4):
            x, y = 144 + 4 * i + q, 160 + 4 * i + q
            a("v_lshlrev_b32 v8, 16, %s" % v(x))
            a("v_lshlrev_b32 v9, 16, %s" % v(y))
            a("v_and_b32 v10, 0xffff0000, %s" % v(x))
            a("v_and_b32 v11, 0xffff0000, %s" % v(y))
            a("v_add_f32 v8, v8, v9")
            a("v_add_f32 v10, v10, v11")
            a("v_cvt_pk_bf16_f32 %s, v8, v10" % v(x))
        a("ds_write_b128 v4, %s offset:%d" % (vr(144 + 4 * i, 4), i * RS))
    a("s_waitcnt lgkmcnt(0)")
    a("s_barrier")
    for st in range(16):
        a("ds_read_b128 %s, v12 offset:%d" % (vr(QF + 4 * st, 4), st * 64))
    for T in range(2):
        a("s_waitcnt vmcnt(%d)" % (16 if T == 0 else 0))
        for st in range(16):
            a("ds_read_b128 %s, v6 offset:%d" % (vr(AF + 4 * st, 4), CKV + T * 16 * RS + st * 64))
        for st in range(16):
            a("s_waitcnt lgkmcnt(%d)" % (15 - st))
            a("v_mfma_f32_16x16x32_bf16 %s, %s, %s, %s" % (vr(SCO + 4 * T, 4), vr(AF + 4 * st, 4), vr(QF + 4 * st, 4),
                                                          "0" if st == 0 else vr(SCO + 4 * T, 4)))
    a.nop(8)
    a("v_max3_f32 v8, v144, v145, v146")
    a("v_max3_f32 v8, v8, v147, v148")
    a("v_max3_f32 v8, v8, v149, v150")
    a("v_max_f32 v8, v8, v151")
    red_g(a, "v_max_f32", 8, 9)
    a("s_lshl_b32 s12, s3, 6")
    a("v_lshlrev_b32 v10, 2, v2")
    a("v_add_u32 v11, s12, v10")
    exec_lo16(a)
    a("ds_write_b32 v11, v8 offset:%d" % MX)
    exec_all(a)
    a("s_waitcnt lgkmcnt(0)")
    a("s_barrier")
    for w in range(4):
        a("ds_read_b32 %s, v10 offset:%d" % (v(12 + w), MX + 64 * w))
    a("s_waitcnt lgkmcnt(0)")
    a("v_max3_f32 v8, v12, v13, v14")
    a("v_max_f32 v8, v8, v15")
    for r in range(8):
        a("v_sub_f32 %s, %s, v8" % (v(SCO + r), v(SCO + r)))
    for r in range(8):
        a("v_exp_f32 %s, %s" % (v(SCO + r), v(SCO + r)))
    a.nop(1)
    for r in range(4):
        a("v_cvt_pk_bf16_f32 %s, %s, %s" % (v(152 + r), v(SCO + 2 * r), v(SCO + 2 * r + 1)))
    a("v_add_f32 v9, v144, v145")
    for r in range(2, 8):
        a("v_add_f32 v9, v9, %s" % v(SCO + r))
    a("s_lshl_b32 s12, s3, 10")
    a("v_lshlrev_b32 v12, 4, v1")
    a("v_add_u32 v13, s12, v12")
    a("ds_write_b128 v13, v[152:155] offset:%d" % PL)
    red_g(a, "v_add_f32", 9, 14)
    exec_lo16(a)
    a("ds_write_b32 v11, v9 offset:%d" % LS)
    exec_all(a)
    a("s_waitcnt lgkmcnt(0)")
    a("s_barrier")
    PF = 156
    for st in range(4):
        a("ds_read_b128 %s, v12 offset:%d" % (vr(PF + 4 * st, 4), PL + 1024 * st))
    a("v_lshrrev_b32 v13, 2, v2")
    a("v_lshl_add_u32 v13, v3, 2, v13")
    a("v_mul_u32_u24 v13, %d, v13" % RS)
    a("v_and_b32 v14, 3, v2")
    a("v_lshlrev_b32 v14, 3, v14")
    a("s_lshl_b32 s12, s3, 8")
    a("v_add3_u32 v13, v13, v14, s12")
    a("v_add_u32 v14, %d, v13" % (64 * RS))
    ACC = 176
    TB = [16, 48]
    groups = [(st, ch) for st in range(4) for ch in range(2)]

    def issue(k):
        st, ch = groups[k]
        buf = 16 + 16 * (k % 4)
        base = 13 if st < 2 else 14
        for q in range(4):
            ct = 4 * ch + q
            off = CKV + (st & 1) * 32 * RS + ct * 32
            a("ds_read_b64_tr_b16 %s, %s offset:%d" % (vr(buf + 4 * q, 2), v(base), off))
            a("ds_read_b64_tr_b16 %s, %s offset:%d" % (vr(buf + 4 * q + 2, 2), v(base), off + 16 * RS))

    def compute(k):
        st, ch = groups[k]
        buf = 16 + 16 * (k % 4)
        for q in range(4):
            ct = 4 * ch + q
            a("v_mfma_f32_16x16x32_bf16 %s, %s, %s, %s" % (vr(ACC + 4 * ct, 4), vr(buf + 4 * q, 4), vr(PF + 4 * st, 4),
                                                          "0" if st == 0 else vr(ACC + 4 * ct, 4)))
    issue(0)
    for k in range(8):
        if k + 1 < 8:
            issue(k + 1)
            a("s_waitcnt lgkmcnt(8)")
        else:
            a("s_waitcnt lgkmcnt(0)")
        compute(k)
    a("s_lshl_b32 s12, s9, 15")
    a("s_lshl_b32 s13, s8, 10")
    a("s_add_u32 s12, s12, s13")
    a("s_lshl_b32 s13, s3, 8")
    a("s_add_u32 s12, s12, s13")
    a("s_add_u32 s12, s12, 0x%x" % PART)
    a("v_lshlrev_b32 v13, 15, v2")
    a("v_lshlrev_b32 v14, 4, v3")
    a("v_add3_u32 v13, v13, v14, s12")
    a.nop(4)
    for ct in range(8):
        a("v_cvt_pk_bf16_f32 %s, %s, %s" % (v(16 + 2 * ct), v(ACC + 4 * ct), v(ACC + 4 * ct + 1)))
        a("v_cvt_pk_bf16_f32 %s, %s, %s" % (v(16 + 2 * ct + 1), v(ACC + 4 * ct + 2), v(ACC + 4 * ct + 3)))
    for p in range(4):
        a("buffer_store_dwordx4 %s, v13, s[%d:%d], 0 offen offset:%d" % (vr(16 + 4 * p, 4), SO, SO + 3, 64 * p))
    a("s_cmp_lg_u32 s3, 0")
    a("s_cbranch_scc1 k2_end")
    for w in range(4):
        a("ds_read_b32 %s, v10 offset:%d" % (v(40 + w), LS + 64 * w))
    a("s_lshl_b32 s12, s9, 8")
    a("s_lshl_b32 s13, s8, 3")
    a("s_add_u32 s12, s12, s13")
    a("s_add_u32 s12, s12, 0x%x" % STATS)
    a("v_lshlrev_b32 v13, 8, v2")
    a("v_add_u32 v13, s12, v13")
    a("s_waitcnt lgkmcnt(0)")
    a("v_add_f32 v40, v40, v41")
    a("v_add_f32 v42, v42, v43")
    a("v_add_f32 v9, v40, v42")
    exec_lo16(a)
    a("buffer_store_dwordx2 v[8:9], v13, s[%d:%d], 0 offen" % (SO, SO + 3))
    a.label("k2_end")
    a("s_endpgm")
    return name, 208, QLD + 16 * RS


def gen_k3(a):
    name = "k3_kernel"
    kernel_begin(a, name)
    LAT = 0
    RED = 1280
    CTX = RED + 16384
    HA = CTX + 1280
    prologue(a, 312, "k3_end")
    SO, SV, SW = 44, 48, 52
    srd(a, SO, P_WS, WS_USED)
    a("s_cmp_ge_u32 s2, 256")
    a("s_cbranch_scc1 k3_ffn")
    a("s_and_b32 s4, s2, 7")
    a("s_lshr_b32 s5, s2, 3")
    a("s_lshr_b32 s6, s5, 3")
    a("s_lshl_b32 s4, s4, 2")
    a("s_add_u32 s6, s6, s4")
    a("s_lshr_b32 s7, s5, 1")
    a("s_and_b32 s7, s7, 3")
    a("s_and_b32 s8, s5, 1")
    srd(a, SV, P_WUV, 4194304)
    srd(a, SW, P_WO, 4194304)
    a("s_mov_b32 s13, 4096")
    ST = 16
    a("s_lshl_b32 s9, s3, 5")
    a("s_add_u32 s9, s9, s6")
    a("s_lshl_b32 s10, s9, 8")
    a("s_add_u32 s10, s10, 0x%x" % STATS)
    a("v_lshlrev_b32 v4, 6, v3")
    a("v_add_u32 v4, s10, v4")
    for i in range(4):
        a("buffer_load_dwordx4 %s, v4, s[%d:%d], 0 offen offset:%d" % (vr(ST + 4 * i, 4), SO, SO + 3, 16 * i))
    LP = 32
    a("s_lshl_b32 s10, s9, 15")
    a("s_lshl_b32 s11, s7, 8")
    a("s_add_u32 s10, s10, s11")
    a("s_add_u32 s10, s10, 0x%x" % PART)
    a("v_lshlrev_b32 v4, 13, v3")
    a("v_lshlrev_b32 v5, 4, v2")
    a("v_add3_u32 v4, v4, v5, s10")
    for i in range(8):
        a("buffer_load_dwordx4 %s, v4, s[%d:%d], %s offen offset:%d" % (vr(LP + 4 * i, 4), SO, SO + 3,
                                                                       "0" if i < 4 else "s13", (i & 3) * 1024))
    LV = 64
    a("s_lshl_b32 s10, s7, 20")
    a("s_lshl_b32 s11, s3, 18")
    a("s_add_u32 s10, s10, s11")
    a("s_lshl_b32 s11, s6, 8")
    a("s_add_u32 s10, s10, s11")
    a("v_lshlrev_b32 v4, 15, v3")
    a("v_add3_u32 v4, v4, v5, s10")
    for i in range(8):
        a("s_mov_b32 s12, 0x%x" % ((16 * (i >> 2) + (i & 3)) * 8192))
        a("buffer_load_dwordx4 %s, v4, s[%d:%d], s12 offen" % (vr(LV + 4 * i, 4), SV, SV + 3))
    LO = 96
    a("s_lshl_b32 s10, s6, 17")
    a("s_lshl_b32 s11, s3, 15")
    a("s_add_u32 s10, s10, s11")
    a("s_lshl_b32 s11, s8, 9")
    a("s_add_u32 s10, s10, s11")
    a("v_lshlrev_b32 v4, 13, v3")
    a("v_add3_u32 v4, v4, v5, s10")
    for cb in range(2):
        for i in range(8):
            a("buffer_load_dwordx4 %s, v4, s[%d:%d], %s offen offset:%d" % (
                vr(LO + 32 * cb + 4 * i, 4), SW, SW + 3, "0" if i < 4 else "s13", (i & 3) * 1024 + cb * 256))
    a("s_waitcnt vmcnt(32)")
    a("v_max3_f32 v6, v16, v18, v20")
    a("v_max3_f32 v6, v6, v22, v24")
    a("v_max3_f32 v6, v6, v26, v28")
    a("v_max_f32 v6, v6, v30")
    red_g(a, "v_max_f32", 6, 7)
    for i in range(8):
        a("v_sub_f32 %s, %s, v6" % (v(ST + 2 * i), v(ST + 2 * i)))
    for i in range(8):
        a("v_exp_f32 %s, %s" % (v(ST + 2 * i), v(ST + 2 * i)))
    a.nop(1)
    a("v_mul_f32 v7, v16, v17")
    for i in range(1, 8):
        a("v_fma_f32 v7, %s, %s, v7" % (v(ST + 2 * i), v(ST + 2 * i + 1)))
    red_g(a, "v_add_f32", 7, 8)
    a("v_rcp_f32 v7, v7")
    a.nop(1)
    for i in range(8):
        a("v_mul_f32 %s, %s, v7" % (v(ST + 2 * i), v(ST + 2 * i)))
    AW = 8
    for p in range(4):
        a("v_cvt_pk_bf16_f32 %s, %s, %s" % (v(AW + p), v(ST + 4 * p), v(ST + 4 * p + 2)))
    ACC = 192
    FX = 160
    a("s_waitcnt vmcnt(24)")
    unit8(a, LP, FX, AW, ACC, True)
    a.nop(8)
    for p in range(4):
        a("v_cvt_pk_bf16_f32 %s, %s, %s" % (v(16 + p), v(ACC + 8 * p), v(ACC + 8 * p + 4)))
    a("s_mul_i32 s10, s3, 320")
    a("v_add_u32 v4, s10, v5")
    exec_lo16(a)
    a("ds_write_b128 v4, v[16:19] offset:%d" % LAT)
    exec_all(a)
    a("s_waitcnt lgkmcnt(0)")
    a("s_barrier")
    a("v_and_b32 v6, 3, v1")
    a("v_mul_u32_u24 v6, 320, v6")
    a("v_lshl_add_u32 v6, v3, 4, v6")
    a("s_lshl_b32 s10, s3, 6")
    a("v_add_u32 v6, s10, v6")
    a("ds_read_b128 v[8:11], v6 offset:%d" % LAT)
    a("s_waitcnt vmcnt(16) lgkmcnt(0)")
    unit8(a, LV, FX, 8, ACC, True)
    a.nop(8)
    a("s_lshl_b32 s10, s3, 12")
    a("v_add_u32 v4, s10, v5")
    exec_lo16(a)
    for t in range(8):
        a("ds_write_b128 v4, %s offset:%d" % (vr(ACC + 4 * t, 4), RED + 256 * t))
    exec_all(a)
    a("s_waitcnt lgkmcnt(0)")
    a("s_barrier")
    a("s_cmp_ge_u32 s3, 2")
    a("s_cbranch_scc1 k3_sumdone")
    a("v_lshlrev_b32 v7, 4, v0")
    for w in range(4):
        a("ds_read_b128 %s, v7 offset:%d" % (vr(16 + 4 * w, 4), RED + 4096 * w))
    a("v_lshrrev_b32 v12, 4, v0")
    a("v_lshlrev_b32 v13, 4, v2")
    a("v_lshl_add_u32 v12, v12, 1, v13")
    a("s_waitcnt lgkmcnt(0)")
    for b in range(4):
        a("v_add_f32 %s, %s, %s" % (v(16 + b), v(16 + b), v(20 + b)))
        a("v_add_f32 %s, %s, %s" % (v(24 + b), v(24 + b), v(28 + b)))
    for b in range(4):
        a("v_add_f32 %s, %s, %s" % (v(16 + b), v(16 + b), v(24 + b)))
    a("v_cvt_pk_bf16_f32 v20, v16, v17")
    a("v_cvt_pk_bf16_f32 v21, v18, v19")
    a("ds_write_b16 v12, v20 offset:%d" % (CTX))
    a("ds_write_b16_d16_hi v12, v20 offset:%d" % (CTX + 320))
    a("ds_write_b16 v12, v21 offset:%d" % (CTX + 640))
    a("ds_write_b16_d16_hi v12, v21 offset:%d" % (CTX + 960))
    a("s_waitcnt lgkmcnt(0)")
    a.label("k3_sumdone")
    a("s_barrier")
    a("ds_read_b128 v[8:11], v6 offset:%d" % CTX)
    a("s_waitcnt vmcnt(8) lgkmcnt(0)")
    unit8(a, LO, FX, 8, ACC, True)
    a("s_waitcnt vmcnt(0)")
    unit8(a, LO + 32, LO, 8, ACC + 32, True)
    a.nop(8)
    exec_lo16(a)
    for cb in range(2):
        for t in range(8):
            a("ds_write_b128 v4, %s offset:%d" % (vr(ACC + 32 * cb + 4 * t, 4), RED + 2048 * cb + 256 * t))
    exec_all(a)
    a("s_waitcnt lgkmcnt(0)")
    a("s_barrier")
    a("v_lshlrev_b32 v7, 4, v0")
    for w in range(4):
        a("ds_read_b128 %s, v7 offset:%d" % (vr(16 + 4 * w, 4), RED + 4096 * w))
    a("s_lshl_b32 s10, s6, 2")
    a("s_add_u32 s10, s10, s7")
    a("s_lshl_b32 s10, s10, 13")
    a("s_lshl_b32 s11, s8, 12")
    a("s_add_u32 s10, s10, s11")
    a("s_add_u32 s10, s10, 0x%x" % SPART)
    a("v_add_u32 v12, s10, v7")
    a("s_waitcnt lgkmcnt(0)")
    for b in range(4):
        a("v_add_f32 %s, %s, %s" % (v(16 + b), v(16 + b), v(20 + b)))
        a("v_add_f32 %s, %s, %s" % (v(24 + b), v(24 + b), v(28 + b)))
    for b in range(4):
        a("v_add_f32 %s, %s, %s" % (v(16 + b), v(16 + b), v(24 + b)))
    a("buffer_store_dwordx4 v[16:19], v12, s[%d:%d], 0 offen" % (SO, SO + 3))
    a("s_endpgm")
    a.label("k3_ffn")
    a("s_sub_u32 s4, s2, 256")
    srd(a, SW, P_WD, 1792 * 1024)
    a("s_mov_b32 s13, 4096")
    GL = 16
    a("v_and_b32 v4, 31, v1")
    a("v_lshrrev_b32 v5, 5, v1")
    a("v_mul_u32_u24 v5, %d, v5" % (8 * 1792))
    a("s_lshl_b32 s10, s4, 5")
    a("v_add3_u32 v5, v5, v4, s10")
    a("v_lshlrev_b32 v5, 4, v5")
    a("v_add_u32 v5, 0x%x, v5" % GU)
    for kk in range(4):
        for mat in range(2):
            a("s_mov_b32 s12, 0x%x" % ((kk * 2 + mat) * 1792 * 16))
            a("buffer_load_dwordx4 %s, v5, s[%d:%d], s12 offen" % (vr(GL + 8 * kk + 4 * mat, 4), SO, SO + 3))
    LD = 64
    a("s_lshl_b32 s10, s4, 15")
    a("s_lshl_b32 s11, s3, 8")
    a("s_add_u32 s10, s10, s11")
    a("v_lshlrev_b32 v6, 13, v3")
    a("v_lshlrev_b32 v7, 4, v2")
    a("v_add3_u32 v6, v6, v7, s10")
    for i in range(8):
        a("buffer_load_dwordx4 %s, v6, s[%d:%d], %s offen offset:%d" % (vr(LD + 4 * i, 4), SW, SW + 3,
                                                                       "0" if i < 4 else "s13", (i & 3) * 1024))
    a("s_waitcnt vmcnt(8)")
    for q in range(8):
        a("v_add_f32 %s, %s, %s" % (v(GL + q), v(GL + q), v(GL + 8 + q)))
        a("v_add_f32 %s, %s, %s" % (v(GL + 16 + q), v(GL + 16 + q), v(GL + 24 + q)))
    for q in range(8):
        a("v_add_f32 %s, %s, %s" % (v(GL + q), v(GL + q), v(GL + 16 + q)))
    for q in range(8):
        a("v_mov_b32 %s, %s" % (v(GL + 8 + q), v(GL + q)))
    a.nop(2)
    for q in range(8):
        a("v_permlane32_swap_b32 %s, %s" % (v(GL + q), v(GL + 8 + q)))
    a.nop(1)
    for q in range(8):
        a("v_add_f32 %s, %s, %s" % (v(GL + q), v(GL + q), v(GL + 8 + q)))
    for p in range(4):
        a("v_cvt_pk_bf16_f32 %s, %s, %s" % (v(24 + p), v(GL + 2 * p), v(GL + 2 * p + 1)))
    for p in range(4):
        a("v_lshlrev_b32 %s, 16, %s" % (v(GL + 2 * p), v(24 + p)))
        a("v_and_b32 %s, 0xffff0000, %s" % (v(GL + 2 * p + 1), v(24 + p)))
    for b in range(4):
        silu_inplace(a, GL + b, 28 + b)
    a("v_cvt_pk_bf16_f32 v24, v16, v17")
    a("v_cvt_pk_bf16_f32 v25, v18, v19")
    a("v_lshlrev_b32 v16, 16, v24")
    a("v_and_b32 v17, 0xffff0000, v24")
    a("v_lshlrev_b32 v18, 16, v25")
    a("v_and_b32 v19, 0xffff0000, v25")
    for b in range(4):
        a("v_mul_f32 %s, %s, %s" % (v(16 + b), v(16 + b), v(20 + b)))
    a("v_cvt_pk_bf16_f32 v24, v16, v17")
    a("v_cvt_pk_bf16_f32 v25, v18, v19")
    a("s_mul_i32 s10, s3, 320")
    a("v_lshlrev_b32 v8, 1, v4")
    a("v_add_u32 v8, s10, v8")
    a("ds_write_b16 v8, v24 offset:%d" % (HA))
    a("ds_write_b16_d16_hi v8, v24 offset:%d" % (HA + 80))
    a("ds_write_b16 v8, v25 offset:%d" % (HA + 160))
    a("ds_write_b16_d16_hi v8, v25 offset:%d" % (HA + 240))
    a("v_and_b32 v9, 3, v1")
    a("v_mul_u32_u24 v9, 80, v9")
    a("v_lshl_add_u32 v9, v3, 4, v9")
    a("v_add_u32 v9, s10, v9")
    a("s_waitcnt lgkmcnt(0)")
    a("ds_read_b128 v[8:11], v9 offset:%d" % HA)
    a("s_waitcnt vmcnt(0) lgkmcnt(0)")
    unit8(a, LD, 96, 8, 128, True)
    a("s_lshl_b32 s10, s4, 13")
    a("s_lshl_b32 s11, s3, 11")
    a("s_add_u32 s10, s10, s11")
    a("s_add_u32 s10, s10, 0x%x" % YPART)
    a("v_add_u32 v4, s10, v7")
    a.nop(8)
    exec_lo16(a)
    for t in range(8):
        a("buffer_store_dwordx4 %s, v4, s[%d:%d], 0 offen offset:%d" % (vr(128 + 4 * t, 4), SO, SO + 3, 256 * t))
    a.label("k3_end")
    a("s_endpgm")
    return name, 256, HA + 1280


def gen_k4(a):
    name = "k4_kernel"
    kernel_begin(a, name)
    prologue(a, 64, "k4_end")
    SS, SY, SX, SOUT = 44, 48, 52, 56
    srd(a, SS, P_WS, 128 * 8192, off=SPART)
    srd(a, SY, P_WS, 56 * 8192, off=YPART)
    srd(a, SX, P_X, 4096)
    srd(a, SOUT, P_OUT, 4096)
    a("s_mov_b32 s13, 8192")
    a("s_mov_b32 s12, 16384")
    a("s_mov_b32 s11, 24576")
    a("v_and_b32 v4, 7, v0")
    a("v_lshrrev_b32 v5, 3, v0")
    a("s_lshl_b32 s10, s2, 7")
    a("v_lshlrev_b32 v6, 4, v4")
    a("v_add_u32 v6, s10, v6")
    a("v_lshlrev_b32 v7, 15, v5")
    a("v_add_u32 v7, v7, v6")
    a("buffer_load_dwordx4 v[16:19], v7, s[%d:%d], 0 offen" % (SS, SS + 3))
    a("buffer_load_dwordx4 v[20:23], v7, s[%d:%d], s13 offen" % (SS, SS + 3))
    a("buffer_load_dwordx4 v[24:27], v7, s[%d:%d], s12 offen" % (SS, SS + 3))
    a("buffer_load_dwordx4 v[28:31], v7, s[%d:%d], s11 offen" % (SS, SS + 3))
    a("v_lshlrev_b32 v7, 14, v5")
    a("v_add_u32 v7, v7, v6")
    a("buffer_load_dwordx4 v[32:35], v7, s[%d:%d], 0 offen" % (SY, SY + 3))
    a("buffer_load_dwordx4 v[36:39], v7, s[%d:%d], s13 offen" % (SY, SY + 3))
    a("v_lshrrev_b32 v8, 2, v0")
    a("s_lshl_b32 s10, s2, 3")
    a("v_add_u32 v8, s10, v8")
    a("v_and_b32 v9, 15, v8")
    a("v_lshrrev_b32 v10, 4, v8")
    a("v_and_b32 v10, 7, v10")
    a("v_lshrrev_b32 v11, 7, v8")
    a("v_lshlrev_b32 v11, 7, v11")
    a("v_lshl_add_u32 v11, v9, 3, v11")
    a("v_add_u32 v11, v11, v10")
    a("v_and_b32 v12, 3, v0")
    a("v_lshl_add_u32 v11, v12, 9, v11")
    a("v_lshlrev_b32 v11, 1, v11")
    a("buffer_load_ushort v13, v11, s[%d:%d], 0 offen" % (SX, SX + 3))
    a("s_waitcnt vmcnt(1)")
    for q in range(4):
        a("v_add_f32 %s, %s, %s" % (v(16 + q), v(16 + q), v(20 + q)))
        a("v_add_f32 %s, %s, %s" % (v(24 + q), v(24 + q), v(28 + q)))
        a("v_add_f32 %s, %s, %s" % (v(20 + q), v(32 + q), v(36 + q)))
    for q in range(4):
        a("v_add_f32 %s, %s, %s" % (v(16 + q), v(16 + q), v(24 + q)))
    a.nop(2)
    for q in range(8):
        a("v_add_f32_dpp %s, %s, %s row_ror:8 row_mask:0xf bank_mask:0xf" % (v(24 + q), v(16 + q), v(16 + q)))
    for q in range(8):
        a("v_mov_b32 %s, %s" % (v(16 + q), v(24 + q)))
    a.nop(2)
    for q in range(8):
        a("v_permlane16_swap_b32 %s, %s" % (v(16 + q), v(24 + q)))
    a.nop(1)
    for q in range(8):
        a("v_add_f32 %s, %s, %s" % (v(16 + q), v(16 + q), v(24 + q)))
    for q in range(8):
        a("v_mov_b32 %s, %s" % (v(24 + q), v(16 + q)))
    a.nop(2)
    for q in range(8):
        a("v_permlane32_swap_b32 %s, %s" % (v(16 + q), v(24 + q)))
    a.nop(1)
    for q in range(8):
        a("v_add_f32 %s, %s, %s" % (v(16 + q), v(16 + q), v(24 + q)))
    a("s_lshl_b32 s10, s3, 8")
    a("v_lshlrev_b32 v14, 5, v4")
    a("v_add_u32 v14, s10, v14")
    a("s_mov_b64 exec, 0xff")
    a("ds_write_b128 v14, v[16:19]")
    a("ds_write_b128 v14, v[20:23] offset:16")
    exec_all(a)
    a("s_waitcnt lgkmcnt(0)")
    a("s_barrier")
    a("s_cmp_lg_u32 s3, 0")
    a("s_cbranch_scc1 k4_end")
    a("s_mov_b32 exec_lo, -1")
    a("s_mov_b32 exec_hi, 0")
    a("v_lshrrev_b32 v14, 2, v0")
    a("v_lshlrev_b32 v14, 5, v14")
    a("v_lshl_add_u32 v14, v12, 2, v14")
    for w in range(4):
        a("ds_read_b32 %s, v14 offset:%d" % (v(16 + w), 256 * w))
        a("ds_read_b32 %s, v14 offset:%d" % (v(20 + w), 256 * w + 16))
    a("s_waitcnt vmcnt(0) lgkmcnt(0)")
    a("v_add_f32 v16, v16, v17")
    a("v_add_f32 v18, v18, v19")
    a("v_add_f32 v20, v20, v21")
    a("v_add_f32 v22, v22, v23")
    a("v_add_f32 v16, v16, v18")
    a("v_add_f32 v20, v20, v22")
    a("v_cvt_pk_bf16_f32 v24, v16, v20")
    a("v_lshlrev_b32 v16, 16, v24")
    a("v_and_b32 v20, 0xffff0000, v24")
    silu_inplace(a, 20, 25)
    a("v_cvt_pk_bf16_f32 v24, v20, v20")
    a("v_lshlrev_b32 v20, 16, v24")
    a("v_mul_f32 v16, v16, v20")
    a("v_cvt_pk_bf16_f32 v24, v16, v16")
    a("v_lshlrev_b32 v16, 16, v24")
    a("v_lshlrev_b32 v13, 16, v13")
    a("v_add_f32 v16, v16, v13")
    a("v_cvt_pk_bf16_f32 v24, v16, v16")
    a("buffer_store_short v24, v11, s[%d:%d], 0 offen" % (SOUT, SOUT + 3))
    a.label("k4_end")
    a("s_endpgm")
    return name, 40, 1024


def main():
    hdr = []
    a = Asm()
    a.raw('.amdgcn_target "amdgcn-amd-amdhsa--gfx950"')
    a.raw(".text")
    n1, v1 = gen_k1(a)
    n2, v2, l2 = gen_k2(a)
    n3, v3, l3 = gen_k3(a)
    n4, v4, l4 = gen_k4(a)
    a.raw('.section .rodata,"a"')
    for n, nv in ((n1, v1), (n2, v2), (n3, v3), (n4, v4)):
        a.raw(".p2align 6")
        kernel_desc(a, n, nv)
    hdr.append("; @launch kernel=%s grid=(368,1,1) block=(256,1,1) lds=14336" % n1)
    hdr.append("; @launch kernel=%s grid=(256,1,1) block=(256,1,1) lds=%d" % (n2, l2))
    hdr.append("; @launch kernel=%s grid=(312,1,1) block=(256,1,1) lds=%d" % (n3, l3))
    hdr.append("; @launch kernel=%s grid=(64,1,1) block=(256,1,1) lds=%d" % (n4, l4))
    out = "\n".join(hdr + a.L) + "\n"
    path = sys.argv[1] if len(sys.argv) > 1 else "cdna_kernels/%s.s" % NAME
    open(path, "w").write(out)


if __name__ == "__main__":
    main()
```

```python
import sys

NAME = "recurrent_scan__compressed_kv_cla__swiglu_ffn__decode"

QABS = 0x000000
GU = 0x040000
STATS = 0x0C0000
PART = 0x100000
SPART = 0x600000
YPART = 0x700000
WS_USED = 0x800000

SRD3 = 0x00020000


def v(n):
    return "v%d" % n


def vr(n, c):
    return "v[%d:%d]" % (n, n + c - 1)


def s(n):
    return "s%d" % n


def sr(n, c):
    return "s[%d:%d]" % (n, n + c - 1)


class Asm:
    def __init__(self):
        self.L = []

    def __call__(self, t):
        self.L.append("    " + t)

    def label(self, t):
        self.L.append(t + ":")

    def c(self, t):
        self.L.append("    ; " + t)

    def raw(self, t):
        self.L.append(t)

    def nop(self, n):
        while n > 0:
            k = min(n, 16)
            self("s_nop %d" % (k - 1))
            n -= k


P_X, P_CKV, P_WQ, P_WUK, P_WUV, P_WO, P_BX, P_WG, P_WU, P_WD, P_OUT, P_DBG, P_WS = [16 + 2 * i for i in range(13)]
S_SELLO, S_SELHI = 14, 15
S_WV = 3
import os
LW = int(os.environ.get('LW', '1'))


def kernel_begin(a, name):
    a.raw(".globl %s" % name)
    a.raw(".p2align 8")
    a.raw(".type %s,@function" % name)
    a.label(name)


def kernel_desc(a, name, nvgpr, nsgpr=102):
    nv = (nvgpr + 3) // 4 * 4
    a.raw(".amdhsa_kernel %s" % name)
    a.raw("  .amdhsa_next_free_vgpr %d" % nv)
    a.raw("  .amdhsa_next_free_sgpr %d" % nsgpr)
    a.raw("  .amdhsa_accum_offset %d" % nv)
    a.raw("  .amdhsa_group_segment_fixed_size 0")
    a.raw("  .amdhsa_kernarg_size 104")
    a.raw("  .amdhsa_user_sgpr_count 2")
    a.raw("  .amdhsa_user_sgpr_kernarg_segment_ptr 1")
    a.raw("  .amdhsa_system_sgpr_workgroup_id_x 1")
    a.raw(".end_amdhsa_kernel")


def prologue(a, nwg, endlabel):
    a("s_cmp_ge_u32 s2, %d" % nwg)
    a("s_cbranch_scc1 %s" % endlabel)
    a("s_load_dwordx16 s[16:31], s[0:1], 0")
    a("s_load_dwordx8 s[32:39], s[0:1], 64")
    a("s_load_dwordx2 s[40:41], s[0:1], 96")
    a("v_lshrrev_b32 v3, 6, v0")
    a("v_and_b32 v1, 63, v0")
    a("v_readfirstlane_b32 s3, v3")
    a("v_and_b32 v2, 15, v1")
    a("v_lshrrev_b32 v3, 4, v1")
    a("s_mov_b32 s%d, 0x05040100" % S_SELLO)
    a("s_mov_b32 s%d, 0x07060302" % S_SELHI)
    a("s_waitcnt lgkmcnt(0)")


def srd(a, d, p, size, off=None, off_sgpr=None):
    if off_sgpr is not None:
        a("s_add_u32 s%d, s%d, s%d" % (d, p, off_sgpr))
        a("s_addc_u32 s%d, s%d, 0" % (d + 1, p + 1))
        a("s_and_b32 s%d, s%d, 0xffff" % (d + 1, d + 1))
    elif off:
        a("s_add_u32 s%d, s%d, 0x%x" % (d, p, off))
        a("s_addc_u32 s%d, s%d, 0" % (d + 1, p + 1))
        a("s_and_b32 s%d, s%d, 0xffff" % (d + 1, d + 1))
    else:
        a("s_mov_b32 s%d, s%d" % (d, p))
        a("s_and_b32 s%d, s%d, 0xffff" % (d + 1, p + 1))
    a("s_mov_b32 s%d, 0x%x" % (d + 2, size))
    a("s_mov_b32 s%d, 0x%x" % (d + 3, SRD3))


def red_g(a, op, x, t):
    a("v_mov_b32 %s, %s" % (v(t), v(x)))
    a.nop(2)
    a("v_permlane16_swap_b32 %s, %s" % (v(x), v(t)))
    a.nop(1)
    a("%s %s, %s, %s" % (op, v(x), v(x), v(t)))
    a("v_mov_b32 %s, %s" % (v(t), v(x)))
    a.nop(2)
    a("v_permlane32_swap_b32 %s, %s" % (v(x), v(t)))
    a.nop(1)
    a("%s %s, %s, %s" % (op, v(x), v(x), v(t)))


def red_16(a, op, x, t):
    a.nop(2)
    a("%s_dpp %s, %s, %s quad_perm:[1,0,3,2] row_mask:0xf bank_mask:0xf" % (op, v(t), v(x), v(x)))
    a.nop(2)
    a("%s_dpp %s, %s, %s quad_perm:[2,3,0,1] row_mask:0xf bank_mask:0xf" % (op, v(x), v(t), v(t)))
    a.nop(2)
    a("%s_dpp %s, %s, %s row_half_mirror row_mask:0xf bank_mask:0xf" % (op, v(t), v(x), v(x)))
    a.nop(2)
    a("%s_dpp %s, %s, %s row_mirror row_mask:0xf bank_mask:0xf" % (op, v(x), v(t), v(t)))


def red_64(a, op, x, t):
    red_16(a, op, x, t)
    red_g(a, op, x, t)


def layernorm(a, vx, t, vaddr):
    f = t
    d = t + 8
    S, T, M, R, VB, MB, SQ, RC = [t + 16 + i for i in range(8)]
    for i in range(4):
        a("v_lshlrev_b32 %s, 16, %s" % (v(f + 2 * i), v(vx + i)))
        a("v_and_b32 %s, 0xffff0000, %s" % (v(f + 2 * i + 1), v(vx + i)))
    a("v_add_f32 %s, %s, %s" % (v(S), v(f), v(f + 1)))
    for i in range(2, 8):
        a("v_add_f32 %s, %s, %s" % (v(S), v(S), v(f + i)))
    red_64(a, "v_add_f32", S, T)
    a("v_mul_f32 %s, 0x3b000000, %s" % (v(M), v(S)))
    for i in range(8):
        a("v_sub_f32 %s, %s, %s" % (v(d + i), v(f + i), v(M)))
    a("v_mul_f32 %s, %s, %s" % (v(S), v(d), v(d)))
    for i in range(1, 8):
        a("v_fma_f32 %s, %s, %s, %s" % (v(S), v(d + i), v(d + i), v(S)))
    red_64(a, "v_add_f32", S, T)
    a("v_mul_f32 %s, 0x3b000000, %s" % (v(S), v(S)))
    a("v_cvt_pk_bf16_f32 %s, %s, %s" % (v(R), v(S), v(M)))
    a("v_lshlrev_b32 %s, 16, %s" % (v(VB), v(R)))
    a("v_and_b32 %s, 0xffff0000, %s" % (v(MB), v(R)))
    a("v_add_f32 %s, 0x3727c5ac, %s" % (v(VB), v(VB)))
    a("v_cvt_pk_bf16_f32 %s, %s, %s" % (v(R), v(VB), v(VB)))
    a("v_lshlrev_b32 %s, 16, %s" % (v(VB), v(R)))
    a("v_sqrt_f32 %s, %s" % (v(SQ), v(VB)))
    a.nop(1)
    a("v_cvt_pk_bf16_f32 %s, %s, %s" % (v(R), v(SQ), v(SQ)))
    a("v_lshlrev_b32 %s, 16, %s" % (v(SQ), v(R)))
    a("v_rcp_f32 %s, %s" % (v(RC), v(SQ)))
    for i in range(8):
        a("v_sub_f32 %s, %s, %s" % (v(d + i), v(f + i), v(MB)))
    for i in range(4):
        a("v_cvt_pk_bf16_f32 %s, %s, %s" % (v(f + i), v(d + 2 * i), v(d + 2 * i + 1)))
    for i in range(4):
        a("v_lshlrev_b32 %s, 16, %s" % (v(d + 2 * i), v(f + i)))
        a("v_and_b32 %s, 0xffff0000, %s" % (v(d + 2 * i + 1), v(f + i)))
    for i in range(8):
        a("v_mul_f32 %s, %s, %s" % (v(f + i), v(d + i), v(RC)))
    for i in range(8):
        a("v_fma_f32 %s, -%s, %s, %s" % (v(d + i), v(f + i), v(SQ), v(d + i)))
    for i in range(8):
        a("v_fma_f32 %s, %s, %s, %s" % (v(f + i), v(d + i), v(RC), v(f + i)))
    for i in range(4):
        a("v_cvt_pk_bf16_f32 %s, %s, %s" % (v(d + i), v(f + 2 * i), v(f + 2 * i + 1)))
    a("ds_write_b128 %s, %s" % (v(vaddr), vr(d, 4)))


def unit8(a, L, F, A, acc, first):
    def perms(t):
        c, e = t >> 1, t & 1
        for p in range(4):
            a("v_perm_b32 %s, %s, %s, s%d" % (v(F + 4 * t + p), v(L + 4 * (2 * p + 1) + c), v(L + 4 * (2 * p) + c),
                                              S_SELHI if e else S_SELLO))

    def mf(t):
        a("v_mfma_f32_16x16x32_bf16 %s, %s, %s, %s" % (vr(acc + 4 * t, 4), vr(A, 4), vr(F + 4 * t, 4),
                                                       "0" if first else vr(acc + 4 * t, 4)))
    perms(0)
    for t in range(1, 8):
        perms(t)
        mf(t - 1)
    a.nop(2)
    mf(7)


def unit4(a, L, F, A, acc, first):
    def perms(t):
        c, e = t >> 1, t & 1
        for p in range(4):
            a("v_perm_b32 %s, %s, %s, s%d" % (v(F + 4 * t + p), v(L + 2 * (2 * p + 1) + c), v(L + 2 * (2 * p) + c),
                                              S_SELHI if e else S_SELLO))

    def mf(t):
        a("v_mfma_f32_16x16x32_bf16 %s, %s, %s, %s" % (vr(acc + 4 * t, 4), vr(A, 4), vr(F + 4 * t, 4),
                                                       "0" if first else vr(acc + 4 * t, 4)))
    perms(0)
    for t in range(1, 4):
        perms(t)
        mf(t - 1)
    a.nop(2)
    mf(3)


def exec_lo16(a):
    a("s_mov_b64 exec, 0xffff")


def exec_all(a):
    a("s_mov_b64 exec, -1")


LOG2E = 1.4426950408889634


def f32hex(x):
    import struct
    return "0x%08x" % struct.unpack("<I", struct.pack("<f", x))[0]


def silu_inplace(a, x, t):
    a("v_mul_f32 %s, %s, %s" % (v(t), f32hex(-LOG2E), v(x)))
    a("v_exp_f32 %s, %s" % (v(t), v(t)))
    a.nop(1)
    a("v_add_f32 %s, 1.0, %s" % (v(t), v(t)))
    a("v_rcp_f32 %s, %s" % (v(t), v(t)))
    a.nop(1)
    a("v_mul_f32 %s, %s, %s" % (v(x), v(x), v(t)))


def gen_k1(a):
    name = "k1_kernel"
    kernel_begin(a, name)
    XN, RED, QL = 0, 4352, 12544
    prologue(a, 368, "k1_end")
    SX, SW, SU, SO = 44, 48, 52, 56
    srd(a, SX, P_X, 4096)
    srd(a, SO, P_WS, WS_USED)
    a("s_lshl_b32 s4, s3, 10")
    a("v_lshlrev_b32 v4, 4, v1")
    a("v_add_u32 v5, s4, v4")
    a("buffer_load_dwordx4 v[8:11], v5, s[%d:%d], 0 offen" % (SX, SX + 3))
    a("s_mul_i32 s4, s3, 1088")
    a("v_add_u32 v6, s4, v4")
    a("s_cmp_ge_u32 s2, 256")
    a("s_cbranch_scc1 k1_ffn")
    a("s_and_b32 s4, s2, 7")
    a("s_lshr_b32 s5, s2, 3")
    a("s_lshr_b32 s6, s5, 3")
    a("s_lshl_b32 s4, s4, 2")
    a("s_add_u32 s6, s6, s4")
    a("s_and_b32 s7, s5, 3")
    a("s_bfe_u32 s13, s5, 0x10002")
    srd(a, SW, P_WQ, 4194304)
    srd(a, SU, P_WUK, 4194304)
    a("s_lshl_b32 s8, s3, 20")
    a("s_lshl_b32 s9, s6, 8")
    a("s_lshl_b32 s10, s13, 7")
    a("s_add_u32 s9, s9, s10")
    a("s_add_u32 s8, s8, s9")
    a("v_lshrrev_b32 v12, 3, v2")
    a("v_lshl_add_u32 v7, v12, 2, v3")
    a("v_lshlrev_b32 v7, 16, v7")
    a("v_and_b32 v15, 7, v2")
    a("v_lshlrev_b32 v15, 4, v15")
    a("v_add3_u32 v7, v7, v15, s8")
    LQ = 16
    for u in range(2):
        for i in range(8):
            a("s_mov_b32 s10, 0x%x" % ((64 * u + i) * 8192))
            a("buffer_load_dwordx4 %s, v7, s[%d:%d], s10 offen" % (vr(LQ + 32 * u + 4 * i, 4), SW, SW + 3))
    LU = 144
    a("s_lshl_b32 s8, s7, 7")
    a("s_lshl_b32 s10, s3, 5")
    a("s_add_u32 s8, s8, s10")
    a("v_add_u32 v14, s8, v2")
    a("v_lshlrev_b32 v14, 13, v14")
    a("v_lshlrev_b32 v13, 4, v3")
    a("v_add3_u32 v14, v14, v13, s9")
    a("s_mov_b32 s10, 0x20000")
    for T in range(2):
        for st in range(2):
            a("buffer_load_dwordx4 %s, v14, s[%d:%d], %s offen offset:%d" % (vr(LU + 8 * T + 4 * st, 4), SU, SU + 3,
                                                                          "0" if T == 0 else "s10", 64 * st))
    a("s_lshl_b32 s10, s3, 11")
    a("v_lshl_add_u32 v12, v12, 10, v15")
    a("v_add_u32 v12, s10, v12")
    a("s_waitcnt vmcnt(20)")
    layernorm(a, 8, 208, 6)
    a("s_waitcnt lgkmcnt(0)")
    a("s_barrier")
    AF = 160
    a("v_and_b32 v13, 3, v1")
    a("v_mul_u32_u24 v13, 1088, v13")
    a("v_bfe_u32 v14, v2, 2, 1")
    a("v_lshlrev_b32 v14, 2, v14")
    a("v_add_u32 v14, v14, v3")
    a("v_lshlrev_b32 v14, 4, v14")
    a("s_lshl_b32 s10, s3, 8")
    a("v_add3_u32 v13, v13, v14, s10")
    for u in range(2):
        a("ds_read_b128 %s, v13 offset:%d" % (vr(AF + 4 * u, 4), XN + 128 * u))
    ACC = 176
    FX = 208
    a("s_waitcnt lgkmcnt(0)")
    for u in range(2):
        a("s_waitcnt vmcnt(%d)" % ((1 - u) * 8 + 4))
        unit8(a, LQ + 32 * u, FX if u == 0 else LQ + 32 * (u - 1), AF + 4 * u, ACC, u == 0)
    a.nop(8)
    a("s_mov_b32 exec_lo, 0xff0000ff")
    a("s_mov_b32 exec_hi, 0")
    for t in range(8):
        a("ds_write_b128 v12, %s offset:%d" % (vr(ACC + 4 * t, 4), RED + 128 * t))
    exec_all(a)
    a("s_waitcnt lgkmcnt(0)")
    a("s_barrier")
    a("s_cmp_ge_u32 s3, 1")
    a("s_cbranch_scc1 k1_sumdone")
    a("v_lshlrev_b32 v13, 4, v0")
    for w in range(8):
        a("ds_read_b128 %s, v13 offset:%d" % (vr(16 + 4 * w, 4), RED + 1024 * w))
    a("v_lshrrev_b32 v14, 3, v0")
    a("v_lshl_add_u32 v14, v14, 1, v15")
    a("s_waitcnt lgkmcnt(0)")
    for b in range(4):
        for w in range(4):
            a("v_add_f32 %s, %s, %s" % (v(16 + 8 * w + b), v(16 + 8 * w + b), v(20 + 8 * w + b)))
    for b in range(4):
        a("v_add_f32 %s, %s, %s" % (v(16 + b), v(16 + b), v(24 + b)))
        a("v_add_f32 %s, %s, %s" % (v(32 + b), v(32 + b), v(40 + b)))
    for b in range(4):
        a("v_add_f32 %s, %s, %s" % (v(16 + b), v(16 + b), v(32 + b)))
    a("v_cvt_pk_bf16_f32 v20, v16, v17")
    a("v_cvt_pk_bf16_f32 v21, v18, v19")
    a("ds_write_b16 v14, v20 offset:%d" % (QL))
    a("ds_write_b16_d16_hi v14, v20 offset:%d" % (QL + 320))
    a("ds_write_b16 v14, v21 offset:%d" % (QL + 640))
    a("ds_write_b16_d16_hi v14, v21 offset:%d" % (QL + 960))
    a("s_waitcnt lgkmcnt(0)")
    a.label("k1_sumdone")
    a("s_barrier")
    a("v_and_b32 v13, 3, v1")
    a("v_mul_u32_u24 v13, 320, v13")
    a("v_lshl_add_u32 v13, v3, 4, v13")
    for st in range(2):
        a("ds_read_b128 %s, v13 offset:%d" % (vr(16 + 4 * st, 4), QL + 64 * st))
    a("s_waitcnt vmcnt(0) lgkmcnt(0)")
    for st in range(2):
        for T in range(2):
            a("v_mfma_f32_16x16x32_bf16 %s, %s, %s, %s" % (vr(32 + 4 * T, 4), vr(LU + 8 * T + 4 * st, 4), vr(16 + 4 * st, 4),
                                                          "0" if st == 0 else vr(32 + 4 * T, 4)))
    a("v_lshlrev_b32 v13, 15, v2")
    a("v_lshlrev_b32 v14, 3, v3")
    a("s_lshl_b32 s10, s6, 10")
    a("s_lshl_b32 s11, s8, 1")
    a("s_add_u32 s10, s10, s11")
    a("s_lshl_b32 s11, s13, 17")
    a("s_add_u32 s10, s10, s11")
    a("v_add3_u32 v13, v13, v14, s10")
    a("v_cmp_gt_u32 vcc, 4, v2")
    a.nop(4)
    sc = f32hex(LOG2E * (128 ** -0.5))
    for r in range(8):
        a("v_mul_f32 %s, %s, %s" % (v(32 + r), sc, v(32 + r)))
    for r in range(4):
        a("v_cvt_pk_bf16_f32 %s, %s, %s" % (v(40 + r), v(32 + 2 * r), v(33 + 2 * r)))
    a("s_and_saveexec_b64 s[12:13], vcc")
    for T in range(2):
        a("buffer_store_dwordx2 %s, v13, s[%d:%d], 0 offen offset:%d" % (vr(40 + 2 * T, 2), SO, SO + 3, QABS + 32 * T))
    a("s_endpgm")
    a.label("k1_ffn")
    a("s_sub_u32 s4, s2, 256")
    a("s_and_b32 s5, s4, 3")
    a("s_lshr_b32 s6, s4, 2")
    a("s_lshr_b32 s7, s3, 1")
    a("s_and_b32 s8, s3, 1")
    a("s_cmp_eq_u32 s7, 0")
    a("s_cselect_b32 s10, s%d, s%d" % (P_WG, P_WU))
    a("s_cselect_b32 s11, s%d, s%d" % (P_WG + 1, P_WU + 1))
    srd(a, SW, 10, 512 * 3584)
    a("s_lshl_b32 s9, s5, 1")
    a("s_add_u32 s9, s9, s8")
    a("s_mul_i32 s10, s9, %d" % (64 * 3584))
    a("s_lshl_b32 s11, s6, 7")
    a("s_add_u32 s10, s10, s11")
    a("v_mul_u32_u24 v7, %d, v3" % (8 * 3584))
    a("v_lshlrev_b32 v12, 3, v2")
    a("v_add3_u32 v7, v7, v12, s10")
    LF = 16
    for u in range(2):
        for i in range(8):
            a("s_mov_b32 s10, 0x%x" % ((32 * u + i) * 3584))
            a("buffer_load_dwordx2 %s, v7, s[%d:%d], s10 offen" % (vr(LF + 16 * u + 2 * i, 2), SW, SW + 3))
    a("s_waitcnt vmcnt(16)")
    layernorm(a, 8, 208, 6)
    a("s_waitcnt lgkmcnt(0)")
    a("s_barrier")
    a("v_and_b32 v13, 3, v1")
    a("v_mul_u32_u24 v13, 1088, v13")
    a("v_lshlrev_b32 v14, 4, v3")
    a("s_lshl_b32 s10, s9, 7")
    a("v_add3_u32 v13, v13, v14, s10")
    for u in range(2):
        a("ds_read_b128 %s, v13 offset:%d" % (vr(AF + 4 * u, 4), XN + 64 * u))
    a("s_waitcnt lgkmcnt(0)")
    for u in range(2):
        a("s_waitcnt vmcnt(%d)" % ((1 - u) * 8))
        unit4(a, LF + 16 * u, FX + 16 * u, AF + 4 * u, ACC, u == 0)
    a("s_lshl_b32 s10, s9, 1")
    a("s_add_u32 s10, s10, s7")
    a("s_mul_i32 s10, s10, %d" % (1792 * 16))
    a("s_lshl_b32 s11, s6, 10")
    a("s_add_u32 s10, s10, s11")
    a("s_add_u32 s10, s10, 0x%x" % GU)
    a("v_lshlrev_b32 v13, 6, v2")
    a("v_add_u32 v13, s10, v13")
    a.nop(8)
    exec_lo16(a)
    for t in range(4):
        a("buffer_store_dwordx4 %s, v13, s[%d:%d], 0 offen offset:%d" % (vr(ACC + 4 * t, 4), SO, SO + 3, 16 * t))
    a.label("k1_end")
    a("s_endpgm")
    return name, 240


def gen_k2(a):
    name = "k2_kernel"
    kernel_begin(a, name)
    RS = 1056
    PL = 0
    MX = PL + 4096
    LS = MX + 256
    CKV = 4608
    prologue(a, 256, "k2_end")
    SC, SO = 44, 48
    a("s_and_b32 s4, s2, 7")
    a("s_lshr_b32 s5, s2, 3")
    a("s_and_b32 s6, s5, 1")
    a("s_lshr_b32 s5, s5, 1")
    a("s_lshl_b32 s5, s5, 3")
    a("s_add_u32 s5, s5, s4")
    a("s_lshr_b32 s7, s5, 5")
    a("s_and_b32 s8, s5, 31")
    a("s_lshl_b32 s9, s5, 17")
    srd(a, SC, P_CKV, 131072, off_sgpr=9)
    srd(a, SO, P_WS, WS_USED)
    QF = 16
    QLD = 139776
    if LW:
        a("s_cmp_lt_u32 s3, 4")
        a("s_cbranch_scc1 k2_comp")
        a("s_and_b32 s3, s3, 3")
        a("v_lshlrev_b32 v5, 4, v1")
        a("s_mul_i32 s10, s3, %d" % (32 * RS))
        a("s_lshl_b32 s11, s3, 15")
        for i in range(32):
            a("s_add_u32 m0, s10, %d" % (CKV + i * RS))
            a("s_add_u32 s12, s11, %d" % (i * 1024))
            a("buffer_load_dwordx4 v5, s[%d:%d], s12 offen lds" % (SC, SC + 3))
        a("s_barrier")
        a("s_waitcnt vmcnt(16)")
        a("s_barrier")
        a("s_waitcnt vmcnt(0)")
        a("s_barrier")
        a("s_endpgm")
        a.label("k2_comp")
    a("s_lshl_b32 s9, s7, 5")
    a("s_lshl_b32 s10, s6, 4")
    a("s_add_u32 s9, s9, s10")
    a("s_lshl_b32 s10, s3, 2")
    a("s_add_u32 s10, s10, s9")
    a("s_lshl_b32 s10, s10, 10")
    a("v_lshlrev_b32 v4, 4, v1")
    a("v_add_u32 v4, s10, v4")
    a("s_mov_b32 s10, 0x20000")
    for i in range(4):
        a("buffer_load_dwordx4 %s, v4, s[%d:%d], 0 offen offset:%d" % (vr(144 + 4 * i, 4), SO, SO + 3, QABS + 1024 * i))
        a("buffer_load_dwordx4 %s, v4, s[%d:%d], s10 offen offset:%d" % (vr(160 + 4 * i, 4), SO, SO + 3, QABS + 1024 * i))
    a("v_lshlrev_b32 v5, 4, v1")
    a("s_mul_i32 s10, s3, %d" % (32 * RS))
    a("s_lshl_b32 s11, s3, 15")
    for i in range(0 if LW else 32):
        a("s_add_u32 m0, s10, %d" % (CKV + i * RS))
        a("s_add_u32 s12, s11, %d" % (i * 1024))
        a("buffer_load_dwordx4 v5, s[%d:%d], s12 offen lds" % (SC, SC + 3))
    a("v_mul_u32_u24 v6, %d, v2" % RS)
    a("v_lshlrev_b32 v7, 4, v3")
    a("v_add3_u32 v6, v6, v7, s10")
    AF = 80
    SCO = 144
    a("s_mul_i32 s12, s3, %d" % (4 * RS))
    a("s_add_u32 s12, s12, %d" % QLD)
    a("v_add_u32 v4, s12, v5")
    a("v_mul_u32_u24 v12, %d, v2" % RS)
    a("s_mov_b32 s13, %d" % QLD)
    a("v_add3_u32 v12, v12, v7, s13")
    for i in range(4):
        a("s_waitcnt vmcnt(%d)" % ((0 if LW else 32) + 2 * (3 - i)))
        for q in range(4):
            x, y = 144 + 4 * i + q, 160 + 4 * i + q
            a("v_lshlrev_b32 v8, 16, %s" % v(x))
            a("v_lshlrev_b32 v9, 16, %s" % v(y))
            a("v_and_b32 v10, 0xffff0000, %s" % v(x))
            a("v_and_b32 v11, 0xffff0000, %s" % v(y))
            a("v_add_f32 v8, v8, v9")
            a("v_add_f32 v10, v10, v11")
            a("v_cvt_pk_bf16_f32 %s, v8, v10" % v(x))
        a("ds_write_b128 v4, %s offset:%d" % (vr(144 + 4 * i, 4), i * RS))
    a("s_waitcnt lgkmcnt(0)")
    a("s_barrier")
    for st in range(16):
        a("ds_read_b128 %s, v12 offset:%d" % (vr(QF + 4 * st, 4), st * 64))
    for T in range(2):
        if LW:
            a("s_barrier")
        else:
            a("s_waitcnt vmcnt(%d)" % (16 if T == 0 else 0))
        for st in range(16):
            a("ds_read_b128 %s, v6 offset:%d" % (vr(AF + 4 * st, 4), CKV + T * 16 * RS + st * 64))
        for st in range(16):
            a("s_waitcnt lgkmcnt(%d)" % (15 - st))
            a("v_mfma_f32_16x16x32_bf16 %s, %s, %s, %s" % (vr(SCO + 4 * T, 4), vr(AF + 4 * st, 4), vr(QF + 4 * st, 4),
                                                          "0" if st == 0 else vr(SCO + 4 * T, 4)))
    a.nop(8)
    a("v_max3_f32 v8, v144, v145, v146")
    a("v_max3_f32 v8, v8, v147, v148")
    a("v_max3_f32 v8, v8, v149, v150")
    a("v_max_f32 v8, v8, v151")
    red_g(a, "v_max_f32", 8, 9)
    a("s_lshl_b32 s12, s3, 6")
    a("v_lshlrev_b32 v10, 2, v2")
    a("v_add_u32 v11, s12, v10")
    exec_lo16(a)
    a("ds_write_b32 v11, v8 offset:%d" % MX)
    exec_all(a)
    a("s_waitcnt lgkmcnt(0)")
    a("s_barrier")
    for w in range(4):
        a("ds_read_b32 %s, v10 offset:%d" % (v(12 + w), MX + 64 * w))
    a("s_waitcnt lgkmcnt(0)")
    a("v_max3_f32 v8, v12, v13, v14")
    a("v_max_f32 v8, v8, v15")
    for r in range(8):
        a("v_sub_f32 %s, %s, v8" % (v(SCO + r), v(SCO + r)))
    for r in range(8):
        a("v_exp_f32 %s, %s" % (v(SCO + r), v(SCO + r)))
    a.nop(1)
    for r in range(4):
        a("v_cvt_pk_bf16_f32 %s, %s, %s" % (v(152 + r), v(SCO + 2 * r), v(SCO + 2 * r + 1)))
    a("v_add_f32 v9, v144, v145")
    for r in range(2, 8):
        a("v_add_f32 v9, v9, %s" % v(SCO + r))
    a("s_lshl_b32 s12, s3, 10")
    a("v_lshlrev_b32 v12, 4, v1")
    a("v_add_u32 v13, s12, v12")
    a("ds_write_b128 v13, v[152:155] offset:%d" % PL)
    red_g(a, "v_add_f32", 9, 14)
    exec_lo16(a)
    a("ds_write_b32 v11, v9 offset:%d" % LS)
    exec_all(a)
    a("s_waitcnt lgkmcnt(0)")
    a("s_barrier")
    PF = 156
    for st in range(4):
        a("ds_read_b128 %s, v12 offset:%d" % (vr(PF + 4 * st, 4), PL + 1024 * st))
    a("v_lshrrev_b32 v13, 2, v2")
    a("v_lshl_add_u32 v13, v3, 2, v13")
    a("v_mul_u32_u24 v13, %d, v13" % RS)
    a("v_and_b32 v14, 3, v2")
    a("v_lshlrev_b32 v14, 3, v14")
    a("s_lshl_b32 s12, s3, 8")
    a("v_add3_u32 v13, v13, v14, s12")
    a("v_add_u32 v14, %d, v13" % (64 * RS))
    ACC = 176
    TB = [16, 48]
    groups = [(st, ch) for st in range(4) for ch in range(2)]

    def issue(k):
        st, ch = groups[k]
        buf = 16 + 16 * (k % 4)
        base = 13 if st < 2 else 14
        for q in range(4):
            ct = 4 * ch + q
            off = CKV + (st & 1) * 32 * RS + ct * 32
            a("ds_read_b64_tr_b16 %s, %s offset:%d" % (vr(buf + 4 * q, 2), v(base), off))
            a("ds_read_b64_tr_b16 %s, %s offset:%d" % (vr(buf + 4 * q + 2, 2), v(base), off + 16 * RS))

    def compute(k):
        st, ch = groups[k]
        buf = 16 + 16 * (k % 4)
        for q in range(4):
            ct = 4 * ch + q
            a("v_mfma_f32_16x16x32_bf16 %s, %s, %s, %s" % (vr(ACC + 4 * ct, 4), vr(buf + 4 * q, 4), vr(PF + 4 * st, 4),
                                                          "0" if st == 0 else vr(ACC + 4 * ct, 4)))
    issue(0)
    for k in range(8):
        if k + 1 < 8:
            issue(k + 1)
            a("s_waitcnt lgkmcnt(8)")
        else:
            a("s_waitcnt lgkmcnt(0)")
        compute(k)
    a("s_lshl_b32 s12, s9, 15")
    a("s_lshl_b32 s13, s8, 10")
    a("s_add_u32 s12, s12, s13")
    a("s_lshl_b32 s13, s3, 8")
    a("s_add_u32 s12, s12, s13")
    a("s_add_u32 s12, s12, 0x%x" % PART)
    a("v_lshlrev_b32 v13, 15, v2")
    a("v_lshlrev_b32 v14, 4, v3")
    a("v_add3_u32 v13, v13, v14, s12")
    a.nop(4)
    for ct in range(8):
        a("v_cvt_pk_bf16_f32 %s, %s, %s" % (v(16 + 2 * ct), v(ACC + 4 * ct), v(ACC + 4 * ct + 1)))
        a("v_cvt_pk_bf16_f32 %s, %s, %s" % (v(16 + 2 * ct + 1), v(ACC + 4 * ct + 2), v(ACC + 4 * ct + 3)))
    for p in range(4):
        a("buffer_store_dwordx4 %s, v13, s[%d:%d], 0 offen offset:%d" % (vr(16 + 4 * p, 4), SO, SO + 3, 64 * p))
    a("s_cmp_lg_u32 s3, 0")
    a("s_cbranch_scc1 k2_end")
    for w in range(4):
        a("ds_read_b32 %s, v10 offset:%d" % (v(40 + w), LS + 64 * w))
    a("s_lshl_b32 s12, s9, 8")
    a("s_lshl_b32 s13, s8, 3")
    a("s_add_u32 s12, s12, s13")
    a("s_add_u32 s12, s12, 0x%x" % STATS)
    a("v_lshlrev_b32 v13, 8, v2")
    a("v_add_u32 v13, s12, v13")
    a("s_waitcnt lgkmcnt(0)")
    a("v_add_f32 v40, v40, v41")
    a("v_add_f32 v42, v42, v43")
    a("v_add_f32 v9, v40, v42")
    exec_lo16(a)
    a("buffer_store_dwordx2 v[8:9], v13, s[%d:%d], 0 offen" % (SO, SO + 3))
    a.label("k2_end")
    a("s_endpgm")
    return name, 208, QLD + 16 * RS


def gen_k3(a):
    name = "k3_kernel"
    kernel_begin(a, name)
    LAT = 0
    RED = 1280
    CTX = RED + 16384
    HA = CTX + 1280
    prologue(a, 312, "k3_end")
    SO, SV, SW = 44, 48, 52
    srd(a, SO, P_WS, WS_USED)
    a("s_cmp_ge_u32 s2, 256")
    a("s_cbranch_scc1 k3_ffn")
    a("s_and_b32 s4, s2, 7")
    a("s_lshr_b32 s5, s2, 3")
    a("s_lshr_b32 s6, s5, 3")
    a("s_lshl_b32 s4, s4, 2")
    a("s_add_u32 s6, s6, s4")
    a("s_lshr_b32 s7, s5, 1")
    a("s_and_b32 s7, s7, 3")
    a("s_and_b32 s8, s5, 1")
    srd(a, SV, P_WUV, 4194304)
    srd(a, SW, P_WO, 4194304)
    a("s_mov_b32 s13, 4096")
    ST = 16
    a("s_lshl_b32 s9, s3, 5")
    a("s_add_u32 s9, s9, s6")
    a("s_lshl_b32 s10, s9, 8")
    a("s_add_u32 s10, s10, 0x%x" % STATS)
    a("v_lshlrev_b32 v4, 6, v3")
    a("v_add_u32 v4, s10, v4")
    for i in range(4):
        a("buffer_load_dwordx4 %s, v4, s[%d:%d], 0 offen offset:%d" % (vr(ST + 4 * i, 4), SO, SO + 3, 16 * i))
    LP = 32
    a("s_lshl_b32 s10, s9, 15")
    a("s_lshl_b32 s11, s7, 8")
    a("s_add_u32 s10, s10, s11")
    a("s_add_u32 s10, s10, 0x%x" % PART)
    a("v_lshlrev_b32 v4, 13, v3")
    a("v_lshlrev_b32 v5, 4, v2")
    a("v_add3_u32 v4, v4, v5, s10")
    for i in range(8):
        a("buffer_load_dwordx4 %s, v4, s[%d:%d], %s offen offset:%d" % (vr(LP + 4 * i, 4), SO, SO + 3,
                                                                       "0" if i < 4 else "s13", (i & 3) * 1024))
    LV = 64
    a("s_lshl_b32 s10, s7, 20")
    a("s_lshl_b32 s11, s3, 18")
    a("s_add_u32 s10, s10, s11")
    a("s_lshl_b32 s11, s6, 8")
    a("s_add_u32 s10, s10, s11")
    a("v_lshlrev_b32 v4, 15, v3")
    a("v_add3_u32 v4, v4, v5, s10")
    for i in range(8):
        a("s_mov_b32 s12, 0x%x" % ((16 * (i >> 2) + (i & 3)) * 8192))
        a("buffer_load_dwordx4 %s, v4, s[%d:%d], s12 offen" % (vr(LV + 4 * i, 4), SV, SV + 3))
    LO = 96
    a("s_lshl_b32 s10, s6, 17")
    a("s_lshl_b32 s11, s3, 15")
    a("s_add_u32 s10, s10, s11")
    a("s_lshl_b32 s11, s8, 9")
    a("s_add_u32 s10, s10, s11")
    a("v_lshlrev_b32 v4, 13, v3")
    a("v_add3_u32 v4, v4, v5, s10")
    for cb in range(2):
        for i in range(8):
            a("buffer_load_dwordx4 %s, v4, s[%d:%d], %s offen offset:%d" % (
                vr(LO + 32 * cb + 4 * i, 4), SW, SW + 3, "0" if i < 4 else "s13", (i & 3) * 1024 + cb * 256))
    a("s_waitcnt vmcnt(32)")
    a("v_max3_f32 v6, v16, v18, v20")
    a("v_max3_f32 v6, v6, v22, v24")
    a("v_max3_f32 v6, v6, v26, v28")
    a("v_max_f32 v6, v6, v30")
    red_g(a, "v_max_f32", 6, 7)
    for i in range(8):
        a("v_sub_f32 %s, %s, v6" % (v(ST + 2 * i), v(ST + 2 * i)))
    for i in range(8):
        a("v_exp_f32 %s, %s" % (v(ST + 2 * i), v(ST + 2 * i)))
    a.nop(1)
    a("v_mul_f32 v7, v16, v17")
    for i in range(1, 8):
        a("v_fma_f32 v7, %s, %s, v7" % (v(ST + 2 * i), v(ST + 2 * i + 1)))
    red_g(a, "v_add_f32", 7, 8)
    a("v_rcp_f32 v7, v7")
    a.nop(1)
    for i in range(8):
        a("v_mul_f32 %s, %s, v7" % (v(ST + 2 * i), v(ST + 2 * i)))
    AW = 8
    for p in range(4):
        a("v_cvt_pk_bf16_f32 %s, %s, %s" % (v(AW + p), v(ST + 4 * p), v(ST + 4 * p + 2)))
    ACC = 192
    FX = 160
    a("s_waitcnt vmcnt(24)")
    unit8(a, LP, FX, AW, ACC, True)
    a.nop(8)
    for p in range(4):
        a("v_cvt_pk_bf16_f32 %s, %s, %s" % (v(16 + p), v(ACC + 8 * p), v(ACC + 8 * p + 4)))
    a("s_mul_i32 s10, s3, 320")
    a("v_add_u32 v4, s10, v5")
    exec_lo16(a)
    a("ds_write_b128 v4, v[16:19] offset:%d" % LAT)
    exec_all(a)
    a("s_waitcnt lgkmcnt(0)")
    a("s_barrier")
    a("v_and_b32 v6, 3, v1")
    a("v_mul_u32_u24 v6, 320, v6")
    a("v_lshl_add_u32 v6, v3, 4, v6")
    a("s_lshl_b32 s10, s3, 6")
    a("v_add_u32 v6, s10, v6")
    a("ds_read_b128 v[8:11], v6 offset:%d" % LAT)
    a("s_waitcnt vmcnt(16) lgkmcnt(0)")
    unit8(a, LV, FX, 8, ACC, True)
    a.nop(8)
    a("s_lshl_b32 s10, s3, 12")
    a("v_add_u32 v4, s10, v5")
    exec_lo16(a)
    for t in range(8):
        a("ds_write_b128 v4, %s offset:%d" % (vr(ACC + 4 * t, 4), RED + 256 * t))
    exec_all(a)
    a("s_waitcnt lgkmcnt(0)")
    a("s_barrier")
    a("s_cmp_ge_u32 s3, 2")
    a("s_cbranch_scc1 k3_sumdone")
    a("v_lshlrev_b32 v7, 4, v0")
    for w in range(4):
        a("ds_read_b128 %s, v7 offset:%d" % (vr(16 + 4 * w, 4), RED + 4096 * w))
    a("v_lshrrev_b32 v12, 4, v0")
    a("v_lshlrev_b32 v13, 4, v2")
    a("v_lshl_add_u32 v12, v12, 1, v13")
    a("s_waitcnt lgkmcnt(0)")
    for b in range(4):
        a("v_add_f32 %s, %s, %s" % (v(16 + b), v(16 + b), v(20 + b)))
        a("v_add_f32 %s, %s, %s" % (v(24 + b), v(24 + b), v(28 + b)))
    for b in range(4):
        a("v_add_f32 %s, %s, %s" % (v(16 + b), v(16 + b), v(24 + b)))
    a("v_cvt_pk_bf16_f32 v20, v16, v17")
    a("v_cvt_pk_bf16_f32 v21, v18, v19")
    a("ds_write_b16 v12, v20 offset:%d" % (CTX))
    a("ds_write_b16_d16_hi v12, v20 offset:%d" % (CTX + 320))
    a("ds_write_b16 v12, v21 offset:%d" % (CTX + 640))
    a("ds_write_b16_d16_hi v12, v21 offset:%d" % (CTX + 960))
    a("s_waitcnt lgkmcnt(0)")
    a.label("k3_sumdone")
    a("s_barrier")
    a("ds_read_b128 v[8:11], v6 offset:%d" % CTX)
    a("s_waitcnt vmcnt(8) lgkmcnt(0)")
    unit8(a, LO, FX, 8, ACC, True)
    a("s_waitcnt vmcnt(0)")
    unit8(a, LO + 32, LO, 8, ACC + 32, True)
    a.nop(8)
    exec_lo16(a)
    for cb in range(2):
        for t in range(8):
            a("ds_write_b128 v4, %s offset:%d" % (vr(ACC + 32 * cb + 4 * t, 4), RED + 2048 * cb + 256 * t))
    exec_all(a)
    a("s_waitcnt lgkmcnt(0)")
    a("s_barrier")
    a("v_lshlrev_b32 v7, 4, v0")
    for w in range(4):
        a("ds_read_b128 %s, v7 offset:%d" % (vr(16 + 4 * w, 4), RED + 4096 * w))
    a("s_lshl_b32 s10, s6, 2")
    a("s_add_u32 s10, s10, s7")
    a("s_lshl_b32 s10, s10, 13")
    a("s_lshl_b32 s11, s8, 12")
    a("s_add_u32 s10, s10, s11")
    a("s_add_u32 s10, s10, 0x%x" % SPART)
    a("v_add_u32 v12, s10, v7")
    a("s_waitcnt lgkmcnt(0)")
    for b in range(4):
        a("v_add_f32 %s, %s, %s" % (v(16 + b), v(16 + b), v(20 + b)))
        a("v_add_f32 %s, %s, %s" % (v(24 + b), v(24 + b), v(28 + b)))
    for b in range(4):
        a("v_add_f32 %s, %s, %s" % (v(16 + b), v(16 + b), v(24 + b)))
    a("buffer_store_dwordx4 v[16:19], v12, s[%d:%d], 0 offen" % (SO, SO + 3))
    a("s_endpgm")
    a.label("k3_ffn")
    a("s_sub_u32 s4, s2, 256")
    srd(a, SW, P_WD, 1792 * 1024)
    a("s_mov_b32 s13, 4096")
    GL = 16
    a("v_and_b32 v4, 31, v1")
    a("v_lshrrev_b32 v5, 5, v1")
    a("v_mul_u32_u24 v5, %d, v5" % (8 * 1792))
    a("s_lshl_b32 s10, s4, 5")
    a("v_add3_u32 v5, v5, v4, s10")
    a("v_lshlrev_b32 v5, 4, v5")
    a("v_add_u32 v5, 0x%x, v5" % GU)
    for kk in range(4):
        for mat in range(2):
            a("s_mov_b32 s12, 0x%x" % ((kk * 2 + mat) * 1792 * 16))
            a("buffer_load_dwordx4 %s, v5, s[%d:%d], s12 offen" % (vr(GL + 8 * kk + 4 * mat, 4), SO, SO + 3))
    LD = 64
    a("s_lshl_b32 s10, s4, 15")
    a("s_lshl_b32 s11, s3, 8")
    a("s_add_u32 s10, s10, s11")
    a("v_lshlrev_b32 v6, 13, v3")
    a("v_lshlrev_b32 v7, 4, v2")
    a("v_add3_u32 v6, v6, v7, s10")
    for i in range(8):
        a("buffer_load_dwordx4 %s, v6, s[%d:%d], %s offen offset:%d" % (vr(LD + 4 * i, 4), SW, SW + 3,
                                                                       "0" if i < 4 else "s13", (i & 3) * 1024))
    a("s_waitcnt vmcnt(8)")
    for q in range(8):
        a("v_add_f32 %s, %s, %s" % (v(GL + q), v(GL + q), v(GL + 8 + q)))
        a("v_add_f32 %s, %s, %s" % (v(GL + 16 + q), v(GL + 16 + q), v(GL + 24 + q)))
    for q in range(8):
        a("v_add_f32 %s, %s, %s" % (v(GL + q), v(GL + q), v(GL + 16 + q)))
    for q in range(8):
        a("v_mov_b32 %s, %s" % (v(GL + 8 + q), v(GL + q)))
    a.nop(2)
    for q in range(8):
        a("v_permlane32_swap_b32 %s, %s" % (v(GL + q), v(GL + 8 + q)))
    a.nop(1)
    for q in range(8):
        a("v_add_f32 %s, %s, %s" % (v(GL + q), v(GL + q), v(GL + 8 + q)))
    for p in range(4):
        a("v_cvt_pk_bf16_f32 %s, %s, %s" % (v(24 + p), v(GL + 2 * p), v(GL + 2 * p + 1)))
    for p in range(4):
        a("v_lshlrev_b32 %s, 16, %s" % (v(GL + 2 * p), v(24 + p)))
        a("v_and_b32 %s, 0xffff0000, %s" % (v(GL + 2 * p + 1), v(24 + p)))
    for b in range(4):
        silu_inplace(a, GL + b, 28 + b)
    a("v_cvt_pk_bf16_f32 v24, v16, v17")
    a("v_cvt_pk_bf16_f32 v25, v18, v19")
    a("v_lshlrev_b32 v16, 16, v24")
    a("v_and_b32 v17, 0xffff0000, v24")
    a("v_lshlrev_b32 v18, 16, v25")
    a("v_and_b32 v19, 0xffff0000, v25")
    for b in range(4):
        a("v_mul_f32 %s, %s, %s" % (v(16 + b), v(16 + b), v(20 + b)))
    a("v_cvt_pk_bf16_f32 v24, v16, v17")
    a("v_cvt_pk_bf16_f32 v25, v18, v19")
    a("s_mul_i32 s10, s3, 320")
    a("v_lshlrev_b32 v8, 1, v4")
    a("v_add_u32 v8, s10, v8")
    a("ds_write_b16 v8, v24 offset:%d" % (HA))
    a("ds_write_b16_d16_hi v8, v24 offset:%d" % (HA + 80))
    a("ds_write_b16 v8, v25 offset:%d" % (HA + 160))
    a("ds_write_b16_d16_hi v8, v25 offset:%d" % (HA + 240))
    a("v_and_b32 v9, 3, v1")
    a("v_mul_u32_u24 v9, 80, v9")
    a("v_lshl_add_u32 v9, v3, 4, v9")
    a("v_add_u32 v9, s10, v9")
    a("s_waitcnt lgkmcnt(0)")
    a("ds_read_b128 v[8:11], v9 offset:%d" % HA)
    a("s_waitcnt vmcnt(0) lgkmcnt(0)")
    unit8(a, LD, 96, 8, 128, True)
    a("s_lshl_b32 s10, s4, 13")
    a("s_lshl_b32 s11, s3, 11")
    a("s_add_u32 s10, s10, s11")
    a("s_add_u32 s10, s10, 0x%x" % YPART)
    a("v_add_u32 v4, s10, v7")
    a.nop(8)
    exec_lo16(a)
    for t in range(8):
        a("buffer_store_dwordx4 %s, v4, s[%d:%d], 0 offen offset:%d" % (vr(128 + 4 * t, 4), SO, SO + 3, 256 * t))
    a.label("k3_end")
    a("s_endpgm")
    return name, 256, HA + 1280


def gen_k4(a):
    name = "k4_kernel"
    kernel_begin(a, name)
    prologue(a, 64, "k4_end")
    SS, SY, SX, SOUT = 44, 48, 52, 56
    srd(a, SS, P_WS, 128 * 8192, off=SPART)
    srd(a, SY, P_WS, 56 * 8192, off=YPART)
    srd(a, SX, P_X, 4096)
    srd(a, SOUT, P_OUT, 4096)
    a("s_mov_b32 s13, 8192")
    a("s_mov_b32 s12, 16384")
    a("s_mov_b32 s11, 24576")
    a("v_and_b32 v4, 7, v0")
    a("v_lshrrev_b32 v5, 3, v0")
    a("s_lshl_b32 s10, s2, 7")
    a("v_lshlrev_b32 v6, 4, v4")
    a("v_add_u32 v6, s10, v6")
    a("v_lshlrev_b32 v7, 15, v5")
    a("v_add_u32 v7, v7, v6")
    a("buffer_load_dwordx4 v[16:19], v7, s[%d:%d], 0 offen" % (SS, SS + 3))
    a("buffer_load_dwordx4 v[20:23], v7, s[%d:%d], s13 offen" % (SS, SS + 3))
    a("buffer_load_dwordx4 v[24:27], v7, s[%d:%d], s12 offen" % (SS, SS + 3))
    a("buffer_load_dwordx4 v[28:31], v7, s[%d:%d], s11 offen" % (SS, SS + 3))
    a("v_lshlrev_b32 v7, 14, v5")
    a("v_add_u32 v7, v7, v6")
    a("buffer_load_dwordx4 v[32:35], v7, s[%d:%d], 0 offen" % (SY, SY + 3))
    a("buffer_load_dwordx4 v[36:39], v7, s[%d:%d], s13 offen" % (SY, SY + 3))
    a("v_lshrrev_b32 v8, 2, v0")
    a("s_lshl_b32 s10, s2, 3")
    a("v_add_u32 v8, s10, v8")
    a("v_and_b32 v9, 15, v8")
    a("v_lshrrev_b32 v10, 4, v8")
    a("v_and_b32 v10, 7, v10")
    a("v_lshrrev_b32 v11, 7, v8")
    a("v_lshlrev_b32 v11, 7, v11")
    a("v_lshl_add_u32 v11, v9, 3, v11")
    a("v_add_u32 v11, v11, v10")
    a("v_and_b32 v12, 3, v0")
    a("v_lshl_add_u32 v11, v12, 9, v11")
    a("v_lshlrev_b32 v11, 1, v11")
    a("buffer_load_ushort v13, v11, s[%d:%d], 0 offen" % (SX, SX + 3))
    a("s_waitcnt vmcnt(1)")
    for q in range(4):
        a("v_add_f32 %s, %s, %s" % (v(16 + q), v(16 + q), v(20 + q)))
        a("v_add_f32 %s, %s, %s" % (v(24 + q), v(24 + q), v(28 + q)))
        a("v_add_f32 %s, %s, %s" % (v(20 + q), v(32 + q), v(36 + q)))
    for q in range(4):
        a("v_add_f32 %s, %s, %s" % (v(16 + q), v(16 + q), v(24 + q)))
    a.nop(2)
    for q in range(8):
        a("v_add_f32_dpp %s, %s, %s row_ror:8 row_mask:0xf bank_mask:0xf" % (v(24 + q), v(16 + q), v(16 + q)))
    for q in range(8):
        a("v_mov_b32 %s, %s" % (v(16 + q), v(24 + q)))
    a.nop(2)
    for q in range(8):
        a("v_permlane16_swap_b32 %s, %s" % (v(16 + q), v(24 + q)))
    a.nop(1)
    for q in range(8):
        a("v_add_f32 %s, %s, %s" % (v(16 + q), v(16 + q), v(24 + q)))
    for q in range(8):
        a("v_mov_b32 %s, %s" % (v(24 + q), v(16 + q)))
    a.nop(2)
    for q in range(8):
        a("v_permlane32_swap_b32 %s, %s" % (v(16 + q), v(24 + q)))
    a.nop(1)
    for q in range(8):
        a("v_add_f32 %s, %s, %s" % (v(16 + q), v(16 + q), v(24 + q)))
    a("s_lshl_b32 s10, s3, 8")
    a("v_lshlrev_b32 v14, 5, v4")
    a("v_add_u32 v14, s10, v14")
    a("s_mov_b64 exec, 0xff")
    a("ds_write_b128 v14, v[16:19]")
    a("ds_write_b128 v14, v[20:23] offset:16")
    exec_all(a)
    a("s_waitcnt lgkmcnt(0)")
    a("s_barrier")
    a("s_cmp_lg_u32 s3, 0")
    a("s_cbranch_scc1 k4_end")
    a("s_mov_b32 exec_lo, -1")
    a("s_mov_b32 exec_hi, 0")
    a("v_lshrrev_b32 v14, 2, v0")
    a("v_lshlrev_b32 v14, 5, v14")
    a("v_lshl_add_u32 v14, v12, 2, v14")
    for w in range(4):
        a("ds_read_b32 %s, v14 offset:%d" % (v(16 + w), 256 * w))
        a("ds_read_b32 %s, v14 offset:%d" % (v(20 + w), 256 * w + 16))
    a("s_waitcnt vmcnt(0) lgkmcnt(0)")
    a("v_add_f32 v16, v16, v17")
    a("v_add_f32 v18, v18, v19")
    a("v_add_f32 v20, v20, v21")
    a("v_add_f32 v22, v22, v23")
    a("v_add_f32 v16, v16, v18")
    a("v_add_f32 v20, v20, v22")
    a("v_cvt_pk_bf16_f32 v24, v16, v20")
    a("v_lshlrev_b32 v16, 16, v24")
    a("v_and_b32 v20, 0xffff0000, v24")
    silu_inplace(a, 20, 25)
    a("v_cvt_pk_bf16_f32 v24, v20, v20")
    a("v_lshlrev_b32 v20, 16, v24")
    a("v_mul_f32 v16, v16, v20")
    a("v_cvt_pk_bf16_f32 v24, v16, v16")
    a("v_lshlrev_b32 v16, 16, v24")
    a("v_lshlrev_b32 v13, 16, v13")
    a("v_add_f32 v16, v16, v13")
    a("v_cvt_pk_bf16_f32 v24, v16, v16")
    a("buffer_store_short v24, v11, s[%d:%d], 0 offen" % (SOUT, SOUT + 3))
    a.label("k4_end")
    a("s_endpgm")
    return name, 40, 1024


def main():
    hdr = []
    a = Asm()
    a.raw('.amdgcn_target "amdgcn-amd-amdhsa--gfx950"')
    a.raw(".text")
    n1, v1 = gen_k1(a)
    n2, v2, l2 = gen_k2(a)
    n3, v3, l3 = gen_k3(a)
    n4, v4, l4 = gen_k4(a)
    a.raw('.section .rodata,"a"')
    for n, nv in ((n1, v1), (n2, v2), (n3, v3), (n4, v4)):
        a.raw(".p2align 6")
        kernel_desc(a, n, nv)
    hdr.append("; @launch kernel=%s grid=(368,1,1) block=(256,1,1) lds=14336" % n1)
    hdr.append("; @launch kernel=%s grid=(256,1,1) block=(%d,1,1) lds=%d" % (n2, 512 if LW else 256, l2))
    hdr.append("; @launch kernel=%s grid=(312,1,1) block=(256,1,1) lds=%d" % (n3, l3))
    hdr.append("; @launch kernel=%s grid=(64,1,1) block=(256,1,1) lds=%d" % (n4, l4))
    out = "\n".join(hdr + a.L) + "\n"
    path = sys.argv[1] if len(sys.argv) > 1 else "cdna_kernels/%s.s" % NAME
    open(path, "w").write(out)


if __name__ == "__main__":
    main()
```

```python
import sys

NAME = "recurrent_scan__compressed_kv_cla__swiglu_ffn__decode"

QABS = 0x000000
GU = 0x040000
STATS = 0x0C0000
PART = 0x100000
SPART = 0x600000
YPART = 0x700000
WS_USED = 0x800000

SRD3 = 0x00020000


def v(n):
    return "v%d" % n


def vr(n, c):
    return "v[%d:%d]" % (n, n + c - 1)


def s(n):
    return "s%d" % n


def sr(n, c):
    return "s[%d:%d]" % (n, n + c - 1)


class Asm:
    def __init__(self):
        self.L = []

    def __call__(self, t):
        self.L.append("    " + t)

    def label(self, t):
        self.L.append(t + ":")

    def c(self, t):
        self.L.append("    ; " + t)

    def raw(self, t):
        self.L.append(t)

    def nop(self, n):
        while n > 0:
            k = min(n, 16)
            self("s_nop %d" % (k - 1))
            n -= k


P_X, P_CKV, P_WQ, P_WUK, P_WUV, P_WO, P_BX, P_WG, P_WU, P_WD, P_OUT, P_DBG, P_WS = [16 + 2 * i for i in range(13)]
S_SELLO, S_SELHI = 14, 15
S_WV = 3
import os
LW = int(os.environ.get('LW', '1'))
ON = int(os.environ.get('ON', '1'))


def kernel_begin(a, name):
    a.raw(".globl %s" % name)
    a.raw(".p2align 8")
    a.raw(".type %s,@function" % name)
    a.label(name)


def kernel_desc(a, name, nvgpr, nsgpr=102):
    nv = (nvgpr + 3) // 4 * 4
    a.raw(".amdhsa_kernel %s" % name)
    a.raw("  .amdhsa_next_free_vgpr %d" % nv)
    a.raw("  .amdhsa_next_free_sgpr %d" % nsgpr)
    a.raw("  .amdhsa_accum_offset %d" % nv)
    a.raw("  .amdhsa_group_segment_fixed_size 0")
    a.raw("  .amdhsa_kernarg_size 104")
    a.raw("  .amdhsa_user_sgpr_count 2")
    a.raw("  .amdhsa_user_sgpr_kernarg_segment_ptr 1")
    a.raw("  .amdhsa_system_sgpr_workgroup_id_x 1")
    a.raw(".end_amdhsa_kernel")


def prologue(a, nwg, endlabel):
    a("s_cmp_ge_u32 s2, %d" % nwg)
    a("s_cbranch_scc1 %s" % endlabel)
    a("s_load_dwordx16 s[16:31], s[0:1], 0")
    a("s_load_dwordx8 s[32:39], s[0:1], 64")
    a("s_load_dwordx2 s[40:41], s[0:1], 96")
    a("v_lshrrev_b32 v3, 6, v0")
    a("v_and_b32 v1, 63, v0")
    a("v_readfirstlane_b32 s3, v3")
    a("v_and_b32 v2, 15, v1")
    a("v_lshrrev_b32 v3, 4, v1")
    a("s_mov_b32 s%d, 0x05040100" % S_SELLO)
    a("s_mov_b32 s%d, 0x07060302" % S_SELHI)
    a("s_waitcnt lgkmcnt(0)")


def srd(a, d, p, size, off=None, off_sgpr=None):
    if off_sgpr is not None:
        a("s_add_u32 s%d, s%d, s%d" % (d, p, off_sgpr))
        a("s_addc_u32 s%d, s%d, 0" % (d + 1, p + 1))
        a("s_and_b32 s%d, s%d, 0xffff" % (d + 1, d + 1))
    elif off:
        a("s_add_u32 s%d, s%d, 0x%x" % (d, p, off))
        a("s_addc_u32 s%d, s%d, 0" % (d + 1, p + 1))
        a("s_and_b32 s%d, s%d, 0xffff" % (d + 1, d + 1))
    else:
        a("s_mov_b32 s%d, s%d" % (d, p))
        a("s_and_b32 s%d, s%d, 0xffff" % (d + 1, p + 1))
    a("s_mov_b32 s%d, 0x%x" % (d + 2, size))
    a("s_mov_b32 s%d, 0x%x" % (d + 3, SRD3))


def red_g(a, op, x, t):
    a("v_mov_b32 %s, %s" % (v(t), v(x)))
    a.nop(2)
    a("v_permlane16_swap_b32 %s, %s" % (v(x), v(t)))
    a.nop(1)
    a("%s %s, %s, %s" % (op, v(x), v(x), v(t)))
    a("v_mov_b32 %s, %s" % (v(t), v(x)))
    a.nop(2)
    a("v_permlane32_swap_b32 %s, %s" % (v(x), v(t)))
    a.nop(1)
    a("%s %s, %s, %s" % (op, v(x), v(x), v(t)))


def red_16(a, op, x, t):
    a.nop(2)
    a("%s_dpp %s, %s, %s quad_perm:[1,0,3,2] row_mask:0xf bank_mask:0xf" % (op, v(t), v(x), v(x)))
    a.nop(2)
    a("%s_dpp %s, %s, %s quad_perm:[2,3,0,1] row_mask:0xf bank_mask:0xf" % (op, v(x), v(t), v(t)))
    a.nop(2)
    a("%s_dpp %s, %s, %s row_half_mirror row_mask:0xf bank_mask:0xf" % (op, v(t), v(x), v(x)))
    a.nop(2)
    a("%s_dpp %s, %s, %s row_mirror row_mask:0xf bank_mask:0xf" % (op, v(x), v(t), v(t)))


def red_64(a, op, x, t):
    red_16(a, op, x, t)
    red_g(a, op, x, t)


def layernorm(a, vx, t, vaddr):
    f = t
    d = t + 8
    S, T, M, R, VB, MB, SQ, RC = [t + 16 + i for i in range(8)]
    for i in range(4):
        a("v_lshlrev_b32 %s, 16, %s" % (v(f + 2 * i), v(vx + i)))
        a("v_and_b32 %s, 0xffff0000, %s" % (v(f + 2 * i + 1), v(vx + i)))
    a("v_add_f32 %s, %s, %s" % (v(S), v(f), v(f + 1)))
    for i in range(2, 8):
        a("v_add_f32 %s, %s, %s" % (v(S), v(S), v(f + i)))
    red_64(a, "v_add_f32", S, T)
    a("v_mul_f32 %s, 0x3b000000, %s" % (v(M), v(S)))
    for i in range(8):
        a("v_sub_f32 %s, %s, %s" % (v(d + i), v(f + i), v(M)))
    a("v_mul_f32 %s, %s, %s" % (v(S), v(d), v(d)))
    for i in range(1, 8):
        a("v_fma_f32 %s, %s, %s, %s" % (v(S), v(d + i), v(d + i), v(S)))
    red_64(a, "v_add_f32", S, T)
    a("v_mul_f32 %s, 0x3b000000, %s" % (v(S), v(S)))
    a("v_cvt_pk_bf16_f32 %s, %s, %s" % (v(R), v(S), v(M)))
    a("v_lshlrev_b32 %s, 16, %s" % (v(VB), v(R)))
    a("v_and_b32 %s, 0xffff0000, %s" % (v(MB), v(R)))
    a("v_add_f32 %s, 0x3727c5ac, %s" % (v(VB), v(VB)))
    a("v_cvt_pk_bf16_f32 %s, %s, %s" % (v(R), v(VB), v(VB)))
    a("v_lshlrev_b32 %s, 16, %s" % (v(VB), v(R)))
    a("v_sqrt_f32 %s, %s" % (v(SQ), v(VB)))
    a.nop(1)
    a("v_cvt_pk_bf16_f32 %s, %s, %s" % (v(R), v(SQ), v(SQ)))
    a("v_lshlrev_b32 %s, 16, %s" % (v(SQ), v(R)))
    a("v_rcp_f32 %s, %s" % (v(RC), v(SQ)))
    for i in range(8):
        a("v_sub_f32 %s, %s, %s" % (v(d + i), v(f + i), v(MB)))
    for i in range(4):
        a("v_cvt_pk_bf16_f32 %s, %s, %s" % (v(f + i), v(d + 2 * i), v(d + 2 * i + 1)))
    for i in range(4):
        a("v_lshlrev_b32 %s, 16, %s" % (v(d + 2 * i), v(f + i)))
        a("v_and_b32 %s, 0xffff0000, %s" % (v(d + 2 * i + 1), v(f + i)))
    for i in range(8):
        a("v_mul_f32 %s, %s, %s" % (v(f + i), v(d + i), v(RC)))
    for i in range(8):
        a("v_fma_f32 %s, -%s, %s, %s" % (v(d + i), v(f + i), v(SQ), v(d + i)))
    for i in range(8):
        a("v_fma_f32 %s, %s, %s, %s" % (v(f + i), v(d + i), v(RC), v(f + i)))
    for i in range(4):
        a("v_cvt_pk_bf16_f32 %s, %s, %s" % (v(d + i), v(f + 2 * i), v(f + 2 * i + 1)))
    a("ds_write_b128 %s, %s" % (v(vaddr), vr(d, 4)))


def unit8(a, L, F, A, acc, first):
    def perms(t):
        c, e = t >> 1, t & 1
        for p in range(4):
            a("v_perm_b32 %s, %s, %s, s%d" % (v(F + 4 * t + p), v(L + 4 * (2 * p + 1) + c), v(L + 4 * (2 * p) + c),
                                              S_SELHI if e else S_SELLO))

    def mf(t):
        a("v_mfma_f32_16x16x32_bf16 %s, %s, %s, %s" % (vr(acc + 4 * t, 4), vr(A, 4), vr(F + 4 * t, 4),
                                                       "0" if first else vr(acc + 4 * t, 4)))
    perms(0)
    for t in range(1, 8):
        perms(t)
        mf(t - 1)
    a.nop(2)
    mf(7)


def unit4(a, L, F, A, acc, first):
    def perms(t):
        c, e = t >> 1, t & 1
        for p in range(4):
            a("v_perm_b32 %s, %s, %s, s%d" % (v(F + 4 * t + p), v(L + 2 * (2 * p + 1) + c), v(L + 2 * (2 * p) + c),
                                              S_SELHI if e else S_SELLO))

    def mf(t):
        a("v_mfma_f32_16x16x32_bf16 %s, %s, %s, %s" % (vr(acc + 4 * t, 4), vr(A, 4), vr(F + 4 * t, 4),
                                                       "0" if first else vr(acc + 4 * t, 4)))
    perms(0)
    for t in range(1, 4):
        perms(t)
        mf(t - 1)
    a.nop(2)
    mf(3)


def exec_lo16(a):
    a("s_mov_b64 exec, 0xffff")


def exec_all(a):
    a("s_mov_b64 exec, -1")


LOG2E = 1.4426950408889634


def f32hex(x):
    import struct
    return "0x%08x" % struct.unpack("<I", struct.pack("<f", x))[0]


def silu_inplace(a, x, t):
    a("v_mul_f32 %s, %s, %s" % (v(t), f32hex(-LOG2E), v(x)))
    a("v_exp_f32 %s, %s" % (v(t), v(t)))
    a.nop(1)
    a("v_add_f32 %s, 1.0, %s" % (v(t), v(t)))
    a("v_rcp_f32 %s, %s" % (v(t), v(t)))
    a.nop(1)
    a("v_mul_f32 %s, %s, %s" % (v(x), v(x), v(t)))


def gen_k1(a):
    name = "k1_kernel"
    kernel_begin(a, name)
    XN, RED, QL = 0, 4352, 12544
    prologue(a, 368, "k1_end")
    SX, SW, SU, SO = 44, 48, 52, 56
    srd(a, SX, P_X, 4096)
    srd(a, SO, P_WS, WS_USED)
    a("s_lshl_b32 s4, s3, 10")
    a("v_lshlrev_b32 v4, 4, v1")
    a("v_add_u32 v5, s4, v4")
    a("buffer_load_dwordx4 v[8:11], v5, s[%d:%d], 0 offen" % (SX, SX + 3))
    a("s_mul_i32 s4, s3, 1088")
    a("v_add_u32 v6, s4, v4")
    a("s_cmp_ge_u32 s2, 256")
    a("s_cbranch_scc1 k1_ffn")
    a("s_and_b32 s4, s2, 7")
    a("s_lshr_b32 s5, s2, 3")
    a("s_lshr_b32 s6, s5, 3")
    a("s_lshl_b32 s4, s4, 2")
    a("s_add_u32 s6, s6, s4")
    a("s_and_b32 s7, s5, 3")
    a("s_bfe_u32 s13, s5, 0x10002")
    srd(a, SW, P_WQ, 4194304)
    srd(a, SU, P_WUK, 4194304)
    a("s_lshl_b32 s8, s3, 20")
    a("s_lshl_b32 s9, s6, 8")
    a("s_lshl_b32 s10, s13, 7")
    a("s_add_u32 s9, s9, s10")
    a("s_add_u32 s8, s8, s9")
    a("v_lshrrev_b32 v12, 3, v2")
    a("v_lshl_add_u32 v7, v12, 2, v3")
    a("v_lshlrev_b32 v7, 16, v7")
    a("v_and_b32 v15, 7, v2")
    a("v_lshlrev_b32 v15, 4, v15")
    a("v_add3_u32 v7, v7, v15, s8")
    LQ = 16
    for u in range(2):
        for i in range(8):
            a("s_mov_b32 s10, 0x%x" % ((64 * u + i) * 8192))
            a("buffer_load_dwordx4 %s, v7, s[%d:%d], s10 offen" % (vr(LQ + 32 * u + 4 * i, 4), SW, SW + 3))
    LU = 144
    a("s_lshl_b32 s8, s7, 7")
    a("s_lshl_b32 s10, s3, 5")
    a("s_add_u32 s8, s8, s10")
    a("v_add_u32 v14, s8, v2")
    a("v_lshlrev_b32 v14, 13, v14")
    a("v_lshlrev_b32 v13, 4, v3")
    a("v_add3_u32 v14, v14, v13, s9")
    a("s_mov_b32 s10, 0x20000")
    for T in range(2):
        for st in range(2):
            a("buffer_load_dwordx4 %s, v14, s[%d:%d], %s offen offset:%d" % (vr(LU + 8 * T + 4 * st, 4), SU, SU + 3,
                                                                          "0" if T == 0 else "s10", 64 * st))
    a("s_lshl_b32 s10, s3, 11")
    a("v_lshl_add_u32 v12, v12, 10, v15")
    a("v_add_u32 v12, s10, v12")
    a("s_waitcnt vmcnt(20)")
    layernorm(a, 8, 208, 6)
    a("s_waitcnt lgkmcnt(0)")
    a("s_barrier")
    AF = 160
    a("v_and_b32 v13, 3, v1")
    a("v_mul_u32_u24 v13, 1088, v13")
    a("v_bfe_u32 v14, v2, 2, 1")
    a("v_lshlrev_b32 v14, 2, v14")
    a("v_add_u32 v14, v14, v3")
    a("v_lshlrev_b32 v14, 4, v14")
    a("s_lshl_b32 s10, s3, 8")
    a("v_add3_u32 v13, v13, v14, s10")
    for u in range(2):
        a("ds_read_b128 %s, v13 offset:%d" % (vr(AF + 4 * u, 4), XN + 128 * u))
    ACC = 176
    FX = 208
    a("s_waitcnt lgkmcnt(0)")
    for u in range(2):
        a("s_waitcnt vmcnt(%d)" % ((1 - u) * 8 + 4))
        unit8(a, LQ + 32 * u, FX if u == 0 else LQ + 32 * (u - 1), AF + 4 * u, ACC, u == 0)
    a.nop(8)
    a("s_mov_b32 exec_lo, 0xff0000ff")
    a("s_mov_b32 exec_hi, 0")
    for t in range(8):
        a("ds_write_b128 v12, %s offset:%d" % (vr(ACC + 4 * t, 4), RED + 128 * t))
    exec_all(a)
    a("s_waitcnt lgkmcnt(0)")
    a("s_barrier")
    a("s_cmp_ge_u32 s3, 1")
    a("s_cbranch_scc1 k1_sumdone")
    a("v_lshlrev_b32 v13, 4, v0")
    for w in range(8):
        a("ds_read_b128 %s, v13 offset:%d" % (vr(16 + 4 * w, 4), RED + 1024 * w))
    a("v_lshrrev_b32 v14, 3, v0")
    a("v_lshl_add_u32 v14, v14, 1, v15")
    a("s_waitcnt lgkmcnt(0)")
    for b in range(4):
        for w in range(4):
            a("v_add_f32 %s, %s, %s" % (v(16 + 8 * w + b), v(16 + 8 * w + b), v(20 + 8 * w + b)))
    for b in range(4):
        a("v_add_f32 %s, %s, %s" % (v(16 + b), v(16 + b), v(24 + b)))
        a("v_add_f32 %s, %s, %s" % (v(32 + b), v(32 + b), v(40 + b)))
    for b in range(4):
        a("v_add_f32 %s, %s, %s" % (v(16 + b), v(16 + b), v(32 + b)))
    a("v_cvt_pk_bf16_f32 v20, v16, v17")
    a("v_cvt_pk_bf16_f32 v21, v18, v19")
    a("ds_write_b16 v14, v20 offset:%d" % (QL))
    a("ds_write_b16_d16_hi v14, v20 offset:%d" % (QL + 320))
    a("ds_write_b16 v14, v21 offset:%d" % (QL + 640))
    a("ds_write_b16_d16_hi v14, v21 offset:%d" % (QL + 960))
    a("s_waitcnt lgkmcnt(0)")
    a.label("k1_sumdone")
    a("s_barrier")
    a("v_and_b32 v13, 3, v1")
    a("v_mul_u32_u24 v13, 320, v13")
    a("v_lshl_add_u32 v13, v3, 4, v13")
    for st in range(2):
        a("ds_read_b128 %s, v13 offset:%d" % (vr(16 + 4 * st, 4), QL + 64 * st))
    a("s_waitcnt vmcnt(0) lgkmcnt(0)")
    for st in range(2):
        for T in range(2):
            a("v_mfma_f32_16x16x32_bf16 %s, %s, %s, %s" % (vr(32 + 4 * T, 4), vr(LU + 8 * T + 4 * st, 4), vr(16 + 4 * st, 4),
                                                          "0" if st == 0 else vr(32 + 4 * T, 4)))
    a("v_lshlrev_b32 v13, 15, v2")
    a("v_lshlrev_b32 v14, 3, v3")
    a("s_lshl_b32 s10, s6, 10")
    a("s_lshl_b32 s11, s8, 1")
    a("s_add_u32 s10, s10, s11")
    a("s_lshl_b32 s11, s13, 17")
    a("s_add_u32 s10, s10, s11")
    a("v_add3_u32 v13, v13, v14, s10")
    a("v_cmp_gt_u32 vcc, 4, v2")
    a.nop(4)
    sc = f32hex(LOG2E * (128 ** -0.5))
    for r in range(8):
        a("v_mul_f32 %s, %s, %s" % (v(32 + r), sc, v(32 + r)))
    for r in range(4):
        a("v_cvt_pk_bf16_f32 %s, %s, %s" % (v(40 + r), v(32 + 2 * r), v(33 + 2 * r)))
    a("s_and_saveexec_b64 s[12:13], vcc")
    for T in range(2):
        a("buffer_store_dwordx2 %s, v13, s[%d:%d], 0 offen offset:%d" % (vr(40 + 2 * T, 2), SO, SO + 3, QABS + 32 * T))
    a("s_endpgm")
    a.label("k1_ffn")
    a("s_sub_u32 s4, s2, 256")
    a("s_and_b32 s5, s4, 3")
    a("s_lshr_b32 s6, s4, 2")
    a("s_lshr_b32 s7, s3, 1")
    a("s_and_b32 s8, s3, 1")
    a("s_cmp_eq_u32 s7, 0")
    a("s_cselect_b32 s10, s%d, s%d" % (P_WG, P_WU))
    a("s_cselect_b32 s11, s%d, s%d" % (P_WG + 1, P_WU + 1))
    srd(a, SW, 10, 512 * 3584)
    a("s_lshl_b32 s9, s5, 1")
    a("s_add_u32 s9, s9, s8")
    a("s_mul_i32 s10, s9, %d" % (64 * 3584))
    a("s_lshl_b32 s11, s6, 7")
    a("s_add_u32 s10, s10, s11")
    a("v_mul_u32_u24 v7, %d, v3" % (8 * 3584))
    a("v_lshlrev_b32 v12, 3, v2")
    a("v_add3_u32 v7, v7, v12, s10")
    LF = 16
    for u in range(2):
        for i in range(8):
            a("s_mov_b32 s10, 0x%x" % ((32 * u + i) * 3584))
            a("buffer_load_dwordx2 %s, v7, s[%d:%d], s10 offen" % (vr(LF + 16 * u + 2 * i, 2), SW, SW + 3))
    a("s_waitcnt vmcnt(16)")
    layernorm(a, 8, 208, 6)
    a("s_waitcnt lgkmcnt(0)")
    a("s_barrier")
    a("v_and_b32 v13, 3, v1")
    a("v_mul_u32_u24 v13, 1088, v13")
    a("v_lshlrev_b32 v14, 4, v3")
    a("s_lshl_b32 s10, s9, 7")
    a("v_add3_u32 v13, v13, v14, s10")
    for u in range(2):
        a("ds_read_b128 %s, v13 offset:%d" % (vr(AF + 4 * u, 4), XN + 64 * u))
    a("s_waitcnt lgkmcnt(0)")
    for u in range(2):
        a("s_waitcnt vmcnt(%d)" % ((1 - u) * 8))
        unit4(a, LF + 16 * u, FX + 16 * u, AF + 4 * u, ACC, u == 0)
    a("s_lshl_b32 s10, s9, 1")
    a("s_add_u32 s10, s10, s7")
    a("s_mul_i32 s10, s10, %d" % (1792 * 16))
    a("s_lshl_b32 s11, s6, 10")
    a("s_add_u32 s10, s10, s11")
    a("s_add_u32 s10, s10, 0x%x" % GU)
    a("v_lshlrev_b32 v13, 6, v2")
    a("v_add_u32 v13, s10, v13")
    a.nop(8)
    exec_lo16(a)
    for t in range(4):
        a("buffer_store_dwordx4 %s, v13, s[%d:%d], 0 offen offset:%d" % (vr(ACC + 4 * t, 4), SO, SO + 3, 16 * t))
    a.label("k1_end")
    a("s_endpgm")
    return name, 240


def gen_k2(a):
    name = "k2_kernel"
    kernel_begin(a, name)
    RS = 1056
    PL = 0
    MX = PL + 4096
    LS = MX + 256
    CKV = 4608
    prologue(a, 256, "k2_end")
    SC, SO = 44, 48
    a("s_and_b32 s4, s2, 7")
    a("s_lshr_b32 s5, s2, 3")
    a("s_and_b32 s6, s5, 1")
    a("s_lshr_b32 s5, s5, 1")
    a("s_lshl_b32 s5, s5, 3")
    a("s_add_u32 s5, s5, s4")
    a("s_lshr_b32 s7, s5, 5")
    a("s_and_b32 s8, s5, 31")
    a("s_lshl_b32 s9, s5, 17")
    srd(a, SC, P_CKV, 131072, off_sgpr=9)
    srd(a, SO, P_WS, WS_USED)
    QF = 16
    QLD = 139776
    if LW:
        a("s_cmp_lt_u32 s3, 4")
        a("s_cbranch_scc1 k2_comp")
        a("s_and_b32 s3, s3, 3")
        a("v_lshlrev_b32 v5, 4, v1")
        a("s_mul_i32 s10, s3, %d" % (32 * RS))
        a("s_lshl_b32 s11, s3, 15")
        for i in range(32):
            a("s_add_u32 m0, s10, %d" % (CKV + i * RS))
            a("s_add_u32 s12, s11, %d" % (i * 1024))
            a("buffer_load_dwordx4 v5, s[%d:%d], s12 offen lds" % (SC, SC + 3))
        a("s_barrier")
        a("s_waitcnt vmcnt(16)")
        a("s_barrier")
        if ON:
            a("s_barrier")
            a("s_barrier")
        a("s_waitcnt vmcnt(0)")
        a("s_barrier")
        a("s_endpgm")
        a.label("k2_comp")
    a("s_lshl_b32 s9, s7, 5")
    a("s_lshl_b32 s10, s6, 4")
    a("s_add_u32 s9, s9, s10")
    a("s_lshl_b32 s10, s3, 2")
    a("s_add_u32 s10, s10, s9")
    a("s_lshl_b32 s10, s10, 10")
    a("v_lshlrev_b32 v4, 4, v1")
    a("v_add_u32 v4, s10, v4")
    a("s_mov_b32 s10, 0x20000")
    for i in range(4):
        a("buffer_load_dwordx4 %s, v4, s[%d:%d], 0 offen offset:%d" % (vr(144 + 4 * i, 4), SO, SO + 3, QABS + 1024 * i))
        a("buffer_load_dwordx4 %s, v4, s[%d:%d], s10 offen offset:%d" % (vr(160 + 4 * i, 4), SO, SO + 3, QABS + 1024 * i))
    a("v_lshlrev_b32 v5, 4, v1")
    a("s_mul_i32 s10, s3, %d" % (32 * RS))
    a("s_lshl_b32 s11, s3, 15")
    for i in range(0 if LW else 32):
        a("s_add_u32 m0, s10, %d" % (CKV + i * RS))
        a("s_add_u32 s12, s11, %d" % (i * 1024))
        a("buffer_load_dwordx4 v5, s[%d:%d], s12 offen lds" % (SC, SC + 3))
    a("v_mul_u32_u24 v6, %d, v2" % RS)
    a("v_lshlrev_b32 v7, 4, v3")
    a("v_add3_u32 v6, v6, v7, s10")
    AF = 80
    SCO = 144
    a("s_mul_i32 s12, s3, %d" % (4 * RS))
    a("s_add_u32 s12, s12, %d" % QLD)
    a("v_add_u32 v4, s12, v5")
    a("v_mul_u32_u24 v12, %d, v2" % RS)
    a("s_mov_b32 s13, %d" % QLD)
    a("v_add3_u32 v12, v12, v7, s13")
    for i in range(4):
        a("s_waitcnt vmcnt(%d)" % ((0 if LW else 32) + 2 * (3 - i)))
        for q in range(4):
            x, y = 144 + 4 * i + q, 160 + 4 * i + q
            a("v_lshlrev_b32 v8, 16, %s" % v(x))
            a("v_lshlrev_b32 v9, 16, %s" % v(y))
            a("v_and_b32 v10, 0xffff0000, %s" % v(x))
            a("v_and_b32 v11, 0xffff0000, %s" % v(y))
            a("v_add_f32 v8, v8, v9")
            a("v_add_f32 v10, v10, v11")
            a("v_cvt_pk_bf16_f32 %s, v8, v10" % v(x))
        a("ds_write_b128 v4, %s offset:%d" % (vr(144 + 4 * i, 4), i * RS))
    a("s_waitcnt lgkmcnt(0)")
    a("s_barrier")
    for st in range(16):
        a("ds_read_b128 %s, v12 offset:%d" % (vr(QF + 4 * st, 4), st * 64))
    def legacy():
        for T in range(2):
            if LW:
                a("s_barrier")
            else:
                a("s_waitcnt vmcnt(%d)" % (16 if T == 0 else 0))
            for st in range(16):
                a("ds_read_b128 %s, v6 offset:%d" % (vr(AF + 4 * st, 4), CKV + T * 16 * RS + st * 64))
            for st in range(16):
                a("s_waitcnt lgkmcnt(%d)" % (15 - st))
                a("v_mfma_f32_16x16x32_bf16 %s, %s, %s, %s" % (vr(SCO + 4 * T, 4), vr(AF + 4 * st, 4), vr(QF + 4 * st, 4),
                                                              "0" if st == 0 else vr(SCO + 4 * T, 4)))
        a.nop(8)
        a("v_max3_f32 v8, v144, v145, v146")
        a("v_max3_f32 v8, v8, v147, v148")
        a("v_max3_f32 v8, v8, v149, v150")
        a("v_max_f32 v8, v8, v151")
        red_g(a, "v_max_f32", 8, 9)
        a("s_lshl_b32 s12, s3, 6")
        a("v_lshlrev_b32 v10, 2, v2")
        a("v_add_u32 v11, s12, v10")
        exec_lo16(a)
        a("ds_write_b32 v11, v8 offset:%d" % MX)
        exec_all(a)
        a("s_waitcnt lgkmcnt(0)")
        a("s_barrier")
        for w in range(4):
            a("ds_read_b32 %s, v10 offset:%d" % (v(12 + w), MX + 64 * w))
        a("s_waitcnt lgkmcnt(0)")
        a("v_max3_f32 v8, v12, v13, v14")
        a("v_max_f32 v8, v8, v15")
        for r in range(8):
            a("v_sub_f32 %s, %s, v8" % (v(SCO + r), v(SCO + r)))
        for r in range(8):
            a("v_exp_f32 %s, %s" % (v(SCO + r), v(SCO + r)))
        a.nop(1)
        for r in range(4):
            a("v_cvt_pk_bf16_f32 %s, %s, %s" % (v(152 + r), v(SCO + 2 * r), v(SCO + 2 * r + 1)))
        a("v_add_f32 v9, v144, v145")
        for r in range(2, 8):
            a("v_add_f32 v9, v9, %s" % v(SCO + r))
        a("s_lshl_b32 s12, s3, 10")
        a("v_lshlrev_b32 v12, 4, v1")
        a("v_add_u32 v13, s12, v12")
        a("ds_write_b128 v13, v[152:155] offset:%d" % PL)
        red_g(a, "v_add_f32", 9, 14)
        exec_lo16(a)
        a("ds_write_b32 v11, v9 offset:%d" % LS)
        exec_all(a)
        a("s_waitcnt lgkmcnt(0)")
        a("s_barrier")
        PF = 156
        for st in range(4):
            a("ds_read_b128 %s, v12 offset:%d" % (vr(PF + 4 * st, 4), PL + 1024 * st))
        a("v_lshrrev_b32 v13, 2, v2")
        a("v_lshl_add_u32 v13, v3, 2, v13")
        a("v_mul_u32_u24 v13, %d, v13" % RS)
        a("v_and_b32 v14, 3, v2")
        a("v_lshlrev_b32 v14, 3, v14")
        a("s_lshl_b32 s12, s3, 8")
        a("v_add3_u32 v13, v13, v14, s12")
        a("v_add_u32 v14, %d, v13" % (64 * RS))
        ACC = 176
        TB = [16, 48]
        groups = [(st, ch) for st in range(4) for ch in range(2)]

        def issue(k):
            st, ch = groups[k]
            buf = 16 + 16 * (k % 4)
            base = 13 if st < 2 else 14
            for q in range(4):
                ct = 4 * ch + q
                off = CKV + (st & 1) * 32 * RS + ct * 32
                a("ds_read_b64_tr_b16 %s, %s offset:%d" % (vr(buf + 4 * q, 2), v(base), off))
                a("ds_read_b64_tr_b16 %s, %s offset:%d" % (vr(buf + 4 * q + 2, 2), v(base), off + 16 * RS))

        def compute(k):
            st, ch = groups[k]
            buf = 16 + 16 * (k % 4)
            for q in range(4):
                ct = 4 * ch + q
                a("v_mfma_f32_16x16x32_bf16 %s, %s, %s, %s" % (vr(ACC + 4 * ct, 4), vr(buf + 4 * q, 4), vr(PF + 4 * st, 4),
                                                              "0" if st == 0 else vr(ACC + 4 * ct, 4)))
        issue(0)
        for k in range(8):
            if k + 1 < 8:
                issue(k + 1)
                a("s_waitcnt lgkmcnt(8)")
            else:
                a("s_waitcnt lgkmcnt(0)")
            compute(k)
    def online():
        ACC = 176
        MR, LR, SCL, TB0, TB1, PW = 208, 209, 210, 211, 212, 213
        a("v_lshrrev_b32 v13, 2, v2")
        a("v_lshl_add_u32 v13, v3, 2, v13")
        a("v_mul_u32_u24 v13, %d, v13" % RS)
        a("v_and_b32 v14, 3, v2")
        a("v_lshlrev_b32 v14, 3, v14")
        a("s_lshl_b32 s12, s3, 8")
        a("v_add3_u32 %s, v13, v14, s12" % v(TB0))
        a("v_add_u32 %s, %d, %s" % (v(TB1), 64 * RS, v(TB0)))
        a("s_lshl_b32 s12, s3, 6")
        a("v_lshlrev_b32 v10, 2, v2")
        a("v_add_u32 v11, s12, v10")
        a("s_lshr_b32 s12, s3, 1")
        a("s_lshl_b32 s12, s12, 10")
        a("s_and_b32 s13, s3, 1")
        a("s_lshl_b32 s13, s13, 3")
        a("s_add_u32 s12, s12, s13")
        a("v_add_u32 %s, s12, v5" % v(PW))
        PF = 156
        groups = [(st, ch) for st in range(2) for ch in range(2)]
        for T in range(2):
            S0 = SCO + 4 * T
            a("s_barrier")
            for st in range(16):
                a("ds_read_b128 %s, v6 offset:%d" % (vr(AF + 4 * st, 4), CKV + T * 16 * RS + st * 64))
            for st in range(16):
                a("s_waitcnt lgkmcnt(%d)" % (15 - st))
                a("v_mfma_f32_16x16x32_bf16 %s, %s, %s, %s" % (vr(S0, 4), vr(AF + 4 * st, 4), vr(QF + 4 * st, 4),
                                                              "0" if st == 0 else vr(S0, 4)))
            a.nop(8)
            a("v_max3_f32 v8, %s, %s, %s" % (v(S0), v(S0 + 1), v(S0 + 2)))
            a("v_max_f32 v8, v8, %s" % v(S0 + 3))
            red_g(a, "v_max_f32", 8, 9)
            exec_lo16(a)
            a("ds_write_b32 v11, v8 offset:%d" % MX)
            exec_all(a)
            a("s_waitcnt lgkmcnt(0)")
            a("s_barrier")
            for w in range(4):
                a("ds_read_b32 %s, v10 offset:%d" % (v(12 + w), MX + 64 * w))
            a("s_waitcnt lgkmcnt(0)")
            a("v_max3_f32 v8, v12, v13, v14")
            if T == 0:
                a("v_max_f32 %s, v8, v15" % v(MR))
                a("v_mov_b32 v8, %s" % v(MR))
            else:
                a("v_max3_f32 v8, v8, v15, %s" % v(MR))
                a("v_sub_f32 %s, %s, v8" % (v(SCL), v(MR)))
            for r in range(4):
                a("v_sub_f32 %s, %s, v8" % (v(S0 + r), v(S0 + r)))
            for r in range(4):
                a("v_exp_f32 %s, %s" % (v(S0 + r), v(S0 + r)))
            if T == 1:
                a("v_exp_f32 %s, %s" % (v(SCL), v(SCL)))
            a.nop(1)
            for r in range(2):
                a("v_cvt_pk_bf16_f32 %s, %s, %s" % (v(152 + r), v(S0 + 2 * r), v(S0 + 2 * r + 1)))
            a("ds_write_b64 %s, v[152:153] offset:%d" % (v(PW), PL))
            a("v_add_f32 v9, %s, %s" % (v(S0), v(S0 + 1)))
            a("v_add_f32 v9, v9, %s" % v(S0 + 2))
            if T == 0:
                a("v_add_f32 %s, v9, %s" % (v(LR), v(S0 + 3)))
            else:
                a("v_add_f32 v9, v9, %s" % v(S0 + 3))
                a("v_fmac_f32 v9, %s, %s" % (v(LR), v(SCL)))
                red_g(a, "v_add_f32", 9, 14)
                exec_lo16(a)
                a("ds_write_b32 v11, v9 offset:%d" % LS)
                exec_all(a)
                for r in range(32):
                    a("v_mul_f32 %s, %s, %s" % (v(ACC + r), v(ACC + r), v(SCL)))
            a("s_waitcnt lgkmcnt(0)")
            a("s_barrier")
            for st in range(2):
                a("ds_read_b128 %s, v5 offset:%d" % (vr(PF + 4 * st, 4), PL + 1024 * st))

            def issue(k):
                st, ch = groups[k]
                buf = AF + 16 * (k % 4)
                base = TB0 if st == 0 else TB1
                for q in range(4):
                    ct = 4 * ch + q
                    off = CKV + T * 16 * RS + ct * 32
                    a("ds_read_b64_tr_b16 %s, %s offset:%d" % (vr(buf + 4 * q, 2), v(base), off))
                    a("ds_read_b64_tr_b16 %s, %s offset:%d" % (vr(buf + 4 * q + 2, 2), v(base), off + 32 * RS))

            def compute(k):
                st, ch = groups[k]
                buf = AF + 16 * (k % 4)
                for q in range(4):
                    ct = 4 * ch + q
                    a("v_mfma_f32_16x16x32_bf16 %s, %s, %s, %s" % (vr(ACC + 4 * ct, 4), vr(buf + 4 * q, 4), vr(PF + 4 * st, 4),
                                                                  "0" if (st == 0 and T == 0) else vr(ACC + 4 * ct, 4)))
            issue(0)
            for k in range(4):
                if k + 1 < 4:
                    issue(k + 1)
                    a("s_waitcnt lgkmcnt(8)")
                else:
                    a("s_waitcnt lgkmcnt(0)")
                compute(k)
    if LW and ON:
        online()
    else:
        legacy()
    ACC = 176
    a("s_lshl_b32 s12, s9, 15")
    a("s_lshl_b32 s13, s8, 10")
    a("s_add_u32 s12, s12, s13")
    a("s_lshl_b32 s13, s3, 8")
    a("s_add_u32 s12, s12, s13")
    a("s_add_u32 s12, s12, 0x%x" % PART)
    a("v_lshlrev_b32 v13, 15, v2")
    a("v_lshlrev_b32 v14, 4, v3")
    a("v_add3_u32 v13, v13, v14, s12")
    a.nop(4)
    for ct in range(8):
        a("v_cvt_pk_bf16_f32 %s, %s, %s" % (v(16 + 2 * ct), v(ACC + 4 * ct), v(ACC + 4 * ct + 1)))
        a("v_cvt_pk_bf16_f32 %s, %s, %s" % (v(16 + 2 * ct + 1), v(ACC + 4 * ct + 2), v(ACC + 4 * ct + 3)))
    for p in range(4):
        a("buffer_store_dwordx4 %s, v13, s[%d:%d], 0 offen offset:%d" % (vr(16 + 4 * p, 4), SO, SO + 3, 64 * p))
    a("s_cmp_lg_u32 s3, 0")
    a("s_cbranch_scc1 k2_end")
    for w in range(4):
        a("ds_read_b32 %s, v10 offset:%d" % (v(40 + w), LS + 64 * w))
    a("s_lshl_b32 s12, s9, 8")
    a("s_lshl_b32 s13, s8, 3")
    a("s_add_u32 s12, s12, s13")
    a("s_add_u32 s12, s12, 0x%x" % STATS)
    a("v_lshlrev_b32 v13, 8, v2")
    a("v_add_u32 v13, s12, v13")
    a("s_waitcnt lgkmcnt(0)")
    a("v_add_f32 v40, v40, v41")
    a("v_add_f32 v42, v42, v43")
    a("v_add_f32 v9, v40, v42")
    exec_lo16(a)
    a("buffer_store_dwordx2 v[8:9], v13, s[%d:%d], 0 offen" % (SO, SO + 3))
    a.label("k2_end")
    a("s_endpgm")
    return name, (216 if (LW and ON) else 208), QLD + 16 * RS


def gen_k3(a):
    name = "k3_kernel"
    kernel_begin(a, name)
    LAT = 0
    RED = 1280
    CTX = RED + 16384
    HA = CTX + 1280
    prologue(a, 312, "k3_end")
    SO, SV, SW = 44, 48, 52
    srd(a, SO, P_WS, WS_USED)
    a("s_cmp_ge_u32 s2, 256")
    a("s_cbranch_scc1 k3_ffn")
    a("s_and_b32 s4, s2, 7")
    a("s_lshr_b32 s5, s2, 3")
    a("s_lshr_b32 s6, s5, 3")
    a("s_lshl_b32 s4, s4, 2")
    a("s_add_u32 s6, s6, s4")
    a("s_lshr_b32 s7, s5, 1")
    a("s_and_b32 s7, s7, 3")
    a("s_and_b32 s8, s5, 1")
    srd(a, SV, P_WUV, 4194304)
    srd(a, SW, P_WO, 4194304)
    a("s_mov_b32 s13, 4096")
    ST = 16
    a("s_lshl_b32 s9, s3, 5")
    a("s_add_u32 s9, s9, s6")
    a("s_lshl_b32 s10, s9, 8")
    a("s_add_u32 s10, s10, 0x%x" % STATS)
    a("v_lshlrev_b32 v4, 6, v3")
    a("v_add_u32 v4, s10, v4")
    for i in range(4):
        a("buffer_load_dwordx4 %s, v4, s[%d:%d], 0 offen offset:%d" % (vr(ST + 4 * i, 4), SO, SO + 3, 16 * i))
    LP = 32
    a("s_lshl_b32 s10, s9, 15")
    a("s_lshl_b32 s11, s7, 8")
    a("s_add_u32 s10, s10, s11")
    a("s_add_u32 s10, s10, 0x%x" % PART)
    a("v_lshlrev_b32 v4, 13, v3")
    a("v_lshlrev_b32 v5, 4, v2")
    a("v_add3_u32 v4, v4, v5, s10")
    for i in range(8):
        a("buffer_load_dwordx4 %s, v4, s[%d:%d], %s offen offset:%d" % (vr(LP + 4 * i, 4), SO, SO + 3,
                                                                       "0" if i < 4 else "s13", (i & 3) * 1024))
    LV = 64
    a("s_lshl_b32 s10, s7, 20")
    a("s_lshl_b32 s11, s3, 18")
    a("s_add_u32 s10, s10, s11")
    a("s_lshl_b32 s11, s6, 8")
    a("s_add_u32 s10, s10, s11")
    a("v_lshlrev_b32 v4, 15, v3")
    a("v_add3_u32 v4, v4, v5, s10")
    for i in range(8):
        a("s_mov_b32 s12, 0x%x" % ((16 * (i >> 2) + (i & 3)) * 8192))
        a("buffer_load_dwordx4 %s, v4, s[%d:%d], s12 offen" % (vr(LV + 4 * i, 4), SV, SV + 3))
    LO = 96
    a("s_lshl_b32 s10, s6, 17")
    a("s_lshl_b32 s11, s3, 15")
    a("s_add_u32 s10, s10, s11")
    a("s_lshl_b32 s11, s8, 9")
    a("s_add_u32 s10, s10, s11")
    a("v_lshlrev_b32 v4, 13, v3")
    a("v_add3_u32 v4, v4, v5, s10")
    for cb in range(2):
        for i in range(8):
            a("buffer_load_dwordx4 %s, v4, s[%d:%d], %s offen offset:%d" % (
                vr(LO + 32 * cb + 4 * i, 4), SW, SW + 3, "0" if i < 4 else "s13", (i & 3) * 1024 + cb * 256))
    a("s_waitcnt vmcnt(32)")
    a("v_max3_f32 v6, v16, v18, v20")
    a("v_max3_f32 v6, v6, v22, v24")
    a("v_max3_f32 v6, v6, v26, v28")
    a("v_max_f32 v6, v6, v30")
    red_g(a, "v_max_f32", 6, 7)
    for i in range(8):
        a("v_sub_f32 %s, %s, v6" % (v(ST + 2 * i), v(ST + 2 * i)))
    for i in range(8):
        a("v_exp_f32 %s, %s" % (v(ST + 2 * i), v(ST + 2 * i)))
    a.nop(1)
    a("v_mul_f32 v7, v16, v17")
    for i in range(1, 8):
        a("v_fma_f32 v7, %s, %s, v7" % (v(ST + 2 * i), v(ST + 2 * i + 1)))
    red_g(a, "v_add_f32", 7, 8)
    a("v_rcp_f32 v7, v7")
    a.nop(1)
    for i in range(8):
        a("v_mul_f32 %s, %s, v7" % (v(ST + 2 * i), v(ST + 2 * i)))
    AW = 8
    for p in range(4):
        a("v_cvt_pk_bf16_f32 %s, %s, %s" % (v(AW + p), v(ST + 4 * p), v(ST + 4 * p + 2)))
    ACC = 192
    FX = 160
    a("s_waitcnt vmcnt(24)")
    unit8(a, LP, FX, AW, ACC, True)
    a.nop(8)
    for p in range(4):
        a("v_cvt_pk_bf16_f32 %s, %s, %s" % (v(16 + p), v(ACC + 8 * p), v(ACC + 8 * p + 4)))
    a("s_mul_i32 s10, s3, 320")
    a("v_add_u32 v4, s10, v5")
    exec_lo16(a)
    a("ds_write_b128 v4, v[16:19] offset:%d" % LAT)
    exec_all(a)
    a("s_waitcnt lgkmcnt(0)")
    a("s_barrier")
    a("v_and_b32 v6, 3, v1")
    a("v_mul_u32_u24 v6, 320, v6")
    a("v_lshl_add_u32 v6, v3, 4, v6")
    a("s_lshl_b32 s10, s3, 6")
    a("v_add_u32 v6, s10, v6")
    a("ds_read_b128 v[8:11], v6 offset:%d" % LAT)
    a("s_waitcnt vmcnt(16) lgkmcnt(0)")
    unit8(a, LV, FX, 8, ACC, True)
    a.nop(8)
    a("s_lshl_b32 s10, s3, 12")
    a("v_add_u32 v4, s10, v5")
    exec_lo16(a)
    for t in range(8):
        a("ds_write_b128 v4, %s offset:%d" % (vr(ACC + 4 * t, 4), RED + 256 * t))
    exec_all(a)
    a("s_waitcnt lgkmcnt(0)")
    a("s_barrier")
    a("s_cmp_ge_u32 s3, 2")
    a("s_cbranch_scc1 k3_sumdone")
    a("v_lshlrev_b32 v7, 4, v0")
    for w in range(4):
        a("ds_read_b128 %s, v7 offset:%d" % (vr(16 + 4 * w, 4), RED + 4096 * w))
    a("v_lshrrev_b32 v12, 4, v0")
    a("v_lshlrev_b32 v13, 4, v2")
    a("v_lshl_add_u32 v12, v12, 1, v13")
    a("s_waitcnt lgkmcnt(0)")
    for b in range(4):
        a("v_add_f32 %s, %s, %s" % (v(16 + b), v(16 + b), v(20 + b)))
        a("v_add_f32 %s, %s, %s" % (v(24 + b), v(24 + b), v(28 + b)))
    for b in range(4):
        a("v_add_f32 %s, %s, %s" % (v(16 + b), v(16 + b), v(24 + b)))
    a("v_cvt_pk_bf16_f32 v20, v16, v17")
    a("v_cvt_pk_bf16_f32 v21, v18, v19")
    a("ds_write_b16 v12, v20 offset:%d" % (CTX))
    a("ds_write_b16_d16_hi v12, v20 offset:%d" % (CTX + 320))
    a("ds_write_b16 v12, v21 offset:%d" % (CTX + 640))
    a("ds_write_b16_d16_hi v12, v21 offset:%d" % (CTX + 960))
    a("s_waitcnt lgkmcnt(0)")
    a.label("k3_sumdone")
    a("s_barrier")
    a("ds_read_b128 v[8:11], v6 offset:%d" % CTX)
    a("s_waitcnt vmcnt(8) lgkmcnt(0)")
    unit8(a, LO, FX, 8, ACC, True)
    a("s_waitcnt vmcnt(0)")
    unit8(a, LO + 32, LO, 8, ACC + 32, True)
    a.nop(8)
    exec_lo16(a)
    for cb in range(2):
        for t in range(8):
            a("ds_write_b128 v4, %s offset:%d" % (vr(ACC + 32 * cb + 4 * t, 4), RED + 2048 * cb + 256 * t))
    exec_all(a)
    a("s_waitcnt lgkmcnt(0)")
    a("s_barrier")
    a("v_lshlrev_b32 v7, 4, v0")
    for w in range(4):
        a("ds_read_b128 %s, v7 offset:%d" % (vr(16 + 4 * w, 4), RED + 4096 * w))
    a("s_lshl_b32 s10, s6, 2")
    a("s_add_u32 s10, s10, s7")
    a("s_lshl_b32 s10, s10, 13")
    a("s_lshl_b32 s11, s8, 12")
    a("s_add_u32 s10, s10, s11")
    a("s_add_u32 s10, s10, 0x%x" % SPART)
    a("v_add_u32 v12, s10, v7")
    a("s_waitcnt lgkmcnt(0)")
    for b in range(4):
        a("v_add_f32 %s, %s, %s" % (v(16 + b), v(16 + b), v(20 + b)))
        a("v_add_f32 %s, %s, %s" % (v(24 + b), v(24 + b), v(28 + b)))
    for b in range(4):
        a("v_add_f32 %s, %s, %s" % (v(16 + b), v(16 + b), v(24 + b)))
    a("buffer_store_dwordx4 v[16:19], v12, s[%d:%d], 0 offen" % (SO, SO + 3))
    a("s_endpgm")
    a.label("k3_ffn")
    a("s_sub_u32 s4, s2, 256")
    srd(a, SW, P_WD, 1792 * 1024)
    a("s_mov_b32 s13, 4096")
    GL = 16
    a("v_and_b32 v4, 31, v1")
    a("v_lshrrev_b32 v5, 5, v1")
    a("v_mul_u32_u24 v5, %d, v5" % (8 * 1792))
    a("s_lshl_b32 s10, s4, 5")
    a("v_add3_u32 v5, v5, v4, s10")
    a("v_lshlrev_b32 v5, 4, v5")
    a("v_add_u32 v5, 0x%x, v5" % GU)
    for kk in range(4):
        for mat in range(2):
            a("s_mov_b32 s12, 0x%x" % ((kk * 2 + mat) * 1792 * 16))
            a("buffer_load_dwordx4 %s, v5, s[%d:%d], s12 offen" % (vr(GL + 8 * kk + 4 * mat, 4), SO, SO + 3))
    LD = 64
    a("s_lshl_b32 s10, s4, 15")
    a("s_lshl_b32 s11, s3, 8")
    a("s_add_u32 s10, s10, s11")
    a("v_lshlrev_b32 v6, 13, v3")
    a("v_lshlrev_b32 v7, 4, v2")
    a("v_add3_u32 v6, v6, v7, s10")
    for i in range(8):
        a("buffer_load_dwordx4 %s, v6, s[%d:%d], %s offen offset:%d" % (vr(LD + 4 * i, 4), SW, SW + 3,
                                                                       "0" if i < 4 else "s13", (i & 3) * 1024))
    a("s_waitcnt vmcnt(8)")
    for q in range(8):
        a("v_add_f32 %s, %s, %s" % (v(GL + q), v(GL + q), v(GL + 8 + q)))
        a("v_add_f32 %s, %s, %s" % (v(GL + 16 + q), v(GL + 16 + q), v(GL + 24 + q)))
    for q in range(8):
        a("v_add_f32 %s, %s, %s" % (v(GL + q), v(GL + q), v(GL + 16 + q)))
    for q in range(8):
        a("v_mov_b32 %s, %s" % (v(GL + 8 + q), v(GL + q)))
    a.nop(2)
    for q in range(8):
        a("v_permlane32_swap_b32 %s, %s" % (v(GL + q), v(GL + 8 + q)))
    a.nop(1)
    for q in range(8):
        a("v_add_f32 %s, %s, %s" % (v(GL + q), v(GL + q), v(GL + 8 + q)))
    for p in range(4):
        a("v_cvt_pk_bf16_f32 %s, %s, %s" % (v(24 + p), v(GL + 2 * p), v(GL + 2 * p + 1)))
    for p in range(4):
        a("v_lshlrev_b32 %s, 16, %s" % (v(GL + 2 * p), v(24 + p)))
        a("v_and_b32 %s, 0xffff0000, %s" % (v(GL + 2 * p + 1), v(24 + p)))
    for b in range(4):
        silu_inplace(a, GL + b, 28 + b)
    a("v_cvt_pk_bf16_f32 v24, v16, v17")
    a("v_cvt_pk_bf16_f32 v25, v18, v19")
    a("v_lshlrev_b32 v16, 16, v24")
    a("v_and_b32 v17, 0xffff0000, v24")
    a("v_lshlrev_b32 v18, 16, v25")
    a("v_and_b32 v19, 0xffff0000, v25")
    for b in range(4):
        a("v_mul_f32 %s, %s, %s" % (v(16 + b), v(16 + b), v(20 + b)))
    a("v_cvt_pk_bf16_f32 v24, v16, v17")
    a("v_cvt_pk_bf16_f32 v25, v18, v19")
    a("s_mul_i32 s10, s3, 320")
    a("v_lshlrev_b32 v8, 1, v4")
    a("v_add_u32 v8, s10, v8")
    a("ds_write_b16 v8, v24 offset:%d" % (HA))
    a("ds_write_b16_d16_hi v8, v24 offset:%d" % (HA + 80))
    a("ds_write_b16 v8, v25 offset:%d" % (HA + 160))
    a("ds_write_b16_d16_hi v8, v25 offset:%d" % (HA + 240))
    a("v_and_b32 v9, 3, v1")
    a("v_mul_u32_u24 v9, 80, v9")
    a("v_lshl_add_u32 v9, v3, 4, v9")
    a("v_add_u32 v9, s10, v9")
    a("s_waitcnt lgkmcnt(0)")
    a("ds_read_b128 v[8:11], v9 offset:%d" % HA)
    a("s_waitcnt vmcnt(0) lgkmcnt(0)")
    unit8(a, LD, 96, 8, 128, True)
    a("s_lshl_b32 s10, s4, 13")
    a("s_lshl_b32 s11, s3, 11")
    a("s_add_u32 s10, s10, s11")
    a("s_add_u32 s10, s10, 0x%x" % YPART)
    a("v_add_u32 v4, s10, v7")
    a.nop(8)
    exec_lo16(a)
    for t in range(8):
        a("buffer_store_dwordx4 %s, v4, s[%d:%d], 0 offen offset:%d" % (vr(128 + 4 * t, 4), SO, SO + 3, 256 * t))
    a.label("k3_end")
    a("s_endpgm")
    return name, 256, HA + 1280


def gen_k4(a):
    name = "k4_kernel"
    kernel_begin(a, name)
    prologue(a, 64, "k4_end")
    SS, SY, SX, SOUT = 44, 48, 52, 56
    srd(a, SS, P_WS, 128 * 8192, off=SPART)
    srd(a, SY, P_WS, 56 * 8192, off=YPART)
    srd(a, SX, P_X, 4096)
    srd(a, SOUT, P_OUT, 4096)
    a("s_mov_b32 s13, 8192")
    a("s_mov_b32 s12, 16384")
    a("s_mov_b32 s11, 24576")
    a("v_and_b32 v4, 7, v0")
    a("v_lshrrev_b32 v5, 3, v0")
    a("s_lshl_b32 s10, s2, 7")
    a("v_lshlrev_b32 v6, 4, v4")
    a("v_add_u32 v6, s10, v6")
    a("v_lshlrev_b32 v7, 15, v5")
    a("v_add_u32 v7, v7, v6")
    a("buffer_load_dwordx4 v[16:19], v7, s[%d:%d], 0 offen" % (SS, SS + 3))
    a("buffer_load_dwordx4 v[20:23], v7, s[%d:%d], s13 offen" % (SS, SS + 3))
    a("buffer_load_dwordx4 v[24:27], v7, s[%d:%d], s12 offen" % (SS, SS + 3))
    a("buffer_load_dwordx4 v[28:31], v7, s[%d:%d], s11 offen" % (SS, SS + 3))
    a("v_lshlrev_b32 v7, 14, v5")
    a("v_add_u32 v7, v7, v6")
    a("buffer_load_dwordx4 v[32:35], v7, s[%d:%d], 0 offen" % (SY, SY + 3))
    a("buffer_load_dwordx4 v[36:39], v7, s[%d:%d], s13 offen" % (SY, SY + 3))
    a("v_lshrrev_b32 v8, 2, v0")
    a("s_lshl_b32 s10, s2, 3")
    a("v_add_u32 v8, s10, v8")
    a("v_and_b32 v9, 15, v8")
    a("v_lshrrev_b32 v10, 4, v8")
    a("v_and_b32 v10, 7, v10")
    a("v_lshrrev_b32 v11, 7, v8")
    a("v_lshlrev_b32 v11, 7, v11")
    a("v_lshl_add_u32 v11, v9, 3, v11")
    a("v_add_u32 v11, v11, v10")
    a("v_and_b32 v12, 3, v0")
    a("v_lshl_add_u32 v11, v12, 9, v11")
    a("v_lshlrev_b32 v11, 1, v11")
    a("buffer_load_ushort v13, v11, s[%d:%d], 0 offen" % (SX, SX + 3))
    a("s_waitcnt vmcnt(1)")
    for q in range(4):
        a("v_add_f32 %s, %s, %s" % (v(16 + q), v(16 + q), v(20 + q)))
        a("v_add_f32 %s, %s, %s" % (v(24 + q), v(24 + q), v(28 + q)))
        a("v_add_f32 %s, %s, %s" % (v(20 + q), v(32 + q), v(36 + q)))
    for q in range(4):
        a("v_add_f32 %s, %s, %s" % (v(16 + q), v(16 + q), v(24 + q)))
    a.nop(2)
    for q in range(8):
        a("v_add_f32_dpp %s, %s, %s row_ror:8 row_mask:0xf bank_mask:0xf" % (v(24 + q), v(16 + q), v(16 + q)))
    for q in range(8):
        a("v_mov_b32 %s, %s" % (v(16 + q), v(24 + q)))
    a.nop(2)
    for q in range(8):
        a("v_permlane16_swap_b32 %s, %s" % (v(16 + q), v(24 + q)))
    a.nop(1)
    for q in range(8):
        a("v_add_f32 %s, %s, %s" % (v(16 + q), v(16 + q), v(24 + q)))
    for q in range(8):
        a("v_mov_b32 %s, %s" % (v(24 + q), v(16 + q)))
    a.nop(2)
    for q in range(8):
        a("v_permlane32_swap_b32 %s, %s" % (v(16 + q), v(24 + q)))
    a.nop(1)
    for q in range(8):
        a("v_add_f32 %s, %s, %s" % (v(16 + q), v(16 + q), v(24 + q)))
    a("s_lshl_b32 s10, s3, 8")
    a("v_lshlrev_b32 v14, 5, v4")
    a("v_add_u32 v14, s10, v14")
    a("s_mov_b64 exec, 0xff")
    a("ds_write_b128 v14, v[16:19]")
    a("ds_write_b128 v14, v[20:23] offset:16")
    exec_all(a)
    a("s_waitcnt lgkmcnt(0)")
    a("s_barrier")
    a("s_cmp_lg_u32 s3, 0")
    a("s_cbranch_scc1 k4_end")
    a("s_mov_b32 exec_lo, -1")
    a("s_mov_b32 exec_hi, 0")
    a("v_lshrrev_b32 v14, 2, v0")
    a("v_lshlrev_b32 v14, 5, v14")
    a("v_lshl_add_u32 v14, v12, 2, v14")
    for w in range(4):
        a("ds_read_b32 %s, v14 offset:%d" % (v(16 + w), 256 * w))
        a("ds_read_b32 %s, v14 offset:%d" % (v(20 + w), 256 * w + 16))
    a("s_waitcnt vmcnt(0) lgkmcnt(0)")
    a("v_add_f32 v16, v16, v17")
    a("v_add_f32 v18, v18, v19")
    a("v_add_f32 v20, v20, v21")
    a("v_add_f32 v22, v22, v23")
    a("v_add_f32 v16, v16, v18")
    a("v_add_f32 v20, v20, v22")
    a("v_cvt_pk_bf16_f32 v24, v16, v20")
    a("v_lshlrev_b32 v16, 16, v24")
    a("v_and_b32 v20, 0xffff0000, v24")
    silu_inplace(a, 20, 25)
    a("v_cvt_pk_bf16_f32 v24, v20, v20")
    a("v_lshlrev_b32 v20, 16, v24")
    a("v_mul_f32 v16, v16, v20")
    a("v_cvt_pk_bf16_f32 v24, v16, v16")
    a("v_lshlrev_b32 v16, 16, v24")
    a("v_lshlrev_b32 v13, 16, v13")
    a("v_add_f32 v16, v16, v13")
    a("v_cvt_pk_bf16_f32 v24, v16, v16")
    a("buffer_store_short v24, v11, s[%d:%d], 0 offen" % (SOUT, SOUT + 3))
    a.label("k4_end")
    a("s_endpgm")
    return name, 40, 1024


def main():
    hdr = []
    a = Asm()
    a.raw('.amdgcn_target "amdgcn-amd-amdhsa--gfx950"')
    a.raw(".text")
    n1, v1 = gen_k1(a)
    n2, v2, l2 = gen_k2(a)
    n3, v3, l3 = gen_k3(a)
    n4, v4, l4 = gen_k4(a)
    a.raw('.section .rodata,"a"')
    for n, nv in ((n1, v1), (n2, v2), (n3, v3), (n4, v4)):
        a.raw(".p2align 6")
        kernel_desc(a, n, nv)
    hdr.append("; @launch kernel=%s grid=(368,1,1) block=(256,1,1) lds=14336" % n1)
    hdr.append("; @launch kernel=%s grid=(256,1,1) block=(%d,1,1) lds=%d" % (n2, 512 if LW else 256, l2))
    hdr.append("; @launch kernel=%s grid=(312,1,1) block=(256,1,1) lds=%d" % (n3, l3))
    hdr.append("; @launch kernel=%s grid=(64,1,1) block=(256,1,1) lds=%d" % (n4, l4))
    out = "\n".join(hdr + a.L) + "\n"
    path = sys.argv[1] if len(sys.argv) > 1 else "cdna_kernels/%s.s" % NAME
    open(path, "w").write(out)


if __name__ == "__main__":
    main()
```

```python
import sys

NAME = "recurrent_scan__compressed_kv_cla__swiglu_ffn__decode"

QABS = 0x000000
GU = 0x040000
STATS = 0x0C0000
PART = 0x100000
SPART = 0x600000
YPART = 0x700000
WS_USED = 0x800000

SRD3 = 0x00020000


def v(n):
    return "v%d" % n


def vr(n, c):
    return "v[%d:%d]" % (n, n + c - 1)


def s(n):
    return "s%d" % n


def sr(n, c):
    return "s[%d:%d]" % (n, n + c - 1)


class Asm:
    def __init__(self):
        self.L = []

    def __call__(self, t):
        self.L.append("    " + t)

    def label(self, t):
        self.L.append(t + ":")

    def c(self, t):
        self.L.append("    ; " + t)

    def raw(self, t):
        self.L.append(t)

    def nop(self, n):
        while n > 0:
            k = min(n, 16)
            self("s_nop %d" % (k - 1))
            n -= k


P_X, P_CKV, P_WQ, P_WUK, P_WUV, P_WO, P_BX, P_WG, P_WU, P_WD, P_OUT, P_DBG, P_WS = [16 + 2 * i for i in range(13)]
S_SELLO, S_SELHI = 14, 15
S_WV = 3
import os
LW = int(os.environ.get('LW', '1'))
ON = int(os.environ.get('ON', '1'))
STG = int(os.environ.get('STG', '0'))
DEBUG = os.environ.get("DEBUG", "0") == "1"
STAMP = 0x780000


class Stamps:
    def __init__(self, a):
        self.a = a
        self.n = 0

    def __call__(self):
        if DEBUG:
            self.a("s_memrealtime s[%d:%d]" % (70 + 2 * self.n, 71 + 2 * self.n))
            self.n += 1

    def flush(self, vt, SO):
        if not DEBUG:
            return
        a = self.a
        a("s_waitcnt lgkmcnt(0)")
        a("s_lshl_b32 s4, s2, 2")
        a("s_add_u32 s4, s4, s3")
        a("s_lshl_b32 s4, s4, 7")
        a("s_add_u32 s4, s4, 0x%x" % STAMP)
        a("v_mov_b32 v%d, s4" % vt)
        a("s_mov_b64 exec, 1")
        for i in range(self.n):
            a("v_mov_b32 v%d, s%d" % (vt + 2, 70 + 2 * i))
            a("v_mov_b32 v%d, s%d" % (vt + 3, 71 + 2 * i))
            a("buffer_store_dwordx2 v[%d:%d], v%d, s[%d:%d], 0 offen offset:%d" % (vt + 2, vt + 3, vt, SO, SO + 3, 8 * i))
            a("s_nop 1")
        a("s_mov_b64 exec, -1")


def kernel_begin(a, name):
    a.raw(".globl %s" % name)
    a.raw(".p2align 8")
    a.raw(".type %s,@function" % name)
    a.label(name)


def kernel_desc(a, name, nvgpr, nsgpr=102):
    nv = (nvgpr + 3) // 4 * 4
    a.raw(".amdhsa_kernel %s" % name)
    a.raw("  .amdhsa_next_free_vgpr %d" % nv)
    a.raw("  .amdhsa_next_free_sgpr %d" % nsgpr)
    a.raw("  .amdhsa_accum_offset %d" % nv)
    a.raw("  .amdhsa_group_segment_fixed_size 0")
    a.raw("  .amdhsa_kernarg_size 104")
    a.raw("  .amdhsa_user_sgpr_count 2")
    a.raw("  .amdhsa_user_sgpr_kernarg_segment_ptr 1")
    a.raw("  .amdhsa_system_sgpr_workgroup_id_x 1")
    a.raw(".end_amdhsa_kernel")


def prologue(a, nwg, endlabel):
    a("s_cmp_ge_u32 s2, %d" % nwg)
    a("s_cbranch_scc1 %s" % endlabel)
    a("s_load_dwordx16 s[16:31], s[0:1], 0")
    a("s_load_dwordx8 s[32:39], s[0:1], 64")
    a("s_load_dwordx2 s[40:41], s[0:1], 96")
    a("v_lshrrev_b32 v3, 6, v0")
    a("v_and_b32 v1, 63, v0")
    a("v_readfirstlane_b32 s3, v3")
    a("v_and_b32 v2, 15, v1")
    a("v_lshrrev_b32 v3, 4, v1")
    a("s_mov_b32 s%d, 0x05040100" % S_SELLO)
    a("s_mov_b32 s%d, 0x07060302" % S_SELHI)
    a("s_waitcnt lgkmcnt(0)")


def srd(a, d, p, size, off=None, off_sgpr=None):
    if off_sgpr is not None:
        a("s_add_u32 s%d, s%d, s%d" % (d, p, off_sgpr))
        a("s_addc_u32 s%d, s%d, 0" % (d + 1, p + 1))
        a("s_and_b32 s%d, s%d, 0xffff" % (d + 1, d + 1))
    elif off:
        a("s_add_u32 s%d, s%d, 0x%x" % (d, p, off))
        a("s_addc_u32 s%d, s%d, 0" % (d + 1, p + 1))
        a("s_and_b32 s%d, s%d, 0xffff" % (d + 1, d + 1))
    else:
        a("s_mov_b32 s%d, s%d" % (d, p))
        a("s_and_b32 s%d, s%d, 0xffff" % (d + 1, p + 1))
    a("s_mov_b32 s%d, 0x%x" % (d + 2, size))
    a("s_mov_b32 s%d, 0x%x" % (d + 3, SRD3))


def red_g(a, op, x, t):
    a("v_mov_b32 %s, %s" % (v(t), v(x)))
    a.nop(2)
    a("v_permlane16_swap_b32 %s, %s" % (v(x), v(t)))
    a.nop(1)
    a("%s %s, %s, %s" % (op, v(x), v(x), v(t)))
    a("v_mov_b32 %s, %s" % (v(t), v(x)))
    a.nop(2)
    a("v_permlane32_swap_b32 %s, %s" % (v(x), v(t)))
    a.nop(1)
    a("%s %s, %s, %s" % (op, v(x), v(x), v(t)))


def red_16(a, op, x, t):
    a.nop(2)
    a("%s_dpp %s, %s, %s quad_perm:[1,0,3,2] row_mask:0xf bank_mask:0xf" % (op, v(t), v(x), v(x)))
    a.nop(2)
    a("%s_dpp %s, %s, %s quad_perm:[2,3,0,1] row_mask:0xf bank_mask:0xf" % (op, v(x), v(t), v(t)))
    a.nop(2)
    a("%s_dpp %s, %s, %s row_half_mirror row_mask:0xf bank_mask:0xf" % (op, v(t), v(x), v(x)))
    a.nop(2)
    a("%s_dpp %s, %s, %s row_mirror row_mask:0xf bank_mask:0xf" % (op, v(x), v(t), v(t)))


def red_64(a, op, x, t):
    red_16(a, op, x, t)
    red_g(a, op, x, t)


def layernorm(a, vx, t, vaddr):
    f = t
    d = t + 8
    S, T, M, R, VB, MB, SQ, RC = [t + 16 + i for i in range(8)]
    for i in range(4):
        a("v_lshlrev_b32 %s, 16, %s" % (v(f + 2 * i), v(vx + i)))
        a("v_and_b32 %s, 0xffff0000, %s" % (v(f + 2 * i + 1), v(vx + i)))
    a("v_add_f32 %s, %s, %s" % (v(S), v(f), v(f + 1)))
    for i in range(2, 8):
        a("v_add_f32 %s, %s, %s" % (v(S), v(S), v(f + i)))
    red_64(a, "v_add_f32", S, T)
    a("v_mul_f32 %s, 0x3b000000, %s" % (v(M), v(S)))
    for i in range(8):
        a("v_sub_f32 %s, %s, %s" % (v(d + i), v(f + i), v(M)))
    a("v_mul_f32 %s, %s, %s" % (v(S), v(d), v(d)))
    for i in range(1, 8):
        a("v_fma_f32 %s, %s, %s, %s" % (v(S), v(d + i), v(d + i), v(S)))
    red_64(a, "v_add_f32", S, T)
    a("v_mul_f32 %s, 0x3b000000, %s" % (v(S), v(S)))
    a("v_cvt_pk_bf16_f32 %s, %s, %s" % (v(R), v(S), v(M)))
    a("v_lshlrev_b32 %s, 16, %s" % (v(VB), v(R)))
    a("v_and_b32 %s, 0xffff0000, %s" % (v(MB), v(R)))
    a("v_add_f32 %s, 0x3727c5ac, %s" % (v(VB), v(VB)))
    a("v_cvt_pk_bf16_f32 %s, %s, %s" % (v(R), v(VB), v(VB)))
    a("v_lshlrev_b32 %s, 16, %s" % (v(VB), v(R)))
    a("v_sqrt_f32 %s, %s" % (v(SQ), v(VB)))
    a.nop(1)
    a("v_cvt_pk_bf16_f32 %s, %s, %s" % (v(R), v(SQ), v(SQ)))
    a("v_lshlrev_b32 %s, 16, %s" % (v(SQ), v(R)))
    a("v_rcp_f32 %s, %s" % (v(RC), v(SQ)))
    for i in range(8):
        a("v_sub_f32 %s, %s, %s" % (v(d + i), v(f + i), v(MB)))
    for i in range(4):
        a("v_cvt_pk_bf16_f32 %s, %s, %s" % (v(f + i), v(d + 2 * i), v(d + 2 * i + 1)))
    for i in range(4):
        a("v_lshlrev_b32 %s, 16, %s" % (v(d + 2 * i), v(f + i)))
        a("v_and_b32 %s, 0xffff0000, %s" % (v(d + 2 * i + 1), v(f + i)))
    for i in range(8):
        a("v_mul_f32 %s, %s, %s" % (v(f + i), v(d + i), v(RC)))
    for i in range(8):
        a("v_fma_f32 %s, -%s, %s, %s" % (v(d + i), v(f + i), v(SQ), v(d + i)))
    for i in range(8):
        a("v_fma_f32 %s, %s, %s, %s" % (v(f + i), v(d + i), v(RC), v(f + i)))
    for i in range(4):
        a("v_cvt_pk_bf16_f32 %s, %s, %s" % (v(d + i), v(f + 2 * i), v(f + 2 * i + 1)))
    a("ds_write_b128 %s, %s" % (v(vaddr), vr(d, 4)))


def unit8(a, L, F, A, acc, first):
    def perms(t):
        c, e = t >> 1, t & 1
        for p in range(4):
            a("v_perm_b32 %s, %s, %s, s%d" % (v(F + 4 * t + p), v(L + 4 * (2 * p + 1) + c), v(L + 4 * (2 * p) + c),
                                              S_SELHI if e else S_SELLO))

    def mf(t):
        a("v_mfma_f32_16x16x32_bf16 %s, %s, %s, %s" % (vr(acc + 4 * t, 4), vr(A, 4), vr(F + 4 * t, 4),
                                                       "0" if first else vr(acc + 4 * t, 4)))
    perms(0)
    for t in range(1, 8):
        perms(t)
        mf(t - 1)
    a.nop(2)
    mf(7)


def unit4(a, L, F, A, acc, first):
    def perms(t):
        c, e = t >> 1, t & 1
        for p in range(4):
            a("v_perm_b32 %s, %s, %s, s%d" % (v(F + 4 * t + p), v(L + 2 * (2 * p + 1) + c), v(L + 2 * (2 * p) + c),
                                              S_SELHI if e else S_SELLO))

    def mf(t):
        a("v_mfma_f32_16x16x32_bf16 %s, %s, %s, %s" % (vr(acc + 4 * t, 4), vr(A, 4), vr(F + 4 * t, 4),
                                                       "0" if first else vr(acc + 4 * t, 4)))
    perms(0)
    for t in range(1, 4):
        perms(t)
        mf(t - 1)
    a.nop(2)
    mf(3)


def exec_lo16(a):
    a("s_mov_b64 exec, 0xffff")


def exec_all(a):
    a("s_mov_b64 exec, -1")


LOG2E = 1.4426950408889634


def f32hex(x):
    import struct
    return "0x%08x" % struct.unpack("<I", struct.pack("<f", x))[0]


def silu_inplace(a, x, t):
    a("v_mul_f32 %s, %s, %s" % (v(t), f32hex(-LOG2E), v(x)))
    a("v_exp_f32 %s, %s" % (v(t), v(t)))
    a.nop(1)
    a("v_add_f32 %s, 1.0, %s" % (v(t), v(t)))
    a("v_rcp_f32 %s, %s" % (v(t), v(t)))
    a.nop(1)
    a("v_mul_f32 %s, %s, %s" % (v(x), v(x), v(t)))


def gen_k1(a):
    name = "k1_kernel"
    kernel_begin(a, name)
    XN, RED, QL = 0, 4352, 12544
    prologue(a, 368, "k1_end")
    SX, SW, SU, SO = 44, 48, 52, 56
    srd(a, SX, P_X, 4096)
    srd(a, SO, P_WS, WS_USED)
    a("s_lshl_b32 s4, s3, 10")
    a("v_lshlrev_b32 v4, 4, v1")
    a("v_add_u32 v5, s4, v4")
    a("buffer_load_dwordx4 v[8:11], v5, s[%d:%d], 0 offen" % (SX, SX + 3))
    a("s_mul_i32 s4, s3, 1088")
    a("v_add_u32 v6, s4, v4")
    a("s_cmp_ge_u32 s2, 256")
    a("s_cbranch_scc1 k1_ffn")
    a("s_and_b32 s4, s2, 7")
    a("s_lshr_b32 s5, s2, 3")
    a("s_lshr_b32 s6, s5, 3")
    a("s_lshl_b32 s4, s4, 2")
    a("s_add_u32 s6, s6, s4")
    a("s_and_b32 s7, s5, 3")
    a("s_bfe_u32 s13, s5, 0x10002")
    srd(a, SW, P_WQ, 4194304)
    srd(a, SU, P_WUK, 4194304)
    a("s_lshl_b32 s8, s3, 20")
    a("s_lshl_b32 s9, s6, 8")
    a("s_lshl_b32 s10, s13, 7")
    a("s_add_u32 s9, s9, s10")
    a("s_add_u32 s8, s8, s9")
    a("v_lshrrev_b32 v12, 3, v2")
    a("v_lshl_add_u32 v7, v12, 2, v3")
    a("v_lshlrev_b32 v7, 16, v7")
    a("v_and_b32 v15, 7, v2")
    a("v_lshlrev_b32 v15, 4, v15")
    a("v_add3_u32 v7, v7, v15, s8")
    LQ = 16
    for u in range(2):
        for i in range(8):
            a("s_mov_b32 s10, 0x%x" % ((64 * u + i) * 8192))
            a("buffer_load_dwordx4 %s, v7, s[%d:%d], s10 offen" % (vr(LQ + 32 * u + 4 * i, 4), SW, SW + 3))
    LU = 144
    a("s_lshl_b32 s8, s7, 7")
    a("s_lshl_b32 s10, s3, 5")
    a("s_add_u32 s8, s8, s10")
    a("v_add_u32 v14, s8, v2")
    a("v_lshlrev_b32 v14, 13, v14")
    a("v_lshlrev_b32 v13, 4, v3")
    a("v_add3_u32 v14, v14, v13, s9")
    a("s_mov_b32 s10, 0x20000")
    for T in range(2):
        for st in range(2):
            a("buffer_load_dwordx4 %s, v14, s[%d:%d], %s offen offset:%d" % (vr(LU + 8 * T + 4 * st, 4), SU, SU + 3,
                                                                          "0" if T == 0 else "s10", 64 * st))
    a("s_lshl_b32 s10, s3, 11")
    a("v_lshl_add_u32 v12, v12, 10, v15")
    a("v_add_u32 v12, s10, v12")
    a("s_waitcnt vmcnt(20)")
    layernorm(a, 8, 208, 6)
    a("s_waitcnt lgkmcnt(0)")
    a("s_barrier")
    AF = 160
    a("v_and_b32 v13, 3, v1")
    a("v_mul_u32_u24 v13, 1088, v13")
    a("v_bfe_u32 v14, v2, 2, 1")
    a("v_lshlrev_b32 v14, 2, v14")
    a("v_add_u32 v14, v14, v3")
    a("v_lshlrev_b32 v14, 4, v14")
    a("s_lshl_b32 s10, s3, 8")
    a("v_add3_u32 v13, v13, v14, s10")
    for u in range(2):
        a("ds_read_b128 %s, v13 offset:%d" % (vr(AF + 4 * u, 4), XN + 128 * u))
    ACC = 176
    FX = 208
    a("s_waitcnt lgkmcnt(0)")
    for u in range(2):
        a("s_waitcnt vmcnt(%d)" % ((1 - u) * 8 + 4))
        unit8(a, LQ + 32 * u, FX if u == 0 else LQ + 32 * (u - 1), AF + 4 * u, ACC, u == 0)
    a.nop(8)
    a("s_mov_b32 exec_lo, 0xff0000ff")
    a("s_mov_b32 exec_hi, 0")
    for t in range(8):
        a("ds_write_b128 v12, %s offset:%d" % (vr(ACC + 4 * t, 4), RED + 128 * t))
    exec_all(a)
    a("s_waitcnt lgkmcnt(0)")
    a("s_barrier")
    a("s_cmp_ge_u32 s3, 1")
    a("s_cbranch_scc1 k1_sumdone")
    a("v_lshlrev_b32 v13, 4, v0")
    for w in range(8):
        a("ds_read_b128 %s, v13 offset:%d" % (vr(16 + 4 * w, 4), RED + 1024 * w))
    a("v_lshrrev_b32 v14, 3, v0")
    a("v_lshl_add_u32 v14, v14, 1, v15")
    a("s_waitcnt lgkmcnt(0)")
    for b in range(4):
        for w in range(4):
            a("v_add_f32 %s, %s, %s" % (v(16 + 8 * w + b), v(16 + 8 * w + b), v(20 + 8 * w + b)))
    for b in range(4):
        a("v_add_f32 %s, %s, %s" % (v(16 + b), v(16 + b), v(24 + b)))
        a("v_add_f32 %s, %s, %s" % (v(32 + b), v(32 + b), v(40 + b)))
    for b in range(4):
        a("v_add_f32 %s, %s, %s" % (v(16 + b), v(16 + b), v(32 + b)))
    a("v_cvt_pk_bf16_f32 v20, v16, v17")
    a("v_cvt_pk_bf16_f32 v21, v18, v19")
    a("ds_write_b16 v14, v20 offset:%d" % (QL))
    a("ds_write_b16_d16_hi v14, v20 offset:%d" % (QL + 320))
    a("ds_write_b16 v14, v21 offset:%d" % (QL + 640))
    a("ds_write_b16_d16_hi v14, v21 offset:%d" % (QL + 960))
    a("s_waitcnt lgkmcnt(0)")
    a.label("k1_sumdone")
    a("s_barrier")
    a("v_and_b32 v13, 3, v1")
    a("v_mul_u32_u24 v13, 320, v13")
    a("v_lshl_add_u32 v13, v3, 4, v13")
    for st in range(2):
        a("ds_read_b128 %s, v13 offset:%d" % (vr(16 + 4 * st, 4), QL + 64 * st))
    a("s_waitcnt vmcnt(0) lgkmcnt(0)")
    for st in range(2):
        for T in range(2):
            a("v_mfma_f32_16x16x32_bf16 %s, %s, %s, %s" % (vr(32 + 4 * T, 4), vr(LU + 8 * T + 4 * st, 4), vr(16 + 4 * st, 4),
                                                          "0" if st == 0 else vr(32 + 4 * T, 4)))
    a("v_lshlrev_b32 v13, 15, v2")
    a("v_lshlrev_b32 v14, 3, v3")
    a("s_lshl_b32 s10, s6, 10")
    a("s_lshl_b32 s11, s8, 1")
    a("s_add_u32 s10, s10, s11")
    a("s_lshl_b32 s11, s13, 17")
    a("s_add_u32 s10, s10, s11")
    a("v_add3_u32 v13, v13, v14, s10")
    a("v_cmp_gt_u32 vcc, 4, v2")
    a.nop(4)
    sc = f32hex(LOG2E * (128 ** -0.5))
    for r in range(8):
        a("v_mul_f32 %s, %s, %s" % (v(32 + r), sc, v(32 + r)))
    for r in range(4):
        a("v_cvt_pk_bf16_f32 %s, %s, %s" % (v(40 + r), v(32 + 2 * r), v(33 + 2 * r)))
    a("s_and_saveexec_b64 s[12:13], vcc")
    for T in range(2):
        a("buffer_store_dwordx2 %s, v13, s[%d:%d], 0 offen offset:%d" % (vr(40 + 2 * T, 2), SO, SO + 3, QABS + 32 * T))
    a("s_endpgm")
    a.label("k1_ffn")
    a("s_sub_u32 s4, s2, 256")
    a("s_and_b32 s5, s4, 3")
    a("s_lshr_b32 s6, s4, 2")
    a("s_lshr_b32 s7, s3, 1")
    a("s_and_b32 s8, s3, 1")
    a("s_cmp_eq_u32 s7, 0")
    a("s_cselect_b32 s10, s%d, s%d" % (P_WG, P_WU))
    a("s_cselect_b32 s11, s%d, s%d" % (P_WG + 1, P_WU + 1))
    srd(a, SW, 10, 512 * 3584)
    a("s_lshl_b32 s9, s5, 1")
    a("s_add_u32 s9, s9, s8")
    a("s_mul_i32 s10, s9, %d" % (64 * 3584))
    a("s_lshl_b32 s11, s6, 7")
    a("s_add_u32 s10, s10, s11")
    a("v_mul_u32_u24 v7, %d, v3" % (8 * 3584))
    a("v_lshlrev_b32 v12, 3, v2")
    a("v_add3_u32 v7, v7, v12, s10")
    LF = 16
    for u in range(2):
        for i in range(8):
            a("s_mov_b32 s10, 0x%x" % ((32 * u + i) * 3584))
            a("buffer_load_dwordx2 %s, v7, s[%d:%d], s10 offen" % (vr(LF + 16 * u + 2 * i, 2), SW, SW + 3))
    a("s_waitcnt vmcnt(16)")
    layernorm(a, 8, 208, 6)
    a("s_waitcnt lgkmcnt(0)")
    a("s_barrier")
    a("v_and_b32 v13, 3, v1")
    a("v_mul_u32_u24 v13, 1088, v13")
    a("v_lshlrev_b32 v14, 4, v3")
    a("s_lshl_b32 s10, s9, 7")
    a("v_add3_u32 v13, v13, v14, s10")
    for u in range(2):
        a("ds_read_b128 %s, v13 offset:%d" % (vr(AF + 4 * u, 4), XN + 64 * u))
    a("s_waitcnt lgkmcnt(0)")
    for u in range(2):
        a("s_waitcnt vmcnt(%d)" % ((1 - u) * 8))
        unit4(a, LF + 16 * u, FX + 16 * u, AF + 4 * u, ACC, u == 0)
    a("s_lshl_b32 s10, s9, 1")
    a("s_add_u32 s10, s10, s7")
    a("s_mul_i32 s10, s10, %d" % (1792 * 16))
    a("s_lshl_b32 s11, s6, 10")
    a("s_add_u32 s10, s10, s11")
    a("s_add_u32 s10, s10, 0x%x" % GU)
    a("v_lshlrev_b32 v13, 6, v2")
    a("v_add_u32 v13, s10, v13")
    a.nop(8)
    exec_lo16(a)
    for t in range(4):
        a("buffer_store_dwordx4 %s, v13, s[%d:%d], 0 offen offset:%d" % (vr(ACC + 4 * t, 4), SO, SO + 3, 16 * t))
    a.label("k1_end")
    a("s_endpgm")
    return name, 240


def gen_k2(a):
    name = "k2_kernel"
    kernel_begin(a, name)
    RS = 1056
    PL = 0
    MX = PL + 4096
    LS = MX + 256
    CKV = 4608
    prologue(a, 256, "k2_end")
    stp = Stamps(a)
    stp()
    SC, SO = 44, 48
    a("s_and_b32 s4, s2, 7")
    a("s_lshr_b32 s5, s2, 3")
    a("s_and_b32 s6, s5, 1")
    a("s_lshr_b32 s5, s5, 1")
    a("s_lshl_b32 s5, s5, 3")
    a("s_add_u32 s5, s5, s4")
    a("s_lshr_b32 s7, s5, 5")
    a("s_and_b32 s8, s5, 31")
    a("s_lshl_b32 s9, s5, 17")
    srd(a, SC, P_CKV, 131072, off_sgpr=9)
    srd(a, SO, P_WS, WS_USED)
    QF = 16
    QLD = 139776
    if LW:
        a("s_cmp_lt_u32 s3, 4")
        a("s_cbranch_scc1 k2_comp")
        a("s_and_b32 s3, s3, 3")
        a("v_lshlrev_b32 v5, 4, v1")
        a("s_mul_i32 s10, s3, %d" % (32 * RS))
        a("s_lshl_b32 s11, s3, 15")
        sched = [int(x) for x in os.environ.get("SCHED", "12,12,8,0").split(",")]
        cur = [0]

        def dma(n):
            for i in range(cur[0], cur[0] + n):
                if STG and ON and i >= 16:
                    j = i - 16
                    row = 32 * (j // 4) + 16 + (j % 4)
                    a("s_add_u32 m0, s64, %d" % (CKV + row * RS))
                    a("s_add_u32 s12, s65, %d" % (row * 1024))
                else:
                    a("s_add_u32 m0, s10, %d" % (CKV + i * RS))
                    a("s_add_u32 s12, s11, %d" % (i * 1024))
                a("buffer_load_dwordx4 v5, s[%d:%d], s12 offen lds" % (SC, SC + 3))
            cur[0] += n
        a("s_mul_i32 s64, s3, %d" % (4 * RS))
        a("s_lshl_b32 s65, s3, 12")
        dma(sched[0])
        a("s_barrier")
        dma(sched[1])
        assert cur[0] >= 16
        a("s_waitcnt vmcnt(%d)" % (cur[0] - 16))
        a("s_barrier")
        if ON:
            dma(sched[2])
            a("s_barrier")
            dma(sched[3])
            a("s_barrier")
        dma(32 - cur[0])
        if STG and ON:
            a("s_waitcnt vmcnt(4)")
            a("s_barrier")
        a("s_waitcnt vmcnt(0)")
        a("s_barrier")
        a("s_endpgm")
        a.label("k2_comp")
    a("s_lshl_b32 s9, s7, 5")
    a("s_lshl_b32 s10, s6, 4")
    a("s_add_u32 s9, s9, s10")
    a("s_lshl_b32 s10, s3, 2")
    a("s_add_u32 s10, s10, s9")
    a("s_lshl_b32 s10, s10, 10")
    a("v_lshlrev_b32 v4, 4, v1")
    a("v_add_u32 v4, s10, v4")
    a("s_mov_b32 s10, 0x20000")
    for i in range(4):
        a("buffer_load_dwordx4 %s, v4, s[%d:%d], 0 offen offset:%d" % (vr(144 + 4 * i, 4), SO, SO + 3, QABS + 1024 * i))
        a("buffer_load_dwordx4 %s, v4, s[%d:%d], s10 offen offset:%d" % (vr(160 + 4 * i, 4), SO, SO + 3, QABS + 1024 * i))
    a("v_lshlrev_b32 v5, 4, v1")
    a("s_mul_i32 s10, s3, %d" % (32 * RS))
    a("s_lshl_b32 s11, s3, 15")
    for i in range(0 if LW else 32):
        a("s_add_u32 m0, s10, %d" % (CKV + i * RS))
        a("s_add_u32 s12, s11, %d" % (i * 1024))
        a("buffer_load_dwordx4 v5, s[%d:%d], s12 offen lds" % (SC, SC + 3))
    a("v_mul_u32_u24 v6, %d, v2" % RS)
    a("v_lshlrev_b32 v7, 4, v3")
    a("v_add3_u32 v6, v6, v7, s10")
    AF = 80
    SCO = 144
    a("s_mul_i32 s12, s3, %d" % (4 * RS))
    a("s_add_u32 s12, s12, %d" % QLD)
    a("v_add_u32 v4, s12, v5")
    a("v_mul_u32_u24 v12, %d, v2" % RS)
    a("s_mov_b32 s13, %d" % QLD)
    a("v_add3_u32 v12, v12, v7, s13")
    for i in range(4):
        a("s_waitcnt vmcnt(%d)" % ((0 if LW else 32) + 2 * (3 - i)))
        for q in range(4):
            x, y = 144 + 4 * i + q, 160 + 4 * i + q
            a("v_lshlrev_b32 v8, 16, %s" % v(x))
            a("v_lshlrev_b32 v9, 16, %s" % v(y))
            a("v_and_b32 v10, 0xffff0000, %s" % v(x))
            a("v_and_b32 v11, 0xffff0000, %s" % v(y))
            a("v_add_f32 v8, v8, v9")
            a("v_add_f32 v10, v10, v11")
            a("v_cvt_pk_bf16_f32 %s, v8, v10" % v(x))
        a("ds_write_b128 v4, %s offset:%d" % (vr(144 + 4 * i, 4), i * RS))
    a("s_waitcnt lgkmcnt(0)")
    stp()
    a("s_barrier")
    stp()
    for st in range(16):
        a("ds_read_b128 %s, v12 offset:%d" % (vr(QF + 4 * st, 4), st * 64))
    def legacy():
        for T in range(2):
            if LW:
                a("s_barrier")
            else:
                a("s_waitcnt vmcnt(%d)" % (16 if T == 0 else 0))
            for st in range(16):
                a("ds_read_b128 %s, v6 offset:%d" % (vr(AF + 4 * st, 4), CKV + T * 16 * RS + st * 64))
            for st in range(16):
                a("s_waitcnt lgkmcnt(%d)" % (15 - st))
                a("v_mfma_f32_16x16x32_bf16 %s, %s, %s, %s" % (vr(SCO + 4 * T, 4), vr(AF + 4 * st, 4), vr(QF + 4 * st, 4),
                                                              "0" if st == 0 else vr(SCO + 4 * T, 4)))
        a.nop(8)
        a("v_max3_f32 v8, v144, v145, v146")
        a("v_max3_f32 v8, v8, v147, v148")
        a("v_max3_f32 v8, v8, v149, v150")
        a("v_max_f32 v8, v8, v151")
        red_g(a, "v_max_f32", 8, 9)
        a("s_lshl_b32 s12, s3, 6")
        a("v_lshlrev_b32 v10, 2, v2")
        a("v_add_u32 v11, s12, v10")
        exec_lo16(a)
        a("ds_write_b32 v11, v8 offset:%d" % MX)
        exec_all(a)
        a("s_waitcnt lgkmcnt(0)")
        a("s_barrier")
        for w in range(4):
            a("ds_read_b32 %s, v10 offset:%d" % (v(12 + w), MX + 64 * w))
        a("s_waitcnt lgkmcnt(0)")
        a("v_max3_f32 v8, v12, v13, v14")
        a("v_max_f32 v8, v8, v15")
        for r in range(8):
            a("v_sub_f32 %s, %s, v8" % (v(SCO + r), v(SCO + r)))
        for r in range(8):
            a("v_exp_f32 %s, %s" % (v(SCO + r), v(SCO + r)))
        a.nop(1)
        for r in range(4):
            a("v_cvt_pk_bf16_f32 %s, %s, %s" % (v(152 + r), v(SCO + 2 * r), v(SCO + 2 * r + 1)))
        a("v_add_f32 v9, v144, v145")
        for r in range(2, 8):
            a("v_add_f32 v9, v9, %s" % v(SCO + r))
        a("s_lshl_b32 s12, s3, 10")
        a("v_lshlrev_b32 v12, 4, v1")
        a("v_add_u32 v13, s12, v12")
        a("ds_write_b128 v13, v[152:155] offset:%d" % PL)
        red_g(a, "v_add_f32", 9, 14)
        exec_lo16(a)
        a("ds_write_b32 v11, v9 offset:%d" % LS)
        exec_all(a)
        a("s_waitcnt lgkmcnt(0)")
        a("s_barrier")
        PF = 156
        for st in range(4):
            a("ds_read_b128 %s, v12 offset:%d" % (vr(PF + 4 * st, 4), PL + 1024 * st))
        a("v_lshrrev_b32 v13, 2, v2")
        a("v_lshl_add_u32 v13, v3, 2, v13")
        a("v_mul_u32_u24 v13, %d, v13" % RS)
        a("v_and_b32 v14, 3, v2")
        a("v_lshlrev_b32 v14, 3, v14")
        a("s_lshl_b32 s12, s3, 8")
        a("v_add3_u32 v13, v13, v14, s12")
        a("v_add_u32 v14, %d, v13" % (64 * RS))
        ACC = 176
        TB = [16, 48]
        groups = [(st, ch) for st in range(4) for ch in range(2)]

        def issue(k):
            st, ch = groups[k]
            buf = 16 + 16 * (k % 4)
            base = 13 if st < 2 else 14
            for q in range(4):
                ct = 4 * ch + q
                off = CKV + (st & 1) * 32 * RS + ct * 32
                a("ds_read_b64_tr_b16 %s, %s offset:%d" % (vr(buf + 4 * q, 2), v(base), off))
                a("ds_read_b64_tr_b16 %s, %s offset:%d" % (vr(buf + 4 * q + 2, 2), v(base), off + 16 * RS))

        def compute(k):
            st, ch = groups[k]
            buf = 16 + 16 * (k % 4)
            for q in range(4):
                ct = 4 * ch + q
                a("v_mfma_f32_16x16x32_bf16 %s, %s, %s, %s" % (vr(ACC + 4 * ct, 4), vr(buf + 4 * q, 4), vr(PF + 4 * st, 4),
                                                              "0" if st == 0 else vr(ACC + 4 * ct, 4)))
        issue(0)
        for k in range(8):
            if k + 1 < 8:
                issue(k + 1)
                a("s_waitcnt lgkmcnt(8)")
            else:
                a("s_waitcnt lgkmcnt(0)")
            compute(k)
    def online():
        ACC = 176
        MR, LR, SCL, TB0, TB1, PW = 208, 209, 210, 211, 212, 213
        a("v_lshrrev_b32 v13, 2, v2")
        a("v_lshl_add_u32 v13, v3, 2, v13")
        a("v_mul_u32_u24 v13, %d, v13" % RS)
        a("v_and_b32 v14, 3, v2")
        a("v_lshlrev_b32 v14, 3, v14")
        a("s_lshl_b32 s12, s3, 8")
        a("v_add3_u32 %s, v13, v14, s12" % v(TB0))
        a("v_add_u32 %s, %d, %s" % (v(TB1), 64 * RS, v(TB0)))
        a("s_lshl_b32 s12, s3, 6")
        a("v_lshlrev_b32 v10, 2, v2")
        a("v_add_u32 v11, s12, v10")
        a("s_lshr_b32 s12, s3, 1")
        a("s_lshl_b32 s12, s12, 10")
        a("s_and_b32 s13, s3, 1")
        a("s_lshl_b32 s13, s13, 3")
        a("s_add_u32 s12, s12, s13")
        a("v_add_u32 %s, s12, v5" % v(PW))
        PF = 156
        groups = [(st, ch) for st in range(2) for ch in range(2)]
        for T in range(2):
            S0 = SCO + 4 * T
            stp()
            stg = STG and T == 1
            if stg:
                a("s_cmp_eq_u32 s3, 3")
                a("s_cselect_b32 s64, 1, 0")
                a("s_mov_b32 s65, 0")
                a.label("k2_stg")
            a("s_barrier")
            if stg:
                a("s_cmp_lg_u32 s65, s64")
                a("s_cbranch_scc1 k2_stg_skip")
            else:
                stp()
            for st in range(16):
                a("ds_read_b128 %s, v6 offset:%d" % (vr(AF + 4 * st, 4), CKV + T * 16 * RS + st * 64))
            for st in range(16):
                a("s_waitcnt lgkmcnt(%d)" % (15 - st))
                a("v_mfma_f32_16x16x32_bf16 %s, %s, %s, %s" % (vr(S0, 4), vr(AF + 4 * st, 4), vr(QF + 4 * st, 4),
                                                              "0" if st == 0 else vr(S0, 4)))
            if stg:
                a.label("k2_stg_skip")
                a("s_add_u32 s65, s65, 1")
                a("s_cmp_lt_u32 s65, 2")
                a("s_cbranch_scc1 k2_stg")
            a.nop(8)
            stp()
            a("v_max3_f32 v8, %s, %s, %s" % (v(S0), v(S0 + 1), v(S0 + 2)))
            a("v_max_f32 v8, v8, %s" % v(S0 + 3))
            red_g(a, "v_max_f32", 8, 9)
            exec_lo16(a)
            a("ds_write_b32 v11, v8 offset:%d" % MX)
            exec_all(a)
            a("s_waitcnt lgkmcnt(0)")
            a("s_barrier")
            for w in range(4):
                a("ds_read_b32 %s, v10 offset:%d" % (v(12 + w), MX + 64 * w))
            a("s_waitcnt lgkmcnt(0)")
            a("v_max3_f32 v8, v12, v13, v14")
            if T == 0:
                a("v_max_f32 %s, v8, v15" % v(MR))
                a("v_mov_b32 v8, %s" % v(MR))
            else:
                a("v_max3_f32 v8, v8, v15, %s" % v(MR))
                a("v_sub_f32 %s, %s, v8" % (v(SCL), v(MR)))
            for r in range(4):
                a("v_sub_f32 %s, %s, v8" % (v(S0 + r), v(S0 + r)))
            for r in range(4):
                a("v_exp_f32 %s, %s" % (v(S0 + r), v(S0 + r)))
            if T == 1:
                a("v_exp_f32 %s, %s" % (v(SCL), v(SCL)))
            a.nop(1)
            for r in range(2):
                a("v_cvt_pk_bf16_f32 %s, %s, %s" % (v(152 + r), v(S0 + 2 * r), v(S0 + 2 * r + 1)))
            a("ds_write_b64 %s, v[152:153] offset:%d" % (v(PW), PL))
            a("v_add_f32 v9, %s, %s" % (v(S0), v(S0 + 1)))
            a("v_add_f32 v9, v9, %s" % v(S0 + 2))
            if T == 0:
                a("v_add_f32 %s, v9, %s" % (v(LR), v(S0 + 3)))
            else:
                a("v_add_f32 v9, v9, %s" % v(S0 + 3))
                a("v_fmac_f32 v9, %s, %s" % (v(LR), v(SCL)))
                red_g(a, "v_add_f32", 9, 14)
                exec_lo16(a)
                a("ds_write_b32 v11, v9 offset:%d" % LS)
                exec_all(a)
                for r in range(32):
                    a("v_mul_f32 %s, %s, %s" % (v(ACC + r), v(ACC + r), v(SCL)))
            a("s_waitcnt lgkmcnt(0)")
            a("s_barrier")
            stp()
            for st in range(2):
                a("ds_read_b128 %s, v5 offset:%d" % (vr(PF + 4 * st, 4), PL + 1024 * st))

            def issue(k):
                st, ch = groups[k]
                buf = AF + 16 * (k % 4)
                base = TB0 if st == 0 else TB1
                for q in range(4):
                    ct = 4 * ch + q
                    off = CKV + T * 16 * RS + ct * 32
                    a("ds_read_b64_tr_b16 %s, %s offset:%d" % (vr(buf + 4 * q, 2), v(base), off))
                    a("ds_read_b64_tr_b16 %s, %s offset:%d" % (vr(buf + 4 * q + 2, 2), v(base), off + 32 * RS))

            def compute(k):
                st, ch = groups[k]
                buf = AF + 16 * (k % 4)
                for q in range(4):
                    ct = 4 * ch + q
                    a("v_mfma_f32_16x16x32_bf16 %s, %s, %s, %s" % (vr(ACC + 4 * ct, 4), vr(buf + 4 * q, 4), vr(PF + 4 * st, 4),
                                                                  "0" if (st == 0 and T == 0) else vr(ACC + 4 * ct, 4)))
            issue(0)
            for k in range(4):
                if k + 1 < 4:
                    issue(k + 1)
                    a("s_waitcnt lgkmcnt(8)")
                else:
                    a("s_waitcnt lgkmcnt(0)")
                compute(k)
    if LW and ON:
        online()
    else:
        legacy()
    ACC = 176
    a("s_lshl_b32 s12, s9, 15")
    a("s_lshl_b32 s13, s8, 10")
    a("s_add_u32 s12, s12, s13")
    a("s_lshl_b32 s13, s3, 8")
    a("s_add_u32 s12, s12, s13")
    a("s_add_u32 s12, s12, 0x%x" % PART)
    a("v_lshlrev_b32 v13, 15, v2")
    a("v_lshlrev_b32 v14, 4, v3")
    a("v_add3_u32 v13, v13, v14, s12")
    a.nop(4)
    stp()
    for ct in range(8):
        a("v_cvt_pk_bf16_f32 %s, %s, %s" % (v(16 + 2 * ct), v(ACC + 4 * ct), v(ACC + 4 * ct + 1)))
        a("v_cvt_pk_bf16_f32 %s, %s, %s" % (v(16 + 2 * ct + 1), v(ACC + 4 * ct + 2), v(ACC + 4 * ct + 3)))
    for p in range(4):
        a("buffer_store_dwordx4 %s, v13, s[%d:%d], 0 offen offset:%d" % (vr(16 + 4 * p, 4), SO, SO + 3, 64 * p))
    stp()
    if DEBUG:
        a("s_waitcnt vmcnt(0)")
        stp()
    stp.flush(60, SO)
    a("s_cmp_lg_u32 s3, 0")
    a("s_cbranch_scc1 k2_end")
    for w in range(4):
        a("ds_read_b32 %s, v10 offset:%d" % (v(40 + w), LS + 64 * w))
    a("s_lshl_b32 s12, s9, 8")
    a("s_lshl_b32 s13, s8, 3")
    a("s_add_u32 s12, s12, s13")
    a("s_add_u32 s12, s12, 0x%x" % STATS)
    a("v_lshlrev_b32 v13, 8, v2")
    a("v_add_u32 v13, s12, v13")
    a("s_waitcnt lgkmcnt(0)")
    a("v_add_f32 v40, v40, v41")
    a("v_add_f32 v42, v42, v43")
    a("v_add_f32 v9, v40, v42")
    exec_lo16(a)
    a("buffer_store_dwordx2 v[8:9], v13, s[%d:%d], 0 offen" % (SO, SO + 3))
    a.label("k2_end")
    a("s_endpgm")
    return name, (216 if (LW and ON) else 208), QLD + 16 * RS


def gen_k3(a):
    name = "k3_kernel"
    kernel_begin(a, name)
    LAT = 0
    RED = 1280
    CTX = RED + 16384
    HA = CTX + 1280
    prologue(a, 312, "k3_end")
    SO, SV, SW = 44, 48, 52
    srd(a, SO, P_WS, WS_USED)
    a("s_cmp_ge_u32 s2, 256")
    a("s_cbranch_scc1 k3_ffn")
    a("s_and_b32 s4, s2, 7")
    a("s_lshr_b32 s5, s2, 3")
    a("s_lshr_b32 s6, s5, 3")
    a("s_lshl_b32 s4, s4, 2")
    a("s_add_u32 s6, s6, s4")
    a("s_lshr_b32 s7, s5, 1")
    a("s_and_b32 s7, s7, 3")
    a("s_and_b32 s8, s5, 1")
    srd(a, SV, P_WUV, 4194304)
    srd(a, SW, P_WO, 4194304)
    a("s_mov_b32 s13, 4096")
    ST = 16
    a("s_lshl_b32 s9, s3, 5")
    a("s_add_u32 s9, s9, s6")
    a("s_lshl_b32 s10, s9, 8")
    a("s_add_u32 s10, s10, 0x%x" % STATS)
    a("v_lshlrev_b32 v4, 6, v3")
    a("v_add_u32 v4, s10, v4")
    for i in range(4):
        a("buffer_load_dwordx4 %s, v4, s[%d:%d], 0 offen offset:%d" % (vr(ST + 4 * i, 4), SO, SO + 3, 16 * i))
    LP = 32
    a("s_lshl_b32 s10, s9, 15")
    a("s_lshl_b32 s11, s7, 8")
    a("s_add_u32 s10, s10, s11")
    a("s_add_u32 s10, s10, 0x%x" % PART)
    a("v_lshlrev_b32 v4, 13, v3")
    a("v_lshlrev_b32 v5, 4, v2")
    a("v_add3_u32 v4, v4, v5, s10")
    for i in range(8):
        a("buffer_load_dwordx4 %s, v4, s[%d:%d], %s offen offset:%d" % (vr(LP + 4 * i, 4), SO, SO + 3,
                                                                       "0" if i < 4 else "s13", (i & 3) * 1024))
    LV = 64
    a("s_lshl_b32 s10, s7, 20")
    a("s_lshl_b32 s11, s3, 18")
    a("s_add_u32 s10, s10, s11")
    a("s_lshl_b32 s11, s6, 8")
    a("s_add_u32 s10, s10, s11")
    a("v_lshlrev_b32 v4, 15, v3")
    a("v_add3_u32 v4, v4, v5, s10")
    for i in range(8):
        a("s_mov_b32 s12, 0x%x" % ((16 * (i >> 2) + (i & 3)) * 8192))
        a("buffer_load_dwordx4 %s, v4, s[%d:%d], s12 offen" % (vr(LV + 4 * i, 4), SV, SV + 3))
    LO = 96
    a("s_lshl_b32 s10, s6, 17")
    a("s_lshl_b32 s11, s3, 15")
    a("s_add_u32 s10, s10, s11")
    a("s_lshl_b32 s11, s8, 9")
    a("s_add_u32 s10, s10, s11")
    a("v_lshlrev_b32 v4, 13, v3")
    a("v_add3_u32 v4, v4, v5, s10")
    for cb in range(2):
        for i in range(8):
            a("buffer_load_dwordx4 %s, v4, s[%d:%d], %s offen offset:%d" % (
                vr(LO + 32 * cb + 4 * i, 4), SW, SW + 3, "0" if i < 4 else "s13", (i & 3) * 1024 + cb * 256))
    a("s_waitcnt vmcnt(32)")
    a("v_max3_f32 v6, v16, v18, v20")
    a("v_max3_f32 v6, v6, v22, v24")
    a("v_max3_f32 v6, v6, v26, v28")
    a("v_max_f32 v6, v6, v30")
    red_g(a, "v_max_f32", 6, 7)
    for i in range(8):
        a("v_sub_f32 %s, %s, v6" % (v(ST + 2 * i), v(ST + 2 * i)))
    for i in range(8):
        a("v_exp_f32 %s, %s" % (v(ST + 2 * i), v(ST + 2 * i)))
    a.nop(1)
    a("v_mul_f32 v7, v16, v17")
    for i in range(1, 8):
        a("v_fma_f32 v7, %s, %s, v7" % (v(ST + 2 * i), v(ST + 2 * i + 1)))
    red_g(a, "v_add_f32", 7, 8)
    a("v_rcp_f32 v7, v7")
    a.nop(1)
    for i in range(8):
        a("v_mul_f32 %s, %s, v7" % (v(ST + 2 * i), v(ST + 2 * i)))
    AW = 8
    for p in range(4):
        a("v_cvt_pk_bf16_f32 %s, %s, %s" % (v(AW + p), v(ST + 4 * p), v(ST + 4 * p + 2)))
    ACC = 192
    FX = 160
    a("s_waitcnt vmcnt(24)")
    unit8(a, LP, FX, AW, ACC, True)
    a.nop(8)
    for p in range(4):
        a("v_cvt_pk_bf16_f32 %s, %s, %s" % (v(16 + p), v(ACC + 8 * p), v(ACC + 8 * p + 4)))
    a("s_mul_i32 s10, s3, 320")
    a("v_add_u32 v4, s10, v5")
    exec_lo16(a)
    a("ds_write_b128 v4, v[16:19] offset:%d" % LAT)
    exec_all(a)
    a("s_waitcnt lgkmcnt(0)")
    a("s_barrier")
    a("v_and_b32 v6, 3, v1")
    a("v_mul_u32_u24 v6, 320, v6")
    a("v_lshl_add_u32 v6, v3, 4, v6")
    a("s_lshl_b32 s10, s3, 6")
    a("v_add_u32 v6, s10, v6")
    a("ds_read_b128 v[8:11], v6 offset:%d" % LAT)
    a("s_waitcnt vmcnt(16) lgkmcnt(0)")
    unit8(a, LV, FX, 8, ACC, True)
    a.nop(8)
    a("s_lshl_b32 s10, s3, 12")
    a("v_add_u32 v4, s10, v5")
    exec_lo16(a)
    for t in range(8):
        a("ds_write_b128 v4, %s offset:%d" % (vr(ACC + 4 * t, 4), RED + 256 * t))
    exec_all(a)
    a("s_waitcnt lgkmcnt(0)")
    a("s_barrier")
    a("s_cmp_ge_u32 s3, 2")
    a("s_cbranch_scc1 k3_sumdone")
    a("v_lshlrev_b32 v7, 4, v0")
    for w in range(4):
        a("ds_read_b128 %s, v7 offset:%d" % (vr(16 + 4 * w, 4), RED + 4096 * w))
    a("v_lshrrev_b32 v12, 4, v0")
    a("v_lshlrev_b32 v13, 4, v2")
    a("v_lshl_add_u32 v12, v12, 1, v13")
    a("s_waitcnt lgkmcnt(0)")
    for b in range(4):
        a("v_add_f32 %s, %s, %s" % (v(16 + b), v(16 + b), v(20 + b)))
        a("v_add_f32 %s, %s, %s" % (v(24 + b), v(24 + b), v(28 + b)))
    for b in range(4):
        a("v_add_f32 %s, %s, %s" % (v(16 + b), v(16 + b), v(24 + b)))
    a("v_cvt_pk_bf16_f32 v20, v16, v17")
    a("v_cvt_pk_bf16_f32 v21, v18, v19")
    a("ds_write_b16 v12, v20 offset:%d" % (CTX))
    a("ds_write_b16_d16_hi v12, v20 offset:%d" % (CTX + 320))
    a("ds_write_b16 v12, v21 offset:%d" % (CTX + 640))
    a("ds_write_b16_d16_hi v12, v21 offset:%d" % (CTX + 960))
    a("s_waitcnt lgkmcnt(0)")
    a.label("k3_sumdone")
    a("s_barrier")
    a("ds_read_b128 v[8:11], v6 offset:%d" % CTX)
    a("s_waitcnt vmcnt(8) lgkmcnt(0)")
    unit8(a, LO, FX, 8, ACC, True)
    a("s_waitcnt vmcnt(0)")
    unit8(a, LO + 32, LO, 8, ACC + 32, True)
    a.nop(8)
    exec_lo16(a)
    for cb in range(2):
        for t in range(8):
            a("ds_write_b128 v4, %s offset:%d" % (vr(ACC + 32 * cb + 4 * t, 4), RED + 2048 * cb + 256 * t))
    exec_all(a)
    a("s_waitcnt lgkmcnt(0)")
    a("s_barrier")
    a("v_lshlrev_b32 v7, 4, v0")
    for w in range(4):
        a("ds_read_b128 %s, v7 offset:%d" % (vr(16 + 4 * w, 4), RED + 4096 * w))
    a("s_lshl_b32 s10, s6, 2")
    a("s_add_u32 s10, s10, s7")
    a("s_lshl_b32 s10, s10, 13")
    a("s_lshl_b32 s11, s8, 12")
    a("s_add_u32 s10, s10, s11")
    a("s_add_u32 s10, s10, 0x%x" % SPART)
    a("v_add_u32 v12, s10, v7")
    a("s_waitcnt lgkmcnt(0)")
    for b in range(4):
        a("v_add_f32 %s, %s, %s" % (v(16 + b), v(16 + b), v(20 + b)))
        a("v_add_f32 %s, %s, %s" % (v(24 + b), v(24 + b), v(28 + b)))
    for b in range(4):
        a("v_add_f32 %s, %s, %s" % (v(16 + b), v(16 + b), v(24 + b)))
    a("buffer_store_dwordx4 v[16:19], v12, s[%d:%d], 0 offen" % (SO, SO + 3))
    a("s_endpgm")
    a.label("k3_ffn")
    a("s_sub_u32 s4, s2, 256")
    srd(a, SW, P_WD, 1792 * 1024)
    a("s_mov_b32 s13, 4096")
    GL = 16
    a("v_and_b32 v4, 31, v1")
    a("v_lshrrev_b32 v5, 5, v1")
    a("v_mul_u32_u24 v5, %d, v5" % (8 * 1792))
    a("s_lshl_b32 s10, s4, 5")
    a("v_add3_u32 v5, v5, v4, s10")
    a("v_lshlrev_b32 v5, 4, v5")
    a("v_add_u32 v5, 0x%x, v5" % GU)
    for kk in range(4):
        for mat in range(2):
            a("s_mov_b32 s12, 0x%x" % ((kk * 2 + mat) * 1792 * 16))
            a("buffer_load_dwordx4 %s, v5, s[%d:%d], s12 offen" % (vr(GL + 8 * kk + 4 * mat, 4), SO, SO + 3))
    LD = 64
    a("s_lshl_b32 s10, s4, 15")
    a("s_lshl_b32 s11, s3, 8")
    a("s_add_u32 s10, s10, s11")
    a("v_lshlrev_b32 v6, 13, v3")
    a("v_lshlrev_b32 v7, 4, v2")
    a("v_add3_u32 v6, v6, v7, s10")
    for i in range(8):
        a("buffer_load_dwordx4 %s, v6, s[%d:%d], %s offen offset:%d" % (vr(LD + 4 * i, 4), SW, SW + 3,
                                                                       "0" if i < 4 else "s13", (i & 3) * 1024))
    a("s_waitcnt vmcnt(8)")
    for q in range(8):
        a("v_add_f32 %s, %s, %s" % (v(GL + q), v(GL + q), v(GL + 8 + q)))
        a("v_add_f32 %s, %s, %s" % (v(GL + 16 + q), v(GL + 16 + q), v(GL + 24 + q)))
    for q in range(8):
        a("v_add_f32 %s, %s, %s" % (v(GL + q), v(GL + q), v(GL + 16 + q)))
    for q in range(8):
        a("v_mov_b32 %s, %s" % (v(GL + 8 + q), v(GL + q)))
    a.nop(2)
    for q in range(8):
        a("v_permlane32_swap_b32 %s, %s" % (v(GL + q), v(GL + 8 + q)))
    a.nop(1)
    for q in range(8):
        a("v_add_f32 %s, %s, %s" % (v(GL + q), v(GL + q), v(GL + 8 + q)))
    for p in range(4):
        a("v_cvt_pk_bf16_f32 %s, %s, %s" % (v(24 + p), v(GL + 2 * p), v(GL + 2 * p + 1)))
    for p in range(4):
        a("v_lshlrev_b32 %s, 16, %s" % (v(GL + 2 * p), v(24 + p)))
        a("v_and_b32 %s, 0xffff0000, %s" % (v(GL + 2 * p + 1), v(24 + p)))
    for b in range(4):
        silu_inplace(a, GL + b, 28 + b)
    a("v_cvt_pk_bf16_f32 v24, v16, v17")
    a("v_cvt_pk_bf16_f32 v25, v18, v19")
    a("v_lshlrev_b32 v16, 16, v24")
    a("v_and_b32 v17, 0xffff0000, v24")
    a("v_lshlrev_b32 v18, 16, v25")
    a("v_and_b32 v19, 0xffff0000, v25")
    for b in range(4):
        a("v_mul_f32 %s, %s, %s" % (v(16 + b), v(16 + b), v(20 + b)))
    a("v_cvt_pk_bf16_f32 v24, v16, v17")
    a("v_cvt_pk_bf16_f32 v25, v18, v19")
    a("s_mul_i32 s10, s3, 320")
    a("v_lshlrev_b32 v8, 1, v4")
    a("v_add_u32 v8, s10, v8")
    a("ds_write_b16 v8, v24 offset:%d" % (HA))
    a("ds_write_b16_d16_hi v8, v24 offset:%d" % (HA + 80))
    a("ds_write_b16 v8, v25 offset:%d" % (HA + 160))
    a("ds_write_b16_d16_hi v8, v25 offset:%d" % (HA + 240))
    a("v_and_b32 v9, 3, v1")
    a("v_mul_u32_u24 v9, 80, v9")
    a("v_lshl_add_u32 v9, v3, 4, v9")
    a("v_add_u32 v9, s10, v9")
    a("s_waitcnt lgkmcnt(0)")
    a("ds_read_b128 v[8:11], v9 offset:%d" % HA)
    a("s_waitcnt vmcnt(0) lgkmcnt(0)")
    unit8(a, LD, 96, 8, 128, True)
    a("s_lshl_b32 s10, s4, 13")
    a("s_lshl_b32 s11, s3, 11")
    a("s_add_u32 s10, s10, s11")
    a("s_add_u32 s10, s10, 0x%x" % YPART)
    a("v_add_u32 v4, s10, v7")
    a.nop(8)
    exec_lo16(a)
    for t in range(8):
        a("buffer_store_dwordx4 %s, v4, s[%d:%d], 0 offen offset:%d" % (vr(128 + 4 * t, 4), SO, SO + 3, 256 * t))
    a.label("k3_end")
    a("s_endpgm")
    return name, 256, HA + 1280


def gen_k4(a):
    name = "k4_kernel"
    kernel_begin(a, name)
    prologue(a, 64, "k4_end")
    SS, SY, SX, SOUT = 44, 48, 52, 56
    srd(a, SS, P_WS, 128 * 8192, off=SPART)
    srd(a, SY, P_WS, 56 * 8192, off=YPART)
    srd(a, SX, P_X, 4096)
    srd(a, SOUT, P_OUT, 4096)
    a("s_mov_b32 s13, 8192")
    a("s_mov_b32 s12, 16384")
    a("s_mov_b32 s11, 24576")
    a("v_and_b32 v4, 7, v0")
    a("v_lshrrev_b32 v5, 3, v0")
    a("s_lshl_b32 s10, s2, 7")
    a("v_lshlrev_b32 v6, 4, v4")
    a("v_add_u32 v6, s10, v6")
    a("v_lshlrev_b32 v7, 15, v5")
    a("v_add_u32 v7, v7, v6")
    a("buffer_load_dwordx4 v[16:19], v7, s[%d:%d], 0 offen" % (SS, SS + 3))
    a("buffer_load_dwordx4 v[20:23], v7, s[%d:%d], s13 offen" % (SS, SS + 3))
    a("buffer_load_dwordx4 v[24:27], v7, s[%d:%d], s12 offen" % (SS, SS + 3))
    a("buffer_load_dwordx4 v[28:31], v7, s[%d:%d], s11 offen" % (SS, SS + 3))
    a("v_lshlrev_b32 v7, 14, v5")
    a("v_add_u32 v7, v7, v6")
    a("buffer_load_dwordx4 v[32:35], v7, s[%d:%d], 0 offen" % (SY, SY + 3))
    a("buffer_load_dwordx4 v[36:39], v7, s[%d:%d], s13 offen" % (SY, SY + 3))
    a("v_lshrrev_b32 v8, 2, v0")
    a("s_lshl_b32 s10, s2, 3")
    a("v_add_u32 v8, s10, v8")
    a("v_and_b32 v9, 15, v8")
    a("v_lshrrev_b32 v10, 4, v8")
    a("v_and_b32 v10, 7, v10")
    a("v_lshrrev_b32 v11, 7, v8")
    a("v_lshlrev_b32 v11, 7, v11")
    a("v_lshl_add_u32 v11, v9, 3, v11")
    a("v_add_u32 v11, v11, v10")
    a("v_and_b32 v12, 3, v0")
    a("v_lshl_add_u32 v11, v12, 9, v11")
    a("v_lshlrev_b32 v11, 1, v11")
    a("buffer_load_ushort v13, v11, s[%d:%d], 0 offen" % (SX, SX + 3))
    a("s_waitcnt vmcnt(1)")
    for q in range(4):
        a("v_add_f32 %s, %s, %s" % (v(16 + q), v(16 + q), v(20 + q)))
        a("v_add_f32 %s, %s, %s" % (v(24 + q), v(24 + q), v(28 + q)))
        a("v_add_f32 %s, %s, %s" % (v(20 + q), v(32 + q), v(36 + q)))
    for q in range(4):
        a("v_add_f32 %s, %s, %s" % (v(16 + q), v(16 + q), v(24 + q)))
    a.nop(2)
    for q in range(8):
        a("v_add_f32_dpp %s, %s, %s row_ror:8 row_mask:0xf bank_mask:0xf" % (v(24 + q), v(16 + q), v(16 + q)))
    for q in range(8):
        a("v_mov_b32 %s, %s" % (v(16 + q), v(24 + q)))
    a.nop(2)
    for q in range(8):
        a("v_permlane16_swap_b32 %s, %s" % (v(16 + q), v(24 + q)))
    a.nop(1)
    for q in range(8):
        a("v_add_f32 %s, %s, %s" % (v(16 + q), v(16 + q), v(24 + q)))
    for q in range(8):
        a("v_mov_b32 %s, %s" % (v(24 + q), v(16 + q)))
    a.nop(2)
    for q in range(8):
        a("v_permlane32_swap_b32 %s, %s" % (v(16 + q), v(24 + q)))
    a.nop(1)
    for q in range(8):
        a("v_add_f32 %s, %s, %s" % (v(16 + q), v(16 + q), v(24 + q)))
    a("s_lshl_b32 s10, s3, 8")
    a("v_lshlrev_b32 v14, 5, v4")
    a("v_add_u32 v14, s10, v14")
    a("s_mov_b64 exec, 0xff")
    a("ds_write_b128 v14, v[16:19]")
    a("ds_write_b128 v14, v[20:23] offset:16")
    exec_all(a)
    a("s_waitcnt lgkmcnt(0)")
    a("s_barrier")
    a("s_cmp_lg_u32 s3, 0")
    a("s_cbranch_scc1 k4_end")
    a("s_mov_b32 exec_lo, -1")
    a("s_mov_b32 exec_hi, 0")
    a("v_lshrrev_b32 v14, 2, v0")
    a("v_lshlrev_b32 v14, 5, v14")
    a("v_lshl_add_u32 v14, v12, 2, v14")
    for w in range(4):
        a("ds_read_b32 %s, v14 offset:%d" % (v(16 + w), 256 * w))
        a("ds_read_b32 %s, v14 offset:%d" % (v(20 + w), 256 * w + 16))
    a("s_waitcnt vmcnt(0) lgkmcnt(0)")
    a("v_add_f32 v16, v16, v17")
    a("v_add_f32 v18, v18, v19")
    a("v_add_f32 v20, v20, v21")
    a("v_add_f32 v22, v22, v23")
    a("v_add_f32 v16, v16, v18")
    a("v_add_f32 v20, v20, v22")
    a("v_cvt_pk_bf16_f32 v24, v16, v20")
    a("v_lshlrev_b32 v16, 16, v24")
    a("v_and_b32 v20, 0xffff0000, v24")
    silu_inplace(a, 20, 25)
    a("v_cvt_pk_bf16_f32 v24, v20, v20")
    a("v_lshlrev_b32 v20, 16, v24")
    a("v_mul_f32 v16, v16, v20")
    a("v_cvt_pk_bf16_f32 v24, v16, v16")
    a("v_lshlrev_b32 v16, 16, v24")
    a("v_lshlrev_b32 v13, 16, v13")
    a("v_add_f32 v16, v16, v13")
    a("v_cvt_pk_bf16_f32 v24, v16, v16")
    a("buffer_store_short v24, v11, s[%d:%d], 0 offen" % (SOUT, SOUT + 3))
    a.label("k4_end")
    a("s_endpgm")
    return name, 40, 1024


def main():
    hdr = []
    a = Asm()
    a.raw('.amdgcn_target "amdgcn-amd-amdhsa--gfx950"')
    a.raw(".text")
    n1, v1 = gen_k1(a)
    n2, v2, l2 = gen_k2(a)
    n3, v3, l3 = gen_k3(a)
    n4, v4, l4 = gen_k4(a)
    a.raw('.section .rodata,"a"')
    for n, nv in ((n1, v1), (n2, v2), (n3, v3), (n4, v4)):
        a.raw(".p2align 6")
        kernel_desc(a, n, nv)
    hdr.append("; @launch kernel=%s grid=(368,1,1) block=(256,1,1) lds=14336" % n1)
    hdr.append("; @launch kernel=%s grid=(256,1,1) block=(%d,1,1) lds=%d" % (n2, 512 if LW else 256, l2))
    hdr.append("; @launch kernel=%s grid=(312,1,1) block=(256,1,1) lds=%d" % (n3, l3))
    hdr.append("; @launch kernel=%s grid=(64,1,1) block=(256,1,1) lds=%d" % (n4, l4))
    out = "\n".join(hdr + a.L) + "\n"
    path = sys.argv[1] if len(sys.argv) > 1 else "cdna_kernels/%s.s" % NAME
    open(path, "w").write(out)


if __name__ == "__main__":
    main()
```
